```python
import torch

def _softmax(x, axis=-1):
    return torch.softmax(x, dim=axis)
def _gelu(x):
    return torch.nn.functional.gelu(x, approximate="tanh")
def _silu(x):
    return torch.nn.functional.silu(x)
def _sigmoid(x):
    return torch.sigmoid(x)
def _layernorm(x, axis=-1, eps=1e-5):
    m = x.mean(dim=axis, keepdim=True)
    v = x.var(dim=axis, keepdim=True, unbiased=False)
    return (x - m) / torch.sqrt(v + eps)
def _scatter_add(tgt, idx, src, axis=0):
    return tgt.clone().index_add_(axis, idx, src)
def _segment_sum(src, seg, n):
    out = torch.zeros((n,) + src.shape[1:], dtype=src.dtype)
    return out.index_add_(0, seg, src)
def _pad(x, pw):
    flat = tuple(v for pair in reversed(pw) for v in pair)
    return torch.nn.functional.pad(x, flat)

kernel_name = 'parallel_sum__ssm_conv_s5__glu_gated_geglu__prompt'

def setup_inputs():

    _w = (lambda a: (lambda t: t.to(torch.bfloat16) if t.is_floating_point() else t)(torch.as_tensor(a)))
    def _A_setup():
        B, S, D = 1, 2048, 512
        P = D
        Lambda_re = -0.5 * (lambda _x: torch.exp(torch.as_tensor(_x)))((lambda *s: torch.randn(*s, dtype=torch.bfloat16) * 0.2)(P))
        Lambda_im = (lambda *s: torch.randn(*s, dtype=torch.bfloat16) * 0.4)(P) * 1.0
        B_re = (lambda *s: torch.randn(*s, dtype=torch.bfloat16) * 0.2)(P, D) * (D ** -0.5)
        B_im = (lambda *s: torch.randn(*s, dtype=torch.bfloat16) * 0.2)(P, D) * (D ** -0.5)
        C_re = (lambda *s: torch.randn(*s, dtype=torch.bfloat16) * 0.2)(D, P) * (P ** -0.5)
        C_im = (lambda *s: torch.randn(*s, dtype=torch.bfloat16) * 0.2)(D, P) * (P ** -0.5)
        log_dt = (lambda *s: torch.randn(*s, dtype=torch.bfloat16) * 0.2)(P) * 0.3 - 2.0
        Dskip = (lambda *s: torch.randn(*s, dtype=torch.bfloat16) * 0.05)(D)
        return {
            "x": _w((lambda *s: torch.randn(*s, dtype=torch.bfloat16) * 0.05)(B, S, D)),
            "Lambda_re": _w(Lambda_re),
            "Lambda_im": _w(Lambda_im),
            "B_re": _w(B_re),
            "B_im": _w(B_im),
            "C_re": _w(C_re),
            "C_im": _w(C_im),
            "log_dt": _w(log_dt),
            "Dskip": _w(Dskip),
        }
    _A_in = _A_setup()

    def _B_setup():
        B, S, Dm, Df = 1, 2048, 512, 1376
        return {
            "x": _w((lambda *s: torch.randn(*s, dtype=torch.bfloat16) * 0.05)(B, S, Dm)),
            "w_gate": _w((lambda *s: torch.randn(*s, dtype=torch.bfloat16) * 0.4)(Dm, Df) * (Dm ** -0.5)),
            "w_up": _w((lambda *s: torch.randn(*s, dtype=torch.bfloat16) * 0.4)(Dm, Df) * (Dm ** -0.5)),
            "w_down": _w((lambda *s: torch.randn(*s, dtype=torch.bfloat16) * 0.4)(Df, Dm) * (Df ** -0.5)),
        }
    _B_in = _B_setup()

    return {
        "A_x": _A_in["x"],
        "A_Lambda_re": _A_in["Lambda_re"],
        "A_Lambda_im": _A_in["Lambda_im"],
        "A_B_re": _A_in["B_re"],
        "A_B_im": _A_in["B_im"],
        "A_C_re": _A_in["C_re"],
        "A_C_im": _A_in["C_im"],
        "A_log_dt": _A_in["log_dt"],
        "A_Dskip": _A_in["Dskip"],
        "B_x": _B_in["x"],
        "B_w_gate": _B_in["w_gate"],
        "B_w_up": _B_in["w_up"],
        "B_w_down": _B_in["w_down"],
    }

def reference(A_x, A_Lambda_re, A_Lambda_im, A_B_re, A_B_im, A_C_re, A_C_im, A_log_dt, A_Dskip, B_x, B_w_gate, B_w_up, B_w_down):
    def _A_ref(x, Lambda_re, Lambda_im, B_re, B_im, C_re, C_im, log_dt, Dskip):
        Bsz, L, H = x.shape
        Lam = Lambda_re + 1j * Lambda_im
        Bmat = B_re + 1j * B_im
        Cmat = C_re + 1j * C_im
        dt = torch.exp(log_dt)
        Lam_bar = torch.exp(dt * Lam)
        B_bar = ((Lam_bar - 1.0) / Lam)[:, None] * Bmat
        Bu = torch.einsum("bld,pd->blp", x + 0j, B_bar)
        h = torch.zeros_like(Bu[:, 0, :])
        hs = []
        for t in range(L):
            h = Lam_bar[None, :] * h + Bu[:, t, :]
            hs.append(h)
        hseq = torch.stack(hs, 1)
        y = 2.0 * torch.einsum("blp,dp->bld", hseq, Cmat).real + x * Dskip[None, None, :]
        return y

    def _B_ref(x, w_gate, w_up, w_down):
        g = torch.einsum("bsd,df->bsf", x, w_gate)
        u = torch.einsum("bsd,df->bsf", x, w_up)
        h = _gelu(g) * u
        return torch.einsum("bsf,fd->bsd", h, w_down)

    x = A_x
    xn = _layernorm(x, axis=-1)
    return x + _A_ref(xn, A_Lambda_re, A_Lambda_im, A_B_re, A_B_im, A_C_re, A_C_im, A_log_dt, A_Dskip) + _B_ref(xn, B_w_gate, B_w_up, B_w_down)
```

```python
import re

REG_RE = re.compile(r'^(-|abs\(|\|)?\s*([vsa])(\d+)\)?\|?$')
RNG_RE = re.compile(r'^(-|abs\(|\|)?\s*([vsa])\[(\d+):(\d+)\]\)?\|?$')

def regs_of(op):
    op = op.strip()
    if op in ('vcc', 'exec', 'm0', 'scc'):
        return [op]
    if op in ('vcc_lo', 'vcc_hi'): return ['vcc']
    if op in ('exec_lo', 'exec_hi'): return ['exec']
    m = REG_RE.match(op)
    if m: return [(m.group(2), int(m.group(3)))]
    m = RNG_RE.match(op)
    if m: return [(m.group(2), i) for i in range(int(m.group(3)), int(m.group(4)) + 1)]
    return []

TRANS = ('v_exp_f32', 'v_log_f32', 'v_rcp_f32', 'v_rsq_f32', 'v_sqrt_f32', 'v_sin_f32', 'v_cos_f32', 'v_rcp_iflag_f32')
NODST_S = ('s_cmp', 's_waitcnt', 's_barrier', 's_nop', 's_branch', 's_cbranch', 's_endpgm', 's_setprio', 's_sleep', 's_bitcmp', 's_sendmsg')

class Ins:
    __slots__ = ('text', 'op', 'cls', 'rd', 'wr', 'tag', 'passes', 'wide', 'lds_dma', 'srcC', 'note')
    def __init__(self, text, tag=None):
        self.text = text; self.tag = tag; self.passes = 0; self.wide = False; self.lds_dma = False; self.srcC = []
        t = text.split(';')[0].strip()
        if t.endswith(':') or t.startswith('.') or t == '':
            self.op = 'label' if t.endswith(':') else 'dir'; self.cls = self.op; self.rd = set(); self.wr = set(); return
        parts = t.split(None, 1)
        op = parts[0]; self.op = op
        rest = parts[1] if len(parts) > 1 else ''
        ops = []; cur = ''; depth = 0
        for ch in rest:
            if ch in '[(': depth += 1
            if ch in '])': depth -= 1
            if ch == ',' and depth == 0: ops.append(cur.strip()); cur = ''
            else: cur += ch
        if cur.strip(): ops.append(cur.strip())
        mods = []
        if ops:
            l = ops[-1].split()
            ops[-1] = l[0]; mods = l[1:]
        R = [regs_of(o) for o in ops]
        rd = set(); wr = set()
        def allrd(rs):
            for r in rs: rd.update(r)
        if op.startswith('v_mfma'):
            self.cls = 'mfma'; wr.update(R[0]); allrd(R[1:]); self.srcC = list(R[3])
            self.passes = 8 if '32x32' in op else 4
        elif op.startswith('v_cmp'):
            self.cls = 'valu'; wr.update(R[0]); allrd(R[1:])
            if op.startswith('v_cmpx'): wr.add('exec')
        elif op.startswith('v_'):
            self.cls = 'trans' if op.replace('_e32', '').replace('_e64', '') in TRANS else 'valu'
            if op.startswith('v_permlane') and 'swap' in op:
                wr.update(R[0]); wr.update(R[1]); allrd(R)
            else:
                wr.update(R[0]); allrd(R[1:])
                if op.startswith(('v_add_co', 'v_sub_co', 'v_addc_co', 'v_subb_co', 'v_subrev_co', 'v_mad_u64', 'v_div_scale')):
                    wr.update(R[1]); rd.difference_update(set(R[1]) - set(sum(R[2:], [])))
                if op.startswith(('v_fmac', 'v_dot2c', 'v_pk_fmac', 'v_mac', 'v_writelane')) or 'dpp' in ' '.join(mods) or any(m.startswith(('row_', 'quad_perm', 'wave_')) for m in mods):
                    rd.update(R[0])
                if op.startswith('v_cndmask') and len(ops) == 3: rd.add('vcc')
                if op.startswith('v_cvt_pk_bf16') is False and any(m.startswith('op_sel') for m in mods) and op.endswith('_f16'): rd.update(R[0])
        elif op.startswith('ds_'):
            self.cls = 'ds'
            if op.startswith(('ds_read', 'ds_bpermute', 'ds_permute', 'ds_swizzle')) or '_rtn' in op:
                wr.update(R[0]); allrd(R[1:])
            else: allrd(R)
        elif op.startswith(('buffer_', 'global_')):
            self.cls = 'vmem'
            if op in ('buffer_wbl2', 'buffer_inv'):
                pass
            elif 'lds' in mods or '_lds_' in op:
                self.lds_dma = True; allrd(R); rd.add('m0')
            elif '_load' in op:
                wr.update(R[0]); allrd(R[1:])
                if 'd16' in op: rd.update(R[0])
            elif 'atomic' in op:
                allrd(R)
                if 'sc0' in mods: wr.update(R[0])
            else:
                allrd(R)
                if 'x4' in op or 'x3' in op: self.wide = True
        elif op.startswith('s_'):
            if op.startswith(('s_load', 's_buffer_load', 's_memtime', 's_memrealtime')):
                self.cls = 'smem'; wr.update(R[0]); allrd(R[1:])
            else:
                self.cls = 'salu'
                if op.startswith(NODST_S): allrd(R)
                else:
                    wr.update(R[0]); allrd(R[1:])
                    if 'saveexec' in op: wr.add('exec'); rd.add('exec')
                    if op.startswith(('s_addk', 's_mulk')): rd.update(R[0])
        else:
            raise ValueError('unknown op ' + text)
        self.rd = rd; self.wr = wr

class Stream:
    def __init__(self): self.ins = []
    def __call__(self, text, tag=None):
        for l in text.strip().split('\n'):
            l = l.strip()
            if l: self.ins.append(Ins(l, tag))
        return self
    def add(self, ins): self.ins.append(ins)
    def extend(self, lst): self.ins.extend(lst)

class Wait:
    def __init__(self, vm_tag=None, vm_all=False, lgkm_all=False, reset=False):
        self.vm_tag = vm_tag; self.vm_all = vm_all; self.lgkm_all = lgkm_all; self.reset = reset
        self.op = 'pseudo'; self.cls = 'pseudo'; self.rd = set(); self.wr = set(); self.text = ''

def finalize(ins_list, verbose=False):
    out = []
    vmq = []
    lgq = []
    smem_out = set()
    smem_pending = False
    def emit_wait(vm=None, lg=None):
        nonlocal vmq, lgq, smem_pending, smem_out
        parts = []
        if vm is not None and vm < len(vmq):
            assert vm <= 63
            parts.append('vmcnt(%d)' % vm); vmq = vmq[len(vmq) - vm:] if vm else []
        if lg is not None and (lg < len(lgq) or (lg == 0 and smem_pending)):
            lg2 = min(lg, 15)
            parts.append('lgkmcnt(%d)' % lg2); lgq = lgq[len(lgq) - lg2:] if lg2 else []
            if lg2 == 0: smem_pending = False; smem_out = set()
        if parts:
            out.append(Ins('s_waitcnt ' + ' '.join(parts)))
    def states(i):
        o = out[i]
        if o.cls in ('label', 'dir'): return 0
        if o.op == 's_nop': return int(o.text.split()[1]) + 1
        return 1
    def need_gap(cur):
        need = 0
        dist = 0
        i = len(out) - 1
        while i >= 0 and dist < 24:
            p = out[i]
            if p.cls not in ('label', 'dir'):
                req = 0
                pw = p.wr;
                if p.cls in ('valu', 'trans'):
                    vw = {r for r in pw if isinstance(r, tuple) and r[0] in 'va'}
                    sw = {r for r in pw if (isinstance(r, tuple) and r[0] == 's') or r == 'vcc'}
                    if cur.cls == 'mfma' and vw & cur.rd: req = max(req, 2)
                    if p.cls == 'trans' and cur.cls in ('valu', 'mfma', 'ds', 'vmem') and vw & cur.rd and cur.cls == 'valu': req = max(req, 1)
                    if cur.op.startswith(('v_readfirstlane', 'v_readlane')) and vw & cur.rd: req = max(req, 1)
                    if cur.op.startswith('v_permlane') and vw & cur.rd: req = max(req, 2)
                    if ('row_' in cur.text or 'quad_perm' in cur.text or 'wave_' in cur.text) and vw & cur.rd: req = max(req, 2)
                    if sw:
                        if cur.cls in ('valu', 'trans') and sw & cur.rd: req = max(req, 2)
                        if cur.cls == 'vmem' and sw & cur.rd: req = max(req, 5)
                        if cur.op.startswith(('v_readlane', 'v_writelane')) and sw & cur.rd: req = max(req, 4)
                    if 'exec' in pw:
                        req = max(req, 5 if cur.cls != 'salu' else 0)
                if p.cls == 'mfma':
                    D = pw
                    n = p.passes
                    if cur.cls == 'mfma':
                        ab = cur.rd - set(cur.srcC)
                        if D & ab: req = max(req, {4: 8, 8: 12}[n])
                        if D & set(cur.srcC):
                            same = (set(cur.srcC) == D and cur.passes == n)
                            if not same: req = max(req, {4: 6, 8: 10}[n])
                        elif D & cur.wr: req = max(req, {4: 8, 8: 12}[n])
                    elif cur.cls in ('valu', 'trans', 'ds', 'vmem'):
                        if D & (cur.rd | cur.wr): req = max(req, {4: 8, 8: 12}[n])
                        if cur.cls in ('valu', 'trans') and set(p.srcC) & cur.wr: req = max(req, {4: 3, 8: 7}[n])
                if p.op.startswith('v_dot') and (pw & (cur.rd | cur.wr)):
                    srcab = cur.rd - pw if cur.op == p.op else None
                    chain = (cur.op == p.op and cur.wr == pw and len([1 for o in cur.text.split(',')[1:] if regs_of(o.strip().split()[0]) and set(regs_of(o.strip().split()[0])) & pw]) == 0)
                    if not chain: req = max(req, 3)
                if p.cls == 'salu' and 'm0' in pw and cur.lds_dma: req = max(req, 1)
                if p.cls == 'vmem' and p.wide and (p.rd & cur.wr):
                    vw = {r for r in (p.rd & cur.wr) if isinstance(r, tuple) and r[0] == 'v'}
                    if vw: req = max(req, 2 if cur.cls in ('valu', 'trans', 'mfma') else 1)
                if req > dist: need = max(need, req - dist)
                dist += states(i)
            i -= 1
        return need
    for cur in ins_list:
        if isinstance(cur, Wait):
            vm = None; lg = None
            if cur.vm_all: vm = 0
            if cur.vm_tag is not None:
                idx = [k for k, o in enumerate(vmq) if o.tag == cur.vm_tag]
                if idx: vm = len(vmq) - 1 - max(idx)
            if cur.lgkm_all: lg = 0
            emit_wait(vm, lg)
            if cur.reset: vmq = []; lgq = []
            continue
        if cur.cls in ('label', 'dir'):
            out.append(cur); continue
        touched = cur.rd | cur.wr
        vm = None
        for k, o in enumerate(vmq):
            if o.wr & touched: vm = len(vmq) - 1 - k if vm is None else min(vm, len(vmq) - 1 - k)
        lg = None
        for k, o in enumerate(lgq):
            if o.wr & touched: lg = len(lgq) - 1 - k if lg is None else min(lg, len(lgq) - 1 - k)
        if smem_pending and (smem_out & touched): lg = 0
        if smem_pending and lg is not None: lg = 0
        emit_wait(vm, lg)
        if cur.op == 's_waitcnt':
            m = re.search(r'vmcnt\((\d+)\)', cur.text)
            if m: n = int(m.group(1)); vmq = vmq[len(vmq) - n:] if n and n < len(vmq) else ([] if n == 0 else vmq)
            m = re.search(r'lgkmcnt\((\d+)\)', cur.text)
            if m:
                n = int(m.group(1)); lgq = lgq[len(lgq) - n:] if n and n < len(lgq) else ([] if n == 0 else lgq)
                if n == 0: smem_pending = False; smem_out = set()
            out.append(cur); continue
        g = need_gap(cur)
        while g > 0:
            k = min(g, 16); out.append(Ins('s_nop %d' % (k - 1))); g -= k
        out.append(cur)
        if cur.cls == 'vmem':
            vmq.append(cur)
            if len(vmq) > 63:
                emit_wait(vm=62)
        elif cur.cls == 'ds':
            lgq.append(cur)
            if len(lgq) > 15: pass
        elif cur.cls == 'smem':
            smem_pending = True; smem_out |= cur.wr
    return out

def render(out):
    r = []
    for o in out:
        if o.cls == 'label': r.append(o.text)
        else: r.append('    ' + o.text)
    return '\n'.join(r) + '\n'

def flat(items):
    out = []
    for it in items:
        if isinstance(it, list): out.extend(flat(it))
        else: out.append(it)
    return out

def count(it):
    return len(it) if isinstance(it, list) else 1

def interleave2(main, fillers):
    out = []; fi = 0; debt = 0
    for it in main:
        if isinstance(it, tuple) and it[0] == 'SLOT':
            budget = it[1] - debt; debt = 0
            while budget > 0 and fi < len(fillers):
                f = fillers[fi]
                if f == 'STOP':
                    break
                out.extend(flat([f])); budget -= count(f); fi += 1
            if budget < 0: debt = -budget
        elif isinstance(it, tuple) and it[0] == 'GO':
            while fi < len(fillers) and fillers[fi] != 'STOP':
                out.extend(flat([fillers[fi]])); fi += 1
            if fi < len(fillers): fi += 1
        else: out.append(it)
    return out, fillers[fi:]

def interleave(main, fillers, per_slot):
    out = []; fi = 0
    for it in main:
        if it == 'SLOT':
            n = per_slot() if callable(per_slot) else per_slot
            for _ in range(n):
                if fi < len(fillers): out.append(fillers[fi]); fi += 1
        elif isinstance(it, tuple) and it[0] == 'SLOT':
            for _ in range(it[1]):
                if fi < len(fillers): out.append(fillers[fi]); fi += 1
        else: out.append(it)
    return out, fillers[fi:]
```

```python
from asmlib import *
KBASE = "parallel_sum__ssm_conv_s5__glu_gated_geglu__prompt"
WS_A2 = 0
RG_BYTES = 150 * 1024
WS_W2 = 0x00A00000
WS_ST = 0x00D00000
WS_AG = 0x00D10000
K_X, K_LRE, K_LIM, K_BRE, K_BIM, K_CRE, K_CIM, K_LDT, K_DSK, K_BX, K_WG, K_WU, K_WD, K_OUT, K_DBG, K_WS = [8*i for i in range(16)]

def header_comments():
    hdr = open("cdna_kernels/%s.s.ref" % KBASE).read().split("\n")
    return [l for l in hdr if l.startswith(";") and "@launch" not in l]

def srd(S, d, base, nbytes, off=None):
    if off is None:
        S("s_mov_b32 s%d, s%d" % (d, base)); S("s_mov_b32 s%d, s%d" % (d+1, base+1))
    else:
        S("s_add_u32 s%d, s%d, %s" % (d, base, off)); S("s_addc_u32 s%d, s%d, 0" % (d+1, base+1))
    S("s_mov_b32 s%d, %s" % (d+2, nbytes)); S("s_mov_b32 s%d, 0x20000" % (d+3))

def kernel_text(name, body, nv, ns, accum=None, ids="x"):
    accum = accum or ((nv + 3)//4*4)
    t = ".globl %s\n.p2align 8\n.type %s,@function\n%s:\n" % (name, name, name) + body
    d = '.section .rodata,"a"\n.p2align 6\n.amdhsa_kernel %s\n  .amdhsa_next_free_vgpr %d\n  .amdhsa_next_free_sgpr %d\n  .amdhsa_accum_offset %d\n' % (name, nv, ns, accum)
    d += "  .amdhsa_group_segment_fixed_size 0\n  .amdhsa_kernarg_size 128\n  .amdhsa_user_sgpr_count 2\n  .amdhsa_user_sgpr_kernarg_segment_ptr 1\n  .amdhsa_system_sgpr_workgroup_id_x 1\n"
    if 'y' in ids: d += "  .amdhsa_system_sgpr_workgroup_id_y 1\n"
    d += ".end_amdhsa_kernel\n.text\n"
    return t + d
```

```python
from common import *
def gen_k0(name):
    S = Stream()
    S("s_cmp_ge_u32 s2, 150\ns_cbranch_scc1 L_k0_end")
    S("s_load_dwordx2 s[4:5], s[0:1], %d\ns_load_dwordx2 s[6:7], s[0:1], %d\ns_load_dwordx2 s[8:9], s[0:1], %d\ns_load_dwordx2 s[10:11], s[0:1], %d" % (K_WD, K_CRE, K_CIM, K_WS))
    S("v_lshrrev_b32 v1, 6, v0")
    S("v_and_b32 v2, 31, v0")
    S("v_bfe_u32 v3, v0, 5, 1")
    S("v_and_b32 v4, 63, v0")
    S("v_readfirstlane_b32 s12, v1")
    S("s_lshl_b32 s13, s3, 2\ns_add_u32 s13, s13, s12")
    S("s_lshl_b32 s14, s13, 5")
    S("v_add_u32 v5, s14, v2")
    S("s_mul_i32 s15, s13, 150\ns_add_u32 s15, s15, s2\ns_lshl_b32 s15, s15, 10")
    S("v_lshlrev_b32 v6, 4, v4")
    S("s_waitcnt lgkmcnt(0)")
    srd(S, 20, 10, 16*RG_BYTES, WS_W2)
    S("s_cmp_ge_u32 s2, 86\ns_cbranch_scc1 L_k0_ssm")
    srd(S, 16, 4, 1376*1024)
    S("s_lshl_b32 s24, s2, 14")
    S("v_lshlrev_b32 v7, 12, v3")
    S("v_lshl_add_u32 v7, v5, 1, v7")
    S("v_add_u32 v7, s24, v7")
    S("v_add_u32 v8, 8192, v7")
    for half, vo in ((0, 7), (1, 8)):
        for e in range(4):
            S("buffer_load_ushort v%d, v%d, s[16:19], 0 offen offset:%d" % (16+4*half+e, vo, 1024*e))
    for i in range(4):
        S("v_lshl_or_b32 v%d, v%d, 16, v%d" % (10+i, 17+2*i, 16+2*i))
    S("buffer_store_dwordx4 v[10:13], v6, s[20:23], s15 offen")
    S("s_endpgm")
    S("L_k0_ssm:")
    S("s_sub_u32 s24, s2, 86")
    S("s_bfe_u32 s25, s24, 0x10001")
    S("s_cmp_eq_u32 s25, 1")
    S("s_cselect_b32 s16, s8, s6\ns_cselect_b32 s17, s9, s7")
    S("s_cselect_b32 s26, 0x80008000, 0")
    S("s_mov_b32 s18, %d\ns_mov_b32 s19, 0x20000" % (512*1024))
    S("s_lshr_b32 s27, s24, 2\ns_lshl_b32 s27, s27, 6\ns_and_b32 s28, s24, 1\ns_lshl_b32 s28, s28, 5\ns_add_u32 s27, s27, s28")
    S("v_lshlrev_b32 v7, 10, v5")
    S("v_lshl_add_u32 v7, v3, 4, v7")
    S("buffer_load_dwordx4 v[10:13], v7, s[16:19], s27 offen")
    for i in range(4): S("v_xor_b32 v%d, s26, v%d" % (10+i, 10+i))
    S("buffer_store_dwordx4 v[10:13], v6, s[20:23], s15 offen")
    S("L_k0_end:")
    S("s_endpgm")
    return kernel_text(name, render(finalize(S.ins)), 24, 32, ids="xy")
```

```python
from common import *
import struct
def f2u(x): return struct.unpack('<I', struct.pack('<f', x))[0]
LOG2E = 1.4426950408889634
GC0 = -2.0 * LOG2E * 0.7978845608028654
GC1 = GC0 * 0.044715

M0 = 131072
PST = M0; FST = M0 + 4096; CSP = M0 + 5120; CSF = M0 + 9216; SEG = M0 + 11264
XF = 128; ACCA = 64; ACCB = 96; WF = 48
vX0, vX1, vW0, vW1, vW2, vW3, vT0, vT1 = 5, 6, 7, 8, 9, 10, 11, 12
vXA = [13, 14, 15, 16]; vBA = [17, 18, 19, 20]
vS = [22, 23]; vQ = [24, 21]; vC = [25, 26]
vNM, vINV, vSS, vAO, vG0, vG1 = 27, 28, 29, 30, 31, 32
vLr, vLi, vL16r, vL16i, vL128r, vL128i, vcr, vci, vFr, vFi, vPr, vPi, vdr, vdi = range(33, 47)
vSP = 47
TMP = [5, 6, 7, 8] + list(range(13, 25))
sM, sJ, sW, sRG, sCG = 3, 4, 5, 6, 7
SX, SW1, SW2, SA, SAG, SDBG, SST, SP = 32, 36, 40, 44, 52, 56, 60, 64
sXOFF, sWOFF, sWSTR, sW2OFF, sLDSW, sUA, sUP2, sUOFF1, sUOFF2, sONES, sT0, sT1, sFMASK, sJ4 = 68, 69, 70, 71, 72, 73, 74, 75, 76, 77, 78, 79, 48, 49
sMASK = 80
sAGM = 94; sFLM = 96

def I(text, tag=None): return Ins(text, tag)

def bf16r(lst, x, t):
    lst.append(I("v_cvt_pk_bf16_f32 v%d, v%d, v%d" % (t, x, x)))
    lst.append(I("v_lshlrev_b32 v%d, 16, v%d" % (x, t)))

def cmul_into(lst, dr, di, ar, ai, br, bi):
    lst.append(I("v_mul_f32 v%d, v%d, v%d" % (dr, ar, br)))
    lst.append(I("v_mul_f32 v%d, v%d, v%d" % (di, ar, bi)))
    lst.append(I("v_fma_f32 v%d, -v%d, v%d, v%d" % (dr, ai, bi, dr)))
    lst.append(I("v_fma_f32 v%d, v%d, v%d, v%d" % (di, ai, br, di)))

def csq(lst, r, i, t):
    lst.append(I("v_mul_f32 v%d, v%d, v%d" % (t, i, i)))
    lst.append(I("v_mul_f32 v%d, v%d, v%d" % (i, r, i)))
    lst.append(I("v_fma_f32 v%d, v%d, v%d, -v%d" % (r, r, r, t)))
    lst.append(I("v_add_f32 v%d, v%d, v%d" % (i, i, i)))

def stats_finalize(T, cg):
    L = []
    a = T[0]
    L.append(I("v_lshl_add_u32 v%d, s%d, 5, v2" % (a, sRG)))
    L.append(I("v_lshlrev_b32 v%d, 5, v%d" % (a, a)))
    L.append(I("v_add_u32 v%d, %d, v%d" % (a, PST, a)))
    q0, q1 = 16, 20
    L.append(I("ds_read_b128 v[%d:%d], v%d" % (q0, q0+3, a)))
    L.append(I("ds_read_b128 v[%d:%d], v%d offset:16" % (q1, q1+3, a)))
    L.append(I("v_add_f32 v%d, v%d, v%d" % (q0, q0, q0+2)))
    L.append(I("v_add_f32 v%d, v%d, v%d" % (q0+1, q0+1, q0+3)))
    L.append(I("v_add_f32 v%d, v%d, v%d" % (q1, q1, q1+2)))
    L.append(I("v_add_f32 v%d, v%d, v%d" % (q1+1, q1+1, q1+3)))
    L.append(I("v_add_f32 v%d, v%d, v%d" % (q0, q0, q1)))
    L.append(I("v_add_f32 v%d, v%d, v%d" % (q0+1, q0+1, q1+1)))
    mean, ex2, t = q0, q0+1, q0+2
    L.append(I("v_mul_f32 v%d, 0x%x, v%d" % (mean, f2u(1/512.), mean)))
    L.append(I("v_mul_f32 v%d, 0x%x, v%d" % (ex2, f2u(1/512.), ex2)))
    L.append(I("v_fma_f32 v%d, -v%d, v%d, v%d" % (ex2, mean, mean, ex2)))
    L.append(I("v_max_f32 v%d, 0, v%d" % (ex2, ex2)))
    bf16r(L, mean, t); bf16r(L, ex2, t)
    L.append(I("v_add_f32 v%d, 0x%x, v%d" % (ex2, f2u(1e-5), ex2)))
    bf16r(L, ex2, t)
    L.append(I("v_sqrt_f32 v%d, v%d" % (ex2, ex2)))
    bf16r(L, ex2, t)
    L.append(I("v_mov_b32 v%d, v%d" % (vSS, ex2)))
    L.append(I("v_rcp_f32 v%d, v%d" % (vINV, ex2)))
    L.append(I("v_sub_f32 v%d, 0, v%d" % (vNM, mean)))
    if cg == 1:
        L.append(I("s_lshl_b32 s%d, s%d, 7" % (sT0, sM)))
        L.append(I("s_lshl_b32 s%d, s%d, 5" % (sT1, sRG)))
        L.append(I("s_add_u32 s%d, s%d, s%d" % (sT0, sT0, sT1)))
        L.append(I("v_add_lshl_u32 v%d, v4, s%d, 3" % (a, sT0)))
        L.append(I("v_mov_b32 v%d, v%d" % (q1, mean)))
        L.append(I("v_mov_b32 v%d, v%d" % (q1+1, vINV)))
        L.append(I("buffer_store_dwordx2 v[%d:%d], v%d, s[%d:%d], 0 offen" % (q1, q1+1, a, SST, SST+3)))
    return L

def colsum_write(cg, vt):
    L = []
    L.append(I("s_lshl_b32 s50, s%d, 3" % sRG))
    L.append(I("v_lshlrev_b32 v%d, 5, v2" % vt))
    L.append(I("v_lshl_add_u32 v%d, v3, 2, v%d" % (vt, vt)))
    L.append(I("v_add_u32 v%d, s50, v%d" % (vt, vt)))
    L.append(I("v_add_u32 v%d, %d, v%d" % (vt, CSP + cg*2048, vt)))
    L.append(I("ds_write_b32 v%d, v%d" % (vt, vC[0])))
    L.append(I("ds_write_b32 v%d, v%d offset:1024" % (vt, vC[1])))
    return L

def colsum_read(cg, dst, T):
    L = []
    a = T[0]
    L.append(I("v_lshlrev_b32 v%d, 5, v2" % a))
    L.append(I("v_add_u32 v%d, %d, v%d" % (a, CSP + cg*2048, a)))
    for acc in range(2):
        q0, q1 = 16, 20
        L.append(I("ds_read_b128 v[%d:%d], v%d offset:%d" % (q0, q0+3, a, acc*1024)))
        L.append(I("ds_read_b128 v[%d:%d], v%d offset:%d" % (q1, q1+3, a, acc*1024+16)))
        for e in range(4): L.append(I("v_add_f32 v%d, v%d, v%d" % (q0+e, q0+e, q1+e)))
        L.append(I("v_add_f32 v%d, v%d, v%d" % (q0, q0, q0+1)))
        L.append(I("v_add_f32 v%d, v%d, v%d" % (q0+2, q0+2, q0+3)))
        L.append(I("v_add_f32 v%d, v%d, v%d" % (dst[acc], q0, q0+2)))
    return L

def ffn_epilogue(accG, accU, cg, suoff, T, wide=False):
    L = []
    cs = [T[1], T[2]]
    L += colsum_read(cg, cs, T)
    a = T[0]
    L.append(I("s_lshl_b32 s%d, s%d, 8" % (sT0, sW)))
    L.append(I("v_lshlrev_b32 v%d, 2, v2" % a))
    L.append(I("v_add_u32 v%d, s%d, v%d" % (a, sT0, a)))
    L.append(I("v_add_u32 v%d, %d, v%d" % (a, CSF, a)))
    L.append(I("ds_write_b32 v%d, v%d" % (a, cs[0])))
    L.append(I("ds_write_b32 v%d, v%d offset:128" % (a, cs[1])))
    L.append(I("v_lshlrev_b32 v%d, 4, v3" % a))
    L.append(I("v_add_u32 v%d, s%d, v%d" % (a, sT0, a)))
    L.append(I("v_add_u32 v%d, %d, v%d" % (a, CSF, a)))
    cG, cU = 16, 20
    tt = [T[1], T[2], T[3], 13]
    pk = 14
    for g in range(4):
        L.append(I("ds_read_b128 v[%d:%d], v%d offset:%d" % (cG, cG+3, a, g*32)))
        L.append(I("ds_read_b128 v[%d:%d], v%d offset:%d" % (cU, cU+3, a, 128 + g*32)))
        R = [4*g + jj for jj in range(4)]
        for jj, r in enumerate(R): L.append(I("v_fma_f32 v%d, v%d, v%d, v%d" % (accG+r, vNM, cG+jj, accG+r)))
        for jj, r in enumerate(R): L.append(I("v_fma_f32 v%d, v%d, v%d, v%d" % (accU+r, vNM, cU+jj, accU+r)))
        for jj, r in enumerate(R): L.append(I("v_mul_f32 v%d, v%d, v%d" % (accG+r, accG+r, vINV)))
        for jj, r in enumerate(R): L.append(I("v_mul_f32 v%d, v%d, v%d" % (tt[jj], accG+r, accG+r)))
        for jj, r in enumerate(R): L.append(I("v_fma_f32 v%d, v%d, v%d, v%d" % (tt[jj], tt[jj], vG1, vG0)))
        for jj, r in enumerate(R): L.append(I("v_mul_f32 v%d, v%d, v%d" % (tt[jj], tt[jj], accG+r)))
        for jj, r in enumerate(R): L.append(I("v_exp_f32 v%d, v%d" % (tt[jj], tt[jj])))
        for jj, r in enumerate(R): L.append(I("v_mul_f32 v%d, v%d, v%d" % (accU+r, accU+r, accG+r)))
        for jj, r in enumerate(R): L.append(I("v_fma_f32 v%d, v%d, v%d, v%d" % (tt[jj], tt[jj], vSS, vSS)))
        for jj, r in enumerate(R): L.append(I("v_rcp_f32 v%d, v%d" % (tt[jj], tt[jj])))
        for jj, r in enumerate(R): L.append(I("v_mul_f32 v%d, v%d, v%d" % (accU+r, accU+r, tt[jj])))
        base = accG + 8*(g >> 1) + 2*(g & 1)
        if g & 1 == 0:
            L.append(I("v_cvt_pk_bf16_f32 v%d, v%d, v%d" % (base, accU+4*g, accU+4*g+1)))
            L.append(I("v_cvt_pk_bf16_f32 v%d, v%d, v%d" % (base+1, accU+4*g+2, accU+4*g+3)))
        else:
            L.append(I("v_cvt_pk_bf16_f32 v%d, v%d, v%d" % (base, accU+4*g, accU+4*g+1)))
            L.append(I("v_cvt_pk_bf16_f32 v%d, v%d, v%d" % (base+1, accU+4*g+2, accU+4*g+3)))
            q = accG + 8*(g >> 1)
            L.append(I("buffer_store_dwordx4 v[%d:%d], v%d, s[%d:%d], s%d offen offset:%d" % (q, q+3, vAO, SA, SA+3, suoff, 1024*(g >> 1))))
    return L

def gen_p1(name, stamp=False):
    P = Stream()
    P("s_cmp_ge_u32 s2, 256\ns_cbranch_scc1 L_p1_end")
    if stamp: P("s_memrealtime s[98:99]\ns_memtime s[100:101]")
    P("s_load_dwordx16 s[8:23], s[0:1], 0\ns_load_dwordx4 s[24:27], s[0:1], 80\ns_load_dwordx4 s[28:31], s[0:1], 112")
    P("v_lshrrev_b32 v1, 6, v0")
    P("v_and_b32 v2, 31, v0")
    P("v_readfirstlane_b32 s%d, v1" % sW)
    P("v_and_b32 v1, 63, v0")
    P("v_bfe_u32 v3, v0, 5, 1")
    P("s_and_b32 s3, s2, 1\ns_lshl_b32 s3, s3, 3\ns_bfe_u32 s%d, s2, 0x30003\ns_add_u32 s3, s3, s%d" % (sT0, sT0))
    P("s_bfe_u32 s4, s2, 0x20001\ns_lshl_b32 s4, s4, 2\ns_lshr_b32 s%d, s2, 6\ns_add_u32 s4, s4, s%d" % (sT0, sT0))
    P("s_and_b32 s%d, s%d, 3\ns_lshr_b32 s%d, s%d, 2" % (sRG, sW, sCG, sW))
    P("v_bfe_u32 v4, v2, 2, 1\nv_lshlrev_b32 v4, 4, v4\nv_lshrrev_b32 v47, 3, v2\nv_lshl_add_u32 v4, v47, 2, v4\nv_and_b32 v47, 3, v2\nv_add_u32 v4, v4, v47")
    P("v_and_b32 v46, 7, v1\nv_lshrrev_b32 v45, 4, v1\nv_xor_b32 v46, v46, v45\nv_lshlrev_b32 v46, 4, v46")
    P("v_lshrrev_b32 v45, 3, v1")
    P("v_lshl_add_u32 v44, v45, 10, v46")
    P("s_lshl_b32 s%d, s3, 17\ns_lshl_b32 s%d, s%d, 14\ns_add_u32 s%d, s%d, s%d" % (sT0, sT1, sW, sT0, sT0, sT1))
    P("v_add_u32 v%d, s%d, v44" % (vX0, sT0))
    P("v_xor_b32 v%d, 64, v%d\nv_add_u32 v%d, 8192, v%d" % (vX1, vX0, vX1, vX1))
    P("s_mul_i32 s%d, s4, 3" % sUA)
    P("s_add_u32 s%d, s%d, 1" % (sT0, sUA))
    P("s_add_u32 s%d, s%d, 2" % (sT1, sUA))
    P("s_lshl_b32 s%d, s%d, 11" % (sUOFF2, sT0))
    P("s_cmp_lt_u32 s4, 11\ns_cbranch_scc1 L_p1_u")
    P("s_lshl_b32 s%d, s4, 1\ns_add_u32 s%d, s%d, 11" % (sUA, sUA, sUA))
    P("s_add_u32 s%d, s%d, 1\ns_mov_b32 s%d, s%d\ns_mov_b32 s%d, 0x10000000" % (sT1, sUA, sT0, sT1, sUOFF2))
    P("L_p1_u:")
    P("s_lshl_b32 s%d, s%d, 11" % (sUOFF1, sUA))
    P("s_cmp_eq_u32 s%d, 0\ns_cbranch_scc1 L_p1_u2\ns_lshl_b32 s%d, s%d, 11\nL_p1_u2:" % (sCG, sUOFF2, sT1))
    P("s_cmp_lt_u32 s%d, 4\ns_cselect_b32 s%d, s%d, s%d" % (sW, sUP2, sT0, sT1))
    P("s_and_b32 s%d, s%d, 1\ns_lshl_b32 s%d, s%d, 5" % (sT0, sW, sT0, sT0))
    P("v_lshrrev_b32 v43, 2, v1\nv_add_u32 v43, s%d, v43" % sT0)
    P("s_movk_i32 s%d, 2752\nv_mul_lo_u32 v43, v43, s%d" % (sT1, sT1))
    P("v_and_b32 v42, 3, v1\nv_lshl_add_u32 v43, v42, 4, v43")
    P("s_lshl_b32 s%d, s%d, 6\nv_add_u32 v%d, s%d, v43\nv_add_u32 v%d, %d, v%d" % (sT0, sUP2, vW2, sT0, vW3, 16*2752, vW2))
    P("s_waitcnt lgkmcnt(0)")
    srd(P, SX, 8, 2048*1024)
    P("s_cmp_lt_u32 s%d, 4\ns_cbranch_scc0 L_p1_wffn" % sW)
    P("s_cmp_lt_u32 s%d, 2\ns_cselect_b32 s%d, s14, s16\ns_cselect_b32 s%d, s15, s17" % (sW, SW1, SW1+1))
    P("s_mov_b32 s%d, %d\ns_movk_i32 s%d, 128" % (SW1+2, 512*1024, sWSTR))
    P("s_lshl_b32 s%d, s4, 15\ns_and_b32 s%d, s%d, 1\ns_lshl_b32 s%d, s%d, 14\ns_add_u32 s%d, s%d, s%d" % (sT0, sT1, sW, sT1, sT1, sT0, sT0, sT1))
    P("v_add_u32 v%d, s%d, v44\nv_xor_b32 v%d, 64, v%d\nv_add_u32 v%d, 8192, v%d" % (vW0, sT0, vW1, vW0, vW1, vW1))
    P("s_branch L_p1_wdone")
    P("L_p1_wffn:")
    P("s_cmp_lt_u32 s%d, 6\ns_cselect_b32 s%d, s24, s26\ns_cselect_b32 s%d, s25, s27" % (sW, SW1, SW1+1))
    P("s_mov_b32 s%d, %d\ns_mov_b32 s%d, %d" % (SW1+2, 512*2752, sWSTR, 64*2752))
    P("s_lshl_b32 s%d, s%d, 6\nv_add_u32 v%d, s%d, v43\nv_add_u32 v%d, %d, v%d" % (sT0, sUA, vW0, sT0, vW1, 16*2752, vW0))
    P("L_p1_wdone:")
    P("s_mov_b32 s%d, 0x20000" % (SW1+3))
    P("s_bitcmp1_b32 s%d, 1\ns_cselect_b32 s%d, s26, s24\ns_cselect_b32 s%d, s27, s25" % (sW, SW2, SW2+1))
    P("s_mov_b32 s%d, %d\ns_mov_b32 s%d, 0x20000" % (SW2+2, 512*2752, SW2+3))
    P("s_mov_b32 s%d, 0\ns_mov_b32 s%d, 0\ns_mov_b32 s%d, 0\ns_lshl_b32 s%d, s%d, 11" % (sXOFF, sWOFF, sW2OFF, sLDSW, sW))
    pro = finalize(P.ins)

    def dma_x(lst, slot, tag):
        for i, vr in enumerate((vX0, vX1)):
            lst.append(I("s_add_u32 m0, s%d, %d" % (sLDSW, slot*16384 + i*1024)))
            lst.append(I("buffer_load_dwordx4 v%d, s[%d:%d], s%d offen lds" % (vr, SX, SX+3, sXOFF), tag))
        lst.append(I("s_add_u32 s%d, s%d, 128" % (sXOFF, sXOFF)))
    def dma_w(lst, slot, tag):
        for i, vr in enumerate((vW0, vW1)):
            lst.append(I("s_add_u32 m0, s%d, %d" % (sLDSW, slot*16384 + i*1024)))
            lst.append(I("buffer_load_dwordx4 v%d, s[%d:%d], s%d offen lds" % (vr, SW1, SW1+3, sWOFF), tag))
        lst.append(I("s_add_u32 s%d, s%d, s%d" % (sWOFF, sWOFF, sWSTR)))
    def dma_w2(lst, slot, tag):
        for i, vr in enumerate((vW2, vW3)):
            lst.append(I("s_add_u32 m0, s%d, %d" % (sLDSW, slot*16384 + i*1024)))
            lst.append(I("buffer_load_dwordx4 v%d, s[%d:%d], s%d offen lds" % (vr, SW2, SW2+3, sW2OFF), tag))
        lst.append(I("s_add_u32 s%d, s%d, %d" % (sW2OFF, sW2OFF, 64*2752)))
    def w2slot(q): return q//2 if q % 2 == 0 else 4 + (q-1)//2

    Q = Stream()
    Q("s_lshl_b32 s%d, s4, 6\nv_lshl_add_u32 v64, v2, 1, s%d" % (sT0, sT0))
    srd(Q, SP, 10, 1024); Q("buffer_load_ushort v65, v64, s[%d:%d], 0 offen" % (SP, SP+3))
    srd(Q, SAG, 12, 1024); Q("buffer_load_ushort v66, v64, s[%d:%d], 0 offen" % (SAG, SAG+3))
    srd(Q, SDBG, 22, 1024); Q("buffer_load_ushort v67, v64, s[%d:%d], 0 offen" % (SDBG, SDBG+3))
    C = Q.ins
    for t in range(4):
        dma_x(C, t, ('C', t)); dma_w(C, 4+t, ('C', t))
    Q("v_bfe_u32 v46, v4, 1, 3")
    Q("s_lshl_b32 s%d, s%d, 12" % (sT0, sRG))
    Q("v_lshlrev_b32 v45, 7, v4\nv_add_u32 v45, s%d, v45" % sT0)
    for s in range(4):
        Q("v_or_b32 v44, %d, v3\nv_xor_b32 v44, v44, v46\nv_lshl_add_u32 v%d, v44, 4, v45" % (2*s, vXA[s]))
    Q("v_bfe_u32 v46, v2, 1, 3\nv_lshlrev_b32 v45, 7, v2\nv_add_u32 v45, 65536, v45")
    for s in range(4):
        Q("v_or_b32 v44, %d, v3\nv_xor_b32 v44, v44, v46\nv_lshl_add_u32 v%d, v44, 4, v45" % (2*s, vBA[s]))
    Q("v_bfe_u32 v44, v1, 2, 2\nv_lshl_add_u32 v44, v3, 3, v44\nv_lshlrev_b32 v44, 6, v44")
    Q("v_bfe_u32 v45, v1, 4, 1\nv_lshl_add_u32 v44, v45, 5, v44\nv_and_b32 v45, 3, v1\nv_lshl_add_u32 v44, v45, 3, v44")
    Q("s_lshl_b32 s%d, s%d, 13\nv_add_u32 v%d, s%d, v44\nv_add_u32 v%d, 65536, v%d" % (sT0, sCG, vT0, sT0, vT1, vT0))
    Q("v_lshlrev_b32 v%d, 4, v4\nv_lshl_add_u32 v%d, v3, 9, v%d" % (vAO, vAO, vAO))
    Q("v_mov_b32 v%d, 0x%x\nv_mov_b32 v%d, 0x%x" % (vG0, f2u(GC0), vG1, f2u(GC1)))
    Q("s_mov_b32 s%d, 0x3f803f80" % sONES)
    for r in vS + vQ + vC: Q("v_mov_b32 v%d, 0" % r)
    Q("s_lshl_b32 s%d, s3, 2\ns_add_u32 s%d, s%d, s%d\ns_mul_i32 s%d, s%d, %d" % (sT0, sT0, sT0, sRG, sT0, sT0, RG_BYTES))
    srd(Q, SA, 30, RG_BYTES, "s%d" % sT0)
    Q("s_add_u32 s%d, s30, %d\ns_addc_u32 s%d, s31, 0\ns_cmp_eq_u32 s4, 0\ns_cselect_b32 s%d, 16384, 0\ns_mov_b32 s%d, 0x20000" % (SST, WS_ST, SST+1, SST+2, SST+3))
    Q("s_cmp_eq_u32 s%d, 1\ns_cbranch_scc1 L_p1_role1" % sCG)

    def reads(lst, cg, t, s):
        ks = (t % 8)*4 + s
        b = WF + 8*(ks & 1)
        if t < 8:
            xs = t % 4; wsl = 4 + t % 4
            lst.append(I("ds_read_b128 v[%d:%d], v%d offset:%d" % (XF+4*ks, XF+4*ks+3, vXA[s], xs*16384)))
        else:
            wsl = w2slot(t-8)
        if t < 8 and cg == 0:
            for acc in range(2):
                lst.append(I("ds_read_b128 v[%d:%d], v%d offset:%d" % (b+4*acc, b+4*acc+3, vBA[s], (wsl-4)*16384 + acc*4096)))
        else:
            vt = vT1 if wsl >= 4 else vT0
            for acc in range(2):
                o = (wsl & 3)*16384 + acc*4096 + s*1024
                lst.append(I("ds_read_b64_tr_b16 v[%d:%d], v%d offset:%d" % (b+4*acc, b+4*acc+1, vt, o)))
                lst.append(I("ds_read_b64_tr_b16 v[%d:%d], v%d offset:%d" % (b+4*acc+2, b+4*acc+3, vt, o+256)))
    def mfma(cg, t, s, acc):
        ks = (t % 8)*4 + s
        b = WF + 8*(ks & 1) + 4*acc
        A = (ACCA if t < 8 else ACCB) + 16*acc
        c = "0" if ks == 0 else "v[%d:%d]" % (A, A+15)
        x = "v[%d:%d]" % (XF+4*ks, XF+4*ks+3); w = "v[%d:%d]" % (b, b+3)
        if t < 8 and cg == 0: return I("v_mfma_f32_32x32x16_bf16 v[%d:%d], %s, %s, %s" % (A, A+15, x, w, c))
        return I("v_mfma_f32_32x32x16_bf16 v[%d:%d], %s, %s, %s" % (A, A+15, w, x, c))

    lab = [0]
    def role_main(cg, dens, go_steps):
        M = []
        M.append(Wait(vm_tag=('C', 0)))
        M.append(I("s_barrier"))
        reads(M, cg, 0, 0)
        for t in range(16):
            for s in range(4):
                ks = (t % 8)*4 + s
                last = (s == 3)
                if not last: reads(M, cg, t, s+1)
                M.append(mfma(cg, t, s, 0))
                M.append(('SLOT', dens(t)))
                if last and t < 15:
                    if (t+1) in go_steps: M.append(('GO',))
                    M.append(Wait(lgkm_all=True))
                    M.append(Wait(vm_tag=('C', t+1)))
                    M.append(I("s_barrier"))
                    if t < 4:
                        dma_x(M, t, ('C', t+4)); dma_w(M, 4+t, ('C', t+4))
                    elif t < 8:
                        q = 2*(t-4)
                        dma_w2(M, w2slot(q), ('C', 8+q)); dma_w2(M, w2slot(q+1), ('C', 8+q+1))
                    reads(M, cg, t+1, 0)
                M.append(mfma(cg, t, s, 1))
                if t < 8 and (ks & 1) == cg:
                    for e in range(4):
                        x = XF + 4*ks + e
                        M.append(I("v_dot2c_f32_bf16 v%d, s%d, v%d" % (vS[e & 1], sONES, x)))
                        M.append(I("v_dot2c_f32_bf16 v%d, v%d, v%d" % (vQ[e & 1], x, x)))
                lab[0] += 1
                b = WF + 8*(ks & 1)
                M.append(I("s_cmp_lg_u32 s%d, %d" % (sRG, s)))
                M.append(I("s_cbranch_scc1 L_cs%d" % lab[0]))
                for e in range(4):
                    for acc in range(2):
                        M.append(I("v_dot2c_f32_bf16 v%d, s%d, v%d" % (vC[acc], sONES, b+4*acc+e)))
                M.append(I("L_cs%d:" % lab[0]))
                M.append(('SLOT', dens(t)))
            if t == 7 or t == 15:
                M += colsum_write(cg, vSP if (t == 7 or cg == 1) else ACCA+15)
                for r in vC: M.append(I("v_mov_b32 v%d, 0" % r))
            if t == 7:
                M.append(I("v_add_f32 v%d, v%d, v%d" % (vS[0], vS[0], vS[1])))
                M.append(I("v_add_f32 v%d, v%d, v%d" % (vS[1], vQ[0], vQ[1])))
                M.append(I("v_lshl_add_u32 v%d, s%d, 5, v2" % (vSP, sRG)))
                M.append(I("v_lshlrev_b32 v%d, 5, v%d" % (vSP, vSP)))
                M.append(I("v_lshl_add_u32 v%d, v3, 3, v%d" % (vSP, vSP)))
                M.append(I("v_add_u32 v%d, %d, v%d" % (vSP, PST + cg*16, vSP)))
                M.append(I("ds_write_b64 v%d, v[%d:%d]" % (vSP, vS[0], vS[1])))
        return M

    T = TMP
    R0 = Stream()
    R0("v_lshlrev_b32 v65, 16, v65\nv_lshlrev_b32 v66, 16, v66\nv_lshlrev_b32 v67, 16, v67")
    R0("v_mul_f32 v68, 0x%x, v67\nv_exp_f32 v68, v68" % f2u(LOG2E))
    tmp = []; bf16r(tmp, 68, 69); R0.extend(tmp)
    R0("v_mul_f32 v69, v68, v65\nv_mul_f32 v70, v68, v66")
    R0("v_mul_f32 v69, 0x%x, v69\nv_exp_f32 v69, v69" % f2u(LOG2E))
    R0("v_mul_f32 v70, 0.15915494, v70\nv_fract_f32 v70, v70\nv_cos_f32 v71, v70\nv_sin_f32 v72, v70")
    R0("v_mul_f32 v%d, v69, v71\nv_mul_f32 v%d, v69, v72" % (vLr, vLi))
    R0("v_add_f32 v73, -1.0, v%d" % vLr)
    R0("v_mul_f32 v74, v65, v65\nv_fma_f32 v74, v66, v66, v74\nv_rcp_f32 v74, v74\nv_add_f32 v74, v74, v74")
    R0("v_mul_f32 v75, v73, v65\nv_fma_f32 v75, v%d, v66, v75\nv_mul_f32 v%d, v75, v74" % (vLi, vcr))
    R0("v_mul_f32 v75, v%d, v65\nv_fma_f32 v75, -v73, v66, v75\nv_mul_f32 v%d, v75, v74" % (vLi, vci))
    R0("v_mov_b32 v%d, v%d\nv_mov_b32 v%d, v%d" % (vL16r, vLr, vL16i, vLi))
    tmp = []
    for _ in range(4): csq(tmp, vL16r, vL16i, 76)
    tmp.append(I("v_mov_b32 v78, v%d" % vL16r)); tmp.append(I("v_mov_b32 v79, v%d" % vL16i)); csq(tmp, 78, 79, 76)
    tmp.append(I("v_mov_b32 v80, v78")); tmp.append(I("v_mov_b32 v81, v79")); csq(tmp, 80, 81, 76)
    cmul_into(tmp, 82, 83, 80, 81, 78, 79)
    tmp.append(I("v_mov_b32 v%d, v80" % vL128r)); tmp.append(I("v_mov_b32 v%d, v81" % vL128i)); csq(tmp, vL128r, vL128i, 76)
    R0.extend(tmp)
    R0("v_mov_b32 v84, 1.0\nv_mov_b32 v85, 0")
    for r, (a, b) in ((1, (78, 79)), (2, (80, 81)), (3, (82, 83))):
        R0("s_cmp_lg_u32 s%d, %d\ns_cbranch_scc1 L_p1_g%d\nv_mov_b32 v84, v%d\nv_mov_b32 v85, v%d\nL_p1_g%d:" % (sRG, r, r, a, b, r))
    tmp = []; cmul_into(tmp, 86, 87, 84, 85, vL16r, vL16i); R0.extend(tmp)
    R0("v_cmp_eq_u32 vcc, 1, v3")
    R0("v_cndmask_b32 v%d, v84, v86, vcc\nv_cndmask_b32 v%d, v85, v87, vcc" % (vFr, vFi))
    R0("s_lshl_b32 s%d, s%d, 1" % (sT0, sRG))
    for k in range(7):
        R0("s_cmp_gt_u32 s%d, %d\ns_cselect_b32 s%d, -1, 0\ns_cmp_ge_u32 s%d, %d\ns_cselect_b32 s%d, -1, 0" % (sT0, k, sMASK+2*k, sT0, k, sMASK+2*k+1))
    R0("s_cmp_eq_u32 s%d, 3\ns_mov_b32 s%d, 0\ns_cselect_b32 s%d, -1, 0\ns_cselect_b32 s%d, 1, 0\ns_mov_b32 s%d, 0" % (sRG, sAGM, sAGM+1, sFLM, sFLM+1))
    R0("s_lshl_b32 s%d, s4, 12\ns_add_u32 s%d, s%d, %d" % (sT0, sT0, sT0, WS_AG))
    srd(R0, SAG, 30, 4096, "s%d" % sT0)
    srd(R0, SDBG, 28, 256)
    R0("s_lshl_b32 s%d, s4, 2" % sJ4)
    R0("s_lshl_b32 s%d, 1, s3\ns_sub_u32 s%d, s%d, 1" % (sFMASK, sFMASK, sFMASK))
    F0 = []
    re = [vSP] + [ACCA + q for q in range(15)]
    im = [ACCA + 16 + q for q in range(16)]
    for q in range(16):
        ar = ACCA + q; ai = im[q]; wr = re[q]
        F0.append(I("v_mul_f32 v%d, v%d, v%d" % (wr, vcr, ar)))
        F0.append(I("v_fma_f32 v%d, -v%d, v%d, v%d" % (wr, vci, ai, wr)))
        F0.append(I("v_mul_f32 v%d, v%d, v%d" % (ai, vcr, ai)))
        F0.append(I("v_fma_f32 v%d, v%d, v%d, v%d" % (ai, vci, ar, ai)))
    FREE = ACCA + 15
    F0.append('STOP')
    F0 += stats_finalize(T, 0)
    cs = [T[1], T[2]]
    F0 += colsum_read(0, cs, T)
    cmul_into(F0, vdr, vdi, vcr, vci, cs[0], cs[1])
    F0.append(I("v_mul_f32 v17, v%d, v%d" % (vNM, vINV)))
    F0.append(I("v_mov_b32 v16, v%d" % vINV))
    F0.append(I("s_lshl_b32 s%d, s%d, 8" % (sT0, sRG)))
    F0.append(I("v_lshlrev_b32 v%d, 3, v4" % T[0]))
    F0.append(I("v_add_u32 v%d, s%d, v%d" % (T[0], sT0, T[0])))
    F0.append(I("v_add_u32 v%d, %d, v%d" % (T[0], FST, T[0])))
    F0.append(I("ds_write_b64 v%d, v[16:17]" % T[0]))
    F0.append(I("v_lshlrev_b32 v%d, 7, v3" % T[0]))
    F0.append(I("v_add_u32 v%d, s%d, v%d" % (T[0], sT0, T[0])))
    F0.append(I("v_add_u32 v%d, %d, v%d" % (T[0], FST, T[0])))
    sr = [T[1], T[3]]; si = [T[2], 13]; tq = [14, 15]
    for q2 in range(8):
        qd = 16 + 4*(q2 & 1)
        F0.append(I("ds_read_b128 v[%d:%d], v%d offset:%d" % (qd, qd+3, T[0], q2*16)))
        for k in range(2):
            q = 2*q2 + k
            a = qd + 2*k; b = a + 1
            F0.append(I("v_mul_f32 v%d, v%d, v%d" % (tq[0], b, vdr)))
            F0.append(I("v_mul_f32 v%d, v%d, v%d" % (tq[1], b, vdi)))
            F0.append(I("v_fma_f32 v%d, v%d, v%d, v%d" % (re[q], a, re[q], tq[0])))
            F0.append(I("v_fma_f32 v%d, v%d, v%d, v%d" % (im[q], a, im[q], tq[1])))
            if q == 0:
                F0.append(I("v_mov_b32 v%d, v%d" % (sr[0], re[0]))); F0.append(I("v_mov_b32 v%d, v%d" % (si[0], im[0])))
            else:
                o = (q-1) & 1; n = q & 1
                F0.append(I("v_fma_f32 v%d, v%d, v%d, v%d" % (sr[n], vLr, sr[o], re[q])))
                F0.append(I("v_fma_f32 v%d, v%d, v%d, v%d" % (si[n], vLr, si[o], im[q])))
                F0.append(I("v_fma_f32 v%d, -v%d, v%d, v%d" % (sr[n], vLi, si[o], sr[n])))
                F0.append(I("v_fma_f32 v%d, v%d, v%d, v%d" % (si[n], vLi, sr[o], si[n])))
    F0.append(I("v_mov_b32 v14, v%d" % sr[1])); F0.append(I("v_mov_b32 v15, v%d" % si[1]))
    F0.append(I("s_lshl_b32 s%d, s%d, 9" % (sT0, sRG)))
    F0.append(I("v_lshlrev_b32 v%d, 3, v2" % T[0]))
    F0.append(I("v_add_u32 v%d, %d, v%d" % (T[0], SEG, T[0])))
    F0.append(I("v_lshl_add_u32 v%d, v3, 8, v%d" % (T[1], T[0])))
    F0.append(I("v_add_u32 v%d, s%d, v%d" % (T[1], sT0, T[1])))
    F0.append(I("ds_write_b64 v%d, v[14:15]" % T[1]))
    F0.append('STOP')
    F0.append(I("v_mov_b32 v%d, 0" % vPr)); F0.append(I("v_mov_b32 v%d, 0" % vPi))
    for k2 in range(4):
        qd = 16 + 4*(k2 & 1)
        if k2 < 3: F0.append(I("ds_read2_b64 v[%d:%d], v%d offset0:%d offset1:%d" % (qd, qd+3, T[0], k2*64, k2*64+32)))
        else: F0.append(I("ds_read_b64 v[%d:%d], v%d offset:%d" % (qd, qd+1, T[0], 6*256)))
        for kk in range(2 if k2 < 3 else 1):
            k = 2*k2 + kk
            s_r = qd + 2*kk; s_i = s_r + 1
            g = [I("s_mov_b64 exec, s[%d:%d]" % (sMASK+2*k, sMASK+2*k+1)),
                 I("v_fma_f32 v%d, v%d, v%d, v%d" % (s_r, vL16r, vPr, s_r)),
                 I("v_fma_f32 v%d, v%d, v%d, v%d" % (s_i, vL16r, vPi, s_i)),
                 I("v_fma_f32 v%d, -v%d, v%d, v%d" % (s_r, vL16i, vPi, s_r)),
                 I("v_fma_f32 v%d, v%d, v%d, v%d" % (s_i, vL16i, vPr, s_i)),
                 I("v_mov_b32 v%d, v%d" % (vPr, s_r)),
                 I("v_mov_b32 v%d, v%d" % (vPi, s_i)),
                 I("s_mov_b64 exec, -1")]
            F0.append(g)
    F0.append(I("v_fma_f32 v14, v%d, v%d, v14" % (vL16r, vPr)))
    F0.append(I("v_fma_f32 v15, v%d, v%d, v15" % (vL16r, vPi)))
    F0.append(I("v_fma_f32 v14, -v%d, v%d, v14" % (vL16i, vPi)))
    F0.append(I("v_fma_f32 v15, v%d, v%d, v15" % (vL16i, vPr)))
    F0.append(I("s_lshl_b32 s%d, s3, 8" % sT0))
    F0.append(I("v_lshlrev_b32 v%d, 3, v2" % T[0]))
    F0.append([I("s_mov_b64 exec, s[%d:%d]" % (sAGM, sAGM+1)),
               I("buffer_store_dwordx2 v[14:15], v%d, s[%d:%d], s%d offen sc1" % (T[0], SAG, SAG+3, sT0), 'agg'),
               I("s_mov_b64 exec, -1")])
    F0.append(I("s_lshl_b32 s%d, 1, s3" % sT0))
    F0.append(I("v_mov_b32 v%d, s%d" % (T[1], sT0)))
    F0.append('STOP')
    F0.append([Wait(vm_tag='agg'),
               I("s_mov_b64 exec, s[%d:%d]" % (sFLM, sFLM+1)),
               I("buffer_atomic_or v%d, off, s[%d:%d], s%d sc1" % (T[1], SDBG, SDBG+3, sJ4), 'flag'),
               I("s_mov_b64 exec, -1")])
    main0 = role_main(0, lambda t: 0 if t < 8 else 8, {9, 12, 14})
    body0, left0 = interleave2(main0, F0)
    assert not left0, len(left0)
    TL = Stream()
    TL.add(Wait(lgkm_all=True)); TL("s_barrier")
    TL("s_mov_b32 s51, 200000")
    TL("L_p1_poll:")
    TL("buffer_load_dword v130, off, s[%d:%d], s%d sc1" % (SDBG, SDBG+3, sJ4))
    TL("s_waitcnt vmcnt(0)")
    TL("v_readfirstlane_b32 s%d, v130" % sT0)
    TL("s_and_b32 s%d, s%d, s%d\ns_cmp_eq_u32 s%d, s%d\ns_cbranch_scc1 L_p1_pollok\ns_sleep 2\ns_sub_u32 s51, s51, 1\ns_cmp_lg_u32 s51, 0\ns_cbranch_scc1 L_p1_poll\nL_p1_pollok:" % (sT0, sT0, sFMASK, sT0, sFMASK))
    TL("s_sub_u32 s%d, s3, 15\ns_lshl_b32 s%d, s%d, 8" % (sT0, sT0, sT0))
    TL("v_lshlrev_b32 v131, 3, v2\nv_add_u32 v131, s%d, v131" % sT0)
    for k in range(15):
        TL("buffer_load_dwordx2 v[%d:%d], v131, s[%d:%d], 0 offen sc1" % (132+2*k, 133+2*k, SAG, SAG+3))
        if k < 14: TL("v_add_u32 v131, 256, v131")
    TL.extend(flat(ffn_epilogue(ACCB, ACCB+16, 0, sUOFF2, T)))
    H = (164, 165)
    TL("v_mov_b32 v164, v132\nv_mov_b32 v165, v133")
    for k in range(1, 15):
        a, b = 132+2*k, 133+2*k
        TL("v_fma_f32 v%d, v%d, v164, v%d\nv_fma_f32 v%d, v%d, v165, v%d" % (a, vL128r, a, b, vL128r, b))
        TL("v_fma_f32 v164, -v%d, v165, v%d" % (vL128i, a) if False else "v_fma_f32 v%d, -v%d, v165, v%d" % (a, vL128i, a))
        TL("v_fma_f32 v165, v%d, v164, v%d" % (vL128i, b))
        TL("v_mov_b32 v164, v%d" % a)
    TL("v_fma_f32 v%d, v%d, v164, v%d\nv_fma_f32 v%d, v%d, v165, v%d" % (vPr, vFr, vPr, vPi, vFr, vPi))
    TL("v_fma_f32 v%d, -v%d, v165, v%d\nv_fma_f32 v%d, v%d, v164, v%d" % (vPr, vFi, vPr, vPi, vFi, vPi))
    pr, pi = vPr, vPi
    for q in range(16):
        TL("v_fma_f32 v%d, v%d, v%d, v%d\nv_fma_f32 v%d, v%d, v%d, v%d" % (re[q], vLr, pr, re[q], im[q], vLr, pi, im[q]))
        TL("v_fma_f32 v%d, -v%d, v%d, v%d\nv_fma_f32 v%d, v%d, v%d, v%d" % (re[q], vLi, pi, re[q], im[q], vLi, pr, im[q]))
        pr, pi = re[q], im[q]
    for q2 in range(8):
        TL("v_cvt_pk_bf16_f32 v%d, v%d, v%d" % (168+q2, re[2*q2], re[2*q2+1]))
        TL("v_cvt_pk_bf16_f32 v%d, v%d, v%d" % (176+q2, im[2*q2], im[2*q2+1]))
    TL("s_lshl_b32 s%d, s%d, 12" % (sT0, sRG))
    TL("v_lshlrev_b32 v184, 6, v2\nv_lshl_add_u32 v184, v3, 5, v184\nv_add_u32 v184, s%d, v184" % sT0)
    TL("ds_write_b128 v184, v[168:171]\nds_write_b128 v184, v[172:175] offset:16\nds_write_b128 v184, v[176:179] offset:2048\nds_write_b128 v184, v[180:183] offset:2064")
    TL("v_add_u32 v185, s%d, v%d" % (sT0, vT0))
    TL("v_lshlrev_b32 v186, 4, v2\nv_lshl_add_u32 v186, v3, 9, v186")
    TL("s_lshl_b32 s%d, s4, 12\ns_add_u32 s%d, s%d, %d" % (sT1, sT1, sT1, 86*1024))
    for part in range(2):
        for s in range(2):
            q = 188 + 4*(2*part+s)
            o = part*2048 + s*1024
            TL("ds_read_b64_tr_b16 v[%d:%d], v185 offset:%d" % (q, q+1, o))
            TL("ds_read_b64_tr_b16 v[%d:%d], v185 offset:%d" % (q+2, q+3, o+256))
    for part in range(2):
        for s in range(2):
            q = 188 + 4*(2*part+s)
            TL("buffer_store_dwordx4 v[%d:%d], v186, s[%d:%d], s%d offen offset:%d" % (q, q+3, SA, SA+3, sT1, (2*part+s)*1024))
    TL("s_branch L_p1_fin")
    role0 = finalize(Q.ins + R0.ins + body0 + TL.ins)

    F1 = ['STOP']
    F1 += stats_finalize(T, 1)
    F1 += ffn_epilogue(ACCA, ACCA+16, 1, sUOFF1, T)
    main1 = role_main(1, lambda t: 0 if t < 9 else 5, {9})
    body1, left1 = interleave2(main1, F1)
    assert not left1, len(left1)
    T1 = Stream()
    T1.add(Wait(lgkm_all=True)); T1("s_barrier")
    T1.extend(flat(ffn_epilogue(ACCB, ACCB+16, 1, sUOFF2, T)))
    pre1 = [x for x in Q.ins]
    r1full = finalize(pre1 + [I("L_p1_role1:")] + body1 + T1.ins)
    idx = [k for k, o in enumerate(r1full) if o.text == "L_p1_role1:"][0]
    role1 = r1full[idx:]
    F = Stream()
    F("L_p1_fin:")
    if stamp:
        F("s_waitcnt vmcnt(0)\ns_memrealtime s[8:9]\ns_memtime s[10:11]\ns_waitcnt lgkmcnt(0)")
        srd(F, 12, 30, 65536, 0x2000000)
        F("v_mov_b32 v8, s98\nv_mov_b32 v9, s100\nv_mov_b32 v10, s8\nv_mov_b32 v11, s10")
        F("s_lshl_b32 s16, s2, 3\ns_add_u32 s16, s16, s%d\ns_lshl_b32 s16, s16, 4\nv_mov_b32 v12, s16" % sW)
        F("v_cmp_eq_u32 vcc, 0, v1\ns_and_saveexec_b64 s[18:19], vcc")
        F("buffer_store_dwordx4 v[8:11], v12, s[12:15], 0 offen")
    F("L_p1_end:\ns_endpgm")
    fin = finalize(F.ins)
    return kernel_text(name, render(pro) + render(role0) + render(role1) + render(fin), 256, 102)
```

```python
from common import *
def gen_p2(name, D=8, NIT=5, stamp=False):
    S = Stream()
    ACC = 64; BUF = 128
    S("s_cmp_ge_u32 s2, 256\ns_cbranch_scc1 L_p2_end")
    if stamp: S("s_memrealtime s[60:61]\ns_memtime s[62:63]")
    S("s_load_dwordx2 s[4:5], s[0:1], %d\ns_load_dwordx2 s[6:7], s[0:1], %d\ns_load_dwordx2 s[8:9], s[0:1], %d\ns_load_dwordx2 s[10:11], s[0:1], %d" % (K_X, K_DSK, K_OUT, K_WS))
    S("s_and_b32 s12, s2, 7\ns_lshl_b32 s12, s12, 2\ns_lshr_b32 s13, s2, 6\ns_add_u32 s12, s12, s13")
    S("s_bfe_u32 s13, s2, 0x30003")
    S("v_and_b32 v1, 63, v0")
    S("v_lshrrev_b32 v2, 6, v0")
    S("v_lshlrev_b32 v3, 4, v1")
    S("v_lshl_add_u32 v3, v2, 10, v3")
    S("s_mul_i32 s14, s12, %d" % (2*RG_BYTES))
    S("s_mul_i32 s15, s13, %d" % (2*RG_BYTES))
    S("s_add_u32 s15, s15, %d" % WS_W2)
    S("s_waitcnt lgkmcnt(0)")
    srd(S, 16, 10, RG_BYTES, "s14")
    S("s_add_u32 s14, s14, %d" % RG_BYTES)
    srd(S, 20, 10, RG_BYTES, "s14")
    srd(S, 24, 10, RG_BYTES, "s15")
    S("s_add_u32 s15, s15, %d" % RG_BYTES)
    srd(S, 28, 10, RG_BYTES, "s15")
    srd(S, 32, 4, 2048*1024)
    srd(S, 36, 6, 1024)
    srd(S, 40, 8, 2048*2048)
    srd(S, 44, 10, 2048*8, WS_ST)
    S("v_lshrrev_b32 v4, 4, v1")
    S("v_lshl_add_u32 v4, v2, 4, v4")
    S("v_and_b32 v5, 15, v1")
    S("s_lshl_b32 s48, s12, 6")
    S("v_add_u32 v6, s48, v4")
    S("s_lshl_b32 s49, s13, 7")
    S("v_lshlrev_b32 v7, 10, v6\nv_lshl_add_u32 v7, v5, 3, v7\nv_add_u32 v7, s49, v7")
    S("v_lshlrev_b32 v8, 3, v6")
    S("v_lshlrev_b32 v9, 3, v5\nv_add_u32 v9, s49, v9")
    def loads(b, soff):
        r = BUF + 16*b
        S("buffer_load_dwordx4 v[%d:%d], v3, s[24:27], %s offen" % (r, r+3, soff))
        S("buffer_load_dwordx4 v[%d:%d], v3, s[16:19], %s offen" % (r+4, r+7, soff))
        S("buffer_load_dwordx4 v[%d:%d], v3, s[28:31], %s offen" % (r+8, r+11, soff))
        S("buffer_load_dwordx4 v[%d:%d], v3, s[20:23], %s offen" % (r+12, r+15, soff))
    XR = 10; SR = 18; DR = 26
    for i in range(4):
        S("buffer_load_dwordx2 v[%d:%d], v7, s[32:35], s%d offen" % (XR+2*i, XR+2*i+1, 50+i) if False else "s_nop 0") if False else None
    S("s_mov_b32 s50, 0\ns_mov_b32 s51, 4096\ns_mov_b32 s52, 8192\ns_mov_b32 s53, 12288")
    for i in range(4):
        S("buffer_load_dwordx2 v[%d:%d], v7, s[32:35], s%d offen" % (XR+2*i, XR+2*i+1, 50+i))
    for i in range(4):
        S("buffer_load_dwordx2 v[%d:%d], v8, s[44:47], 0 offen offset:%d" % (SR+2*i, SR+2*i+1, 32*i))
    S("buffer_load_dwordx2 v[%d:%d], v9, s[36:39], 0 offen" % (DR, DR+1))
    S("s_mov_b32 s54, 0")
    for b in range(D):
        loads(b, "s54"); S("s_add_u32 s54, s54, 4096")
    for i in range(64): S("v_mov_b32 v%d, 0" % (ACC+i))
    S("s_mov_b32 s55, %d" % NIT)
    if stamp: S("s_memrealtime s[64:65]\ns_memtime s[66:67]\ns_waitcnt lgkmcnt(0)")
    pre = finalize(S.ins)
    L = Stream()
    L("L_p2_loop:")
    for b in range(D):
        r = BUF + 16*b
        L("s_waitcnt vmcnt(%d)" % (4*(D-1)))
        for a in range(2):
            for bb in range(2):
                acc = ACC + (a*2+bb)*16
                L("v_mfma_f32_32x32x16_bf16 v[%d:%d], v[%d:%d], v[%d:%d], v[%d:%d]" % (acc, acc+15, r+8*a, r+8*a+3, r+4+8*bb, r+4+8*bb+3, acc, acc+15))
        S2 = L
        L("buffer_load_dwordx4 v[%d:%d], v3, s[24:27], s54 offen" % (r, r+3))
        L("buffer_load_dwordx4 v[%d:%d], v3, s[16:19], s54 offen" % (r+4, r+7))
        L("buffer_load_dwordx4 v[%d:%d], v3, s[28:31], s54 offen" % (r+8, r+11))
        L("buffer_load_dwordx4 v[%d:%d], v3, s[20:23], s54 offen" % (r+12, r+15))
        L("s_add_u32 s54, s54, 4096")
    L("s_sub_u32 s55, s55, 1\ns_cmp_lg_u32 s55, 0\ns_cbranch_scc1 L_p2_loop")
    loop = L.ins
    E = Stream()
    if stamp: E("s_memrealtime s[68:69]\ns_memtime s[70:71]")
    E("s_waitcnt vmcnt(0)")
    E("v_and_b32 v28, 31, v1")
    E("v_lshrrev_b32 v29, 5, v1")
    E("v_and_b32 v30, 15, v1")
    E("v_xor_b32 v30, v30, v29")
    E("v_lshlrev_b32 v30, 4, v30")
    E("v_lshlrev_b32 v31, 8, v28")
    E("v_lshl_add_u32 v31, v2, 14, v31")
    E("s_nop 7")
    for a in range(2):
        for g in range(4):
            E("v_xor_b32 v32, %d, v30" % ((8*a+2*g) << 4))
            E("v_add_u32 v%d, v31, v32" % (34 + a*4 + g))
    for a in range(2):
        for bb in range(2):
            acc = ACC + (a*2+bb)*16
            for g in range(4):
                E("ds_write_b128 v%d, v[%d:%d] offset:%d" % (34+a*4+g, acc+4*g, acc+4*g+3, bb*8192))
    E.add(Wait(lgkm_all=True))
    E("s_barrier")
    for i in range(4):
        E("v_add_u32 v42, %d, v4" % (4*i))
        E("v_and_b32 v43, 15, v42")
        E("v_xor_b32 v43, v43, v5")
        E("v_lshlrev_b32 v43, 4, v43")
        E("v_lshl_add_u32 v%d, v42, 8, v43" % (44+i))
    for i in range(4):
        for pw in range(4):
            r = BUF + (i*4+pw)*4
            E("ds_read_b128 v[%d:%d], v%d offset:%d" % (r, r+3, 44+i, pw*16384))
    E("s_lshl_b32 s49, s13, 8")
    E("v_lshlrev_b32 v48, 11, v6\nv_lshl_add_u32 v48, v5, 4, v48\nv_add_u32 v48, s49, v48")
    E("s_mov_b32 s50, 0\ns_mov_b32 s51, 8192\ns_mov_b32 s52, 16384\ns_mov_b32 s53, 24576")
    E("v_lshlrev_b32 v50, 16, v%d\nv_and_b32 v51, 0xffff0000, v%d\nv_lshlrev_b32 v52, 16, v%d\nv_and_b32 v53, 0xffff0000, v%d" % (DR, DR, DR+1, DR+1))
    for i in range(4):
        r = BUF + i*16
        x0 = XR+2*i; mean = SR+2*i; inv = SR+2*i+1
        T = 64 + i*16
        E("v_lshlrev_b32 v%d, 16, v%d\nv_and_b32 v%d, 0xffff0000, v%d\nv_lshlrev_b32 v%d, 16, v%d\nv_and_b32 v%d, 0xffff0000, v%d" % (T, x0, T+1, x0, T+2, x0+1, T+3, x0+1))
        for e in range(4): E("v_sub_f32 v%d, v%d, v%d" % (T+4+e, T+e, mean))
        def rnd(a, b, tmp):
            E("v_cvt_pk_bf16_f32 v%d, v%d, v%d" % (tmp, a, b))
            E("v_lshlrev_b32 v%d, 16, v%d\nv_and_b32 v%d, 0xffff0000, v%d" % (a, tmp, b, tmp))
        rnd(T+4, T+5, T+8); rnd(T+6, T+7, T+9)
        for e in range(4): E("v_mul_f32 v%d, v%d, v%d" % (T+4+e, T+4+e, inv))
        rnd(T+4, T+5, T+8); rnd(T+6, T+7, T+9)
        for e in range(4): E("v_mul_f32 v%d, v%d, v%d" % (T+4+e, T+4+e, 50+e))
        rnd(T+4, T+5, T+8); rnd(T+6, T+7, T+9)
        for e in range(4):
            E("v_add_f32 v%d, v%d, v%d" % (r+e, r+e, r+4+e))
            E("v_add_f32 v%d, v%d, v%d" % (r+8+e, r+8+e, r+12+e))
        for e in range(4):
            E("v_add_f32 v%d, v%d, v%d" % (r+e, r+e, r+8+e))
            E("v_add_f32 v%d, v%d, v%d" % (r+e, r+e, T+4+e))
            E("v_add_f32 v%d, v%d, v%d" % (r+e, r+e, T+e))
        E("buffer_store_dwordx4 v[%d:%d], v48, s[40:43], s%d offen" % (r, r+3, 50+i))
    if stamp:
        E("s_waitcnt vmcnt(0)\ns_memrealtime s[72:73]\ns_memtime s[74:75]\ns_waitcnt lgkmcnt(0)")
        srd(E, 76, 10, 65536, 0x2000000)
        for k in range(8): E("v_mov_b32 v%d, s%d" % (64+k, 60+2*k))
        E("s_lshl_b32 s80, s2, 5\nv_mov_b32 v72, s80")
        E("v_cmp_eq_u32 vcc, 0, v0\ns_and_saveexec_b64 s[82:83], vcc\ns_cbranch_execz L_p2_end")
        E("buffer_store_dwordx4 v[64:67], v72, s[76:79], 0 offen\nbuffer_store_dwordx4 v[68:71], v72, s[76:79], 0 offen offset:16")
    E("L_p2_end:")
    E("s_endpgm")
    epi = finalize(E.ins)
    return kernel_text(name, render(pre) + render(loop) + render(epi), 256, 96)
```

```python
from common import *
from k0 import gen_k0
from p1 import gen_p1
from p2 import gen_p2
import sys
o = header_comments()
o.append("; @launch kernel=k0_kernel grid=(150,4,1) block=(256,1,1) lds=0")
o.append("; @launch kernel=p1_kernel grid=(256,1,1) block=(512,1,1) lds=163840")
o.append("; @launch kernel=p2_kernel grid=(256,1,1) block=(256,1,1) lds=65536")
o += ['.amdgcn_target "amdgcn-amd-amdhsa--gfx950"', ".text"]
t = "\n".join(o) + "\n" + gen_k0("k0_kernel") + gen_p1("p1_kernel") + gen_p2("p2_kernel")
open("t2.s", "w").write(t)
```

```python
from common import *
import struct
def f2u(x): return struct.unpack('<I', struct.pack('<f', x))[0]
LOG2E = 1.4426950408889634
GC0 = -2.0 * LOG2E * 0.7978845608028654
GC1 = GC0 * 0.044715

M0 = 131072
PST = M0; FST = M0 + 4096; CSP = M0 + 5120; CSF = M0 + 9216; SEG = M0 + 11264
XF = 128; ACCA = 64; ACCB = 96; WF = 48
vX0, vX1, vW0, vW1, vW2, vW3, vT0, vT1 = 5, 6, 7, 8, 9, 10, 11, 12
vXA = [13, 14, 15, 16]; vBA = [17, 18, 19, 20]
vS = [22, 23]; vQ = [24, 21]; vC = [25, 26]
vNM, vINV, vSS, vAO, vG0, vG1 = 27, 28, 29, 30, 31, 32
vLr, vLi, vL16r, vL16i, vL128r, vL128i, vcr, vci, vFr, vFi, vPr, vPi, vdr, vdi = range(33, 47)
vSP = 47
TMP = [5, 6, 7, 8] + list(range(13, 25))
sM, sJ, sW, sRG, sCG = 3, 4, 5, 6, 7
SX, SW1, SW2, SA, SAG, SDBG, SST, SP = 32, 36, 40, 44, 52, 56, 60, 64
sXOFF, sWOFF, sWSTR, sW2OFF, sLDSW, sUA, sUP2, sUOFF1, sUOFF2, sONES, sT0, sT1, sFMASK, sJ4 = 68, 69, 70, 71, 72, 73, 74, 75, 76, 77, 78, 79, 48, 49
sMASK = 80
sAGM = 94; sFLM = 96

def I(text, tag=None): return Ins(text, tag)

def bf16r(lst, x, t):
    lst.append(I("v_cvt_pk_bf16_f32 v%d, v%d, v%d" % (t, x, x)))
    lst.append(I("v_lshlrev_b32 v%d, 16, v%d" % (x, t)))

def cmul_into(lst, dr, di, ar, ai, br, bi):
    lst.append(I("v_mul_f32 v%d, v%d, v%d" % (dr, ar, br)))
    lst.append(I("v_mul_f32 v%d, v%d, v%d" % (di, ar, bi)))
    lst.append(I("v_fma_f32 v%d, -v%d, v%d, v%d" % (dr, ai, bi, dr)))
    lst.append(I("v_fma_f32 v%d, v%d, v%d, v%d" % (di, ai, br, di)))

def csq(lst, r, i, t):
    lst.append(I("v_mul_f32 v%d, v%d, v%d" % (t, i, i)))
    lst.append(I("v_mul_f32 v%d, v%d, v%d" % (i, r, i)))
    lst.append(I("v_fma_f32 v%d, v%d, v%d, -v%d" % (r, r, r, t)))
    lst.append(I("v_add_f32 v%d, v%d, v%d" % (i, i, i)))

def stats_finalize(T, cg):
    L = []
    a = T[0]
    L.append(I("v_lshl_add_u32 v%d, s%d, 5, v2" % (a, sRG)))
    L.append(I("v_lshlrev_b32 v%d, 5, v%d" % (a, a)))
    L.append(I("v_add_u32 v%d, %d, v%d" % (a, PST, a)))
    q0, q1 = 16, 20
    L.append(I("ds_read_b128 v[%d:%d], v%d" % (q0, q0+3, a)))
    L.append(I("ds_read_b128 v[%d:%d], v%d offset:16" % (q1, q1+3, a)))
    L.append(I("v_add_f32 v%d, v%d, v%d" % (q0, q0, q0+2)))
    L.append(I("v_add_f32 v%d, v%d, v%d" % (q0+1, q0+1, q0+3)))
    L.append(I("v_add_f32 v%d, v%d, v%d" % (q1, q1, q1+2)))
    L.append(I("v_add_f32 v%d, v%d, v%d" % (q1+1, q1+1, q1+3)))
    L.append(I("v_add_f32 v%d, v%d, v%d" % (q0, q0, q1)))
    L.append(I("v_add_f32 v%d, v%d, v%d" % (q0+1, q0+1, q1+1)))
    mean, ex2, t = q0, q0+1, q0+2
    L.append(I("v_mul_f32 v%d, 0x%x, v%d" % (mean, f2u(1/512.), mean)))
    L.append(I("v_mul_f32 v%d, 0x%x, v%d" % (ex2, f2u(1/512.), ex2)))
    L.append(I("v_fma_f32 v%d, -v%d, v%d, v%d" % (ex2, mean, mean, ex2)))
    L.append(I("v_max_f32 v%d, 0, v%d" % (ex2, ex2)))
    bf16r(L, mean, t); bf16r(L, ex2, t)
    L.append(I("v_add_f32 v%d, 0x%x, v%d" % (ex2, f2u(1e-5), ex2)))
    bf16r(L, ex2, t)
    L.append(I("v_sqrt_f32 v%d, v%d" % (ex2, ex2)))
    bf16r(L, ex2, t)
    L.append(I("v_mov_b32 v%d, v%d" % (vSS, ex2)))
    L.append(I("v_rcp_f32 v%d, v%d" % (vINV, ex2)))
    L.append(I("v_sub_f32 v%d, 0, v%d" % (vNM, mean)))
    if cg == 1:
        L.append(I("s_lshl_b32 s%d, s%d, 7" % (sT0, sM)))
        L.append(I("s_lshl_b32 s%d, s%d, 5" % (sT1, sRG)))
        L.append(I("s_add_u32 s%d, s%d, s%d" % (sT0, sT0, sT1)))
        L.append(I("v_add_lshl_u32 v%d, v4, s%d, 3" % (a, sT0)))
        L.append(I("v_mov_b32 v%d, v%d" % (q1, mean)))
        L.append(I("v_mov_b32 v%d, v%d" % (q1+1, vINV)))
        L.append(I("buffer_store_dwordx2 v[%d:%d], v%d, s[%d:%d], 0 offen" % (q1, q1+1, a, SST, SST+3)))
    return L

def colsum_write(cg, vt):
    L = []
    L.append(I("s_lshl_b32 s50, s%d, 3" % sRG))
    L.append(I("v_lshlrev_b32 v%d, 5, v2" % vt))
    L.append(I("v_lshl_add_u32 v%d, v3, 2, v%d" % (vt, vt)))
    L.append(I("v_add_u32 v%d, s50, v%d" % (vt, vt)))
    L.append(I("v_add_u32 v%d, %d, v%d" % (vt, CSP + cg*2048, vt)))
    L.append(I("ds_write_b32 v%d, v%d" % (vt, vC[0])))
    L.append(I("ds_write_b32 v%d, v%d offset:1024" % (vt, vC[1])))
    return L

def colsum_read(cg, dst, T):
    L = []
    a = T[0]
    L.append(I("v_lshlrev_b32 v%d, 5, v2" % a))
    L.append(I("v_add_u32 v%d, %d, v%d" % (a, CSP + cg*2048, a)))
    for acc in range(2):
        q0, q1 = 16, 20
        L.append(I("ds_read_b128 v[%d:%d], v%d offset:%d" % (q0, q0+3, a, acc*1024)))
        L.append(I("ds_read_b128 v[%d:%d], v%d offset:%d" % (q1, q1+3, a, acc*1024+16)))
        for e in range(4): L.append(I("v_add_f32 v%d, v%d, v%d" % (q0+e, q0+e, q1+e)))
        L.append(I("v_add_f32 v%d, v%d, v%d" % (q0, q0, q0+1)))
        L.append(I("v_add_f32 v%d, v%d, v%d" % (q0+2, q0+2, q0+3)))
        L.append(I("v_add_f32 v%d, v%d, v%d" % (dst[acc], q0, q0+2)))
    return L

def ffn_epilogue(accG, accU, cg, suoff, T, wide=False):
    L = []
    cs = [T[1], T[2]]
    L += colsum_read(cg, cs, T)
    a = T[0]
    L.append(I("s_lshl_b32 s%d, s%d, 8" % (sT0, sW)))
    L.append(I("v_lshlrev_b32 v%d, 2, v2" % a))
    L.append(I("v_add_u32 v%d, s%d, v%d" % (a, sT0, a)))
    L.append(I("v_add_u32 v%d, %d, v%d" % (a, CSF, a)))
    L.append(I("ds_write_b32 v%d, v%d" % (a, cs[0])))
    L.append(I("ds_write_b32 v%d, v%d offset:128" % (a, cs[1])))
    L.append(I("v_lshlrev_b32 v%d, 4, v3" % a))
    L.append(I("v_add_u32 v%d, s%d, v%d" % (a, sT0, a)))
    L.append(I("v_add_u32 v%d, %d, v%d" % (a, CSF, a)))
    cG, cU = 16, 20
    tt = [T[1], T[2], T[3], 13]
    pk = 14
    for g in range(4):
        L.append(I("ds_read_b128 v[%d:%d], v%d offset:%d" % (cG, cG+3, a, g*32)))
        L.append(I("ds_read_b128 v[%d:%d], v%d offset:%d" % (cU, cU+3, a, 128 + g*32)))
        R = [4*g + jj for jj in range(4)]
        for jj, r in enumerate(R): L.append(I("v_fma_f32 v%d, v%d, v%d, v%d" % (accG+r, vNM, cG+jj, accG+r)))
        for jj, r in enumerate(R): L.append(I("v_fma_f32 v%d, v%d, v%d, v%d" % (accU+r, vNM, cU+jj, accU+r)))
        for jj, r in enumerate(R): L.append(I("v_mul_f32 v%d, v%d, v%d" % (accG+r, accG+r, vINV)))
        for jj, r in enumerate(R): L.append(I("v_mul_f32 v%d, v%d, v%d" % (tt[jj], accG+r, accG+r)))
        for jj, r in enumerate(R): L.append(I("v_fma_f32 v%d, v%d, v%d, v%d" % (tt[jj], tt[jj], vG1, vG0)))
        for jj, r in enumerate(R): L.append(I("v_mul_f32 v%d, v%d, v%d" % (tt[jj], tt[jj], accG+r)))
        for jj, r in enumerate(R): L.append(I("v_exp_f32 v%d, v%d" % (tt[jj], tt[jj])))
        for jj, r in enumerate(R): L.append(I("v_mul_f32 v%d, v%d, v%d" % (accU+r, accU+r, accG+r)))
        for jj, r in enumerate(R): L.append(I("v_fma_f32 v%d, v%d, v%d, v%d" % (tt[jj], tt[jj], vSS, vSS)))
        for jj, r in enumerate(R): L.append(I("v_rcp_f32 v%d, v%d" % (tt[jj], tt[jj])))
        for jj, r in enumerate(R): L.append(I("v_mul_f32 v%d, v%d, v%d" % (accU+r, accU+r, tt[jj])))
        base = accG + 8*(g >> 1) + 2*(g & 1)
        if g & 1 == 0:
            L.append(I("v_cvt_pk_bf16_f32 v%d, v%d, v%d" % (base, accU+4*g, accU+4*g+1)))
            L.append(I("v_cvt_pk_bf16_f32 v%d, v%d, v%d" % (base+1, accU+4*g+2, accU+4*g+3)))
        else:
            L.append(I("v_cvt_pk_bf16_f32 v%d, v%d, v%d" % (base, accU+4*g, accU+4*g+1)))
            L.append(I("v_cvt_pk_bf16_f32 v%d, v%d, v%d" % (base+1, accU+4*g+2, accU+4*g+3)))
            q = accG + 8*(g >> 1)
            L.append(I("buffer_store_dwordx4 v[%d:%d], v%d, s[%d:%d], s%d offen offset:%d" % (q, q+3, vAO, SA, SA+3, suoff, 1024*(g >> 1))))
    return L

def gen_p1(name, stamp=False):
    P = Stream()
    P("s_cmp_ge_u32 s2, 256\ns_cbranch_scc1 L_p1_end")
    if stamp: P("s_memrealtime s[98:99]\ns_memtime s[100:101]")
    def ST(k): return [I("s_memtime s[%d:%d]" % (8+2*k, 9+2*k))] if stamp else []
    P("s_load_dwordx16 s[8:23], s[0:1], 0\ns_load_dwordx4 s[24:27], s[0:1], 80\ns_load_dwordx4 s[28:31], s[0:1], 112")
    P("v_lshrrev_b32 v1, 6, v0")
    P("v_and_b32 v2, 31, v0")
    P("v_readfirstlane_b32 s%d, v1" % sW)
    P("v_and_b32 v1, 63, v0")
    P("v_bfe_u32 v3, v0, 5, 1")
    P("s_and_b32 s3, s2, 1\ns_lshl_b32 s3, s3, 3\ns_bfe_u32 s%d, s2, 0x30003\ns_add_u32 s3, s3, s%d" % (sT0, sT0))
    P("s_bfe_u32 s4, s2, 0x20001\ns_lshl_b32 s4, s4, 2\ns_lshr_b32 s%d, s2, 6\ns_add_u32 s4, s4, s%d" % (sT0, sT0))
    P("s_and_b32 s%d, s%d, 3\ns_lshr_b32 s%d, s%d, 2" % (sRG, sW, sCG, sW))
    P("v_bfe_u32 v4, v2, 2, 1\nv_lshlrev_b32 v4, 4, v4\nv_lshrrev_b32 v47, 3, v2\nv_lshl_add_u32 v4, v47, 2, v4\nv_and_b32 v47, 3, v2\nv_add_u32 v4, v4, v47")
    P("v_and_b32 v46, 7, v1\nv_lshrrev_b32 v45, 4, v1\nv_xor_b32 v46, v46, v45\nv_lshlrev_b32 v46, 4, v46")
    P("v_lshrrev_b32 v45, 3, v1")
    P("v_lshl_add_u32 v44, v45, 10, v46")
    P("s_lshl_b32 s%d, s3, 17\ns_lshl_b32 s%d, s%d, 14\ns_add_u32 s%d, s%d, s%d" % (sT0, sT1, sW, sT0, sT0, sT1))
    P("v_add_u32 v%d, s%d, v44" % (vX0, sT0))
    P("v_xor_b32 v%d, 64, v%d\nv_add_u32 v%d, 8192, v%d" % (vX1, vX0, vX1, vX1))
    P("s_mul_i32 s%d, s4, 3" % sUA)
    P("s_add_u32 s%d, s%d, 1" % (sT0, sUA))
    P("s_add_u32 s%d, s%d, 2" % (sT1, sUA))
    P("s_lshl_b32 s%d, s%d, 11" % (sUOFF2, sT0))
    P("s_cmp_lt_u32 s4, 11\ns_cbranch_scc1 L_p1_u")
    P("s_lshl_b32 s%d, s4, 1\ns_add_u32 s%d, s%d, 11" % (sUA, sUA, sUA))
    P("s_add_u32 s%d, s%d, 1\ns_mov_b32 s%d, s%d\ns_mov_b32 s%d, 0x10000000" % (sT1, sUA, sT0, sT1, sUOFF2))
    P("L_p1_u:")
    P("s_lshl_b32 s%d, s%d, 11" % (sUOFF1, sUA))
    P("s_cmp_eq_u32 s%d, 0\ns_cbranch_scc1 L_p1_u2\ns_lshl_b32 s%d, s%d, 11\nL_p1_u2:" % (sCG, sUOFF2, sT1))
    P("s_cmp_lt_u32 s%d, 4\ns_cselect_b32 s%d, s%d, s%d" % (sW, sUP2, sT0, sT1))
    P("s_and_b32 s%d, s%d, 1\ns_lshl_b32 s%d, s%d, 5" % (sT0, sW, sT0, sT0))
    P("v_lshrrev_b32 v43, 2, v1\nv_add_u32 v43, s%d, v43" % sT0)
    P("s_movk_i32 s%d, 2752\nv_mul_lo_u32 v43, v43, s%d" % (sT1, sT1))
    P("v_and_b32 v42, 3, v1\nv_lshl_add_u32 v43, v42, 4, v43")
    P("s_lshl_b32 s%d, s%d, 6\nv_add_u32 v%d, s%d, v43\nv_add_u32 v%d, %d, v%d" % (sT0, sUP2, vW2, sT0, vW3, 16*2752, vW2))
    P("s_waitcnt lgkmcnt(0)")
    srd(P, SX, 8, 2048*1024)
    P("s_cmp_lt_u32 s%d, 4\ns_cbranch_scc0 L_p1_wffn" % sW)
    P("s_cmp_lt_u32 s%d, 2\ns_cselect_b32 s%d, s14, s16\ns_cselect_b32 s%d, s15, s17" % (sW, SW1, SW1+1))
    P("s_mov_b32 s%d, %d\ns_movk_i32 s%d, 128" % (SW1+2, 512*1024, sWSTR))
    P("s_lshl_b32 s%d, s4, 15\ns_and_b32 s%d, s%d, 1\ns_lshl_b32 s%d, s%d, 14\ns_add_u32 s%d, s%d, s%d" % (sT0, sT1, sW, sT1, sT1, sT0, sT0, sT1))
    P("v_add_u32 v%d, s%d, v44\nv_xor_b32 v%d, 64, v%d\nv_add_u32 v%d, 8192, v%d" % (vW0, sT0, vW1, vW0, vW1, vW1))
    P("s_branch L_p1_wdone")
    P("L_p1_wffn:")
    P("s_cmp_lt_u32 s%d, 6\ns_cselect_b32 s%d, s24, s26\ns_cselect_b32 s%d, s25, s27" % (sW, SW1, SW1+1))
    P("s_mov_b32 s%d, %d\ns_mov_b32 s%d, %d" % (SW1+2, 512*2752, sWSTR, 64*2752))
    P("s_lshl_b32 s%d, s%d, 6\nv_add_u32 v%d, s%d, v43\nv_add_u32 v%d, %d, v%d" % (sT0, sUA, vW0, sT0, vW1, 16*2752, vW0))
    P("L_p1_wdone:")
    P("s_mov_b32 s%d, 0x20000" % (SW1+3))
    P("s_bitcmp1_b32 s%d, 1\ns_cselect_b32 s%d, s26, s24\ns_cselect_b32 s%d, s27, s25" % (sW, SW2, SW2+1))
    P("s_mov_b32 s%d, %d\ns_mov_b32 s%d, 0x20000" % (SW2+2, 512*2752, SW2+3))
    P("s_mov_b32 s%d, 0\ns_mov_b32 s%d, 0\ns_mov_b32 s%d, 0\ns_lshl_b32 s%d, s%d, 11" % (sXOFF, sWOFF, sW2OFF, sLDSW, sW))
    pro = finalize(P.ins)

    def dma_x(lst, slot, tag):
        for i, vr in enumerate((vX0, vX1)):
            lst.append(I("s_add_u32 m0, s%d, %d" % (sLDSW, slot*16384 + i*1024)))
            lst.append(I("buffer_load_dwordx4 v%d, s[%d:%d], s%d offen lds" % (vr, SX, SX+3, sXOFF), tag))
        lst.append(I("s_add_u32 s%d, s%d, 128" % (sXOFF, sXOFF)))
    def dma_w(lst, slot, tag):
        for i, vr in enumerate((vW0, vW1)):
            lst.append(I("s_add_u32 m0, s%d, %d" % (sLDSW, slot*16384 + i*1024)))
            lst.append(I("buffer_load_dwordx4 v%d, s[%d:%d], s%d offen lds" % (vr, SW1, SW1+3, sWOFF), tag))
        lst.append(I("s_add_u32 s%d, s%d, s%d" % (sWOFF, sWOFF, sWSTR)))
    def dma_w2(lst, slot, tag):
        for i, vr in enumerate((vW2, vW3)):
            lst.append(I("s_add_u32 m0, s%d, %d" % (sLDSW, slot*16384 + i*1024)))
            lst.append(I("buffer_load_dwordx4 v%d, s[%d:%d], s%d offen lds" % (vr, SW2, SW2+3, sW2OFF), tag))
        lst.append(I("s_add_u32 s%d, s%d, %d" % (sW2OFF, sW2OFF, 64*2752)))
    def w2slot(q): return q//2 if q % 2 == 0 else 4 + (q-1)//2

    Q = Stream()
    Q("s_lshl_b32 s%d, s4, 6\nv_lshl_add_u32 v64, v2, 1, s%d" % (sT0, sT0))
    srd(Q, SP, 10, 1024); Q("buffer_load_ushort v65, v64, s[%d:%d], 0 offen" % (SP, SP+3))
    srd(Q, SAG, 12, 1024); Q("buffer_load_ushort v66, v64, s[%d:%d], 0 offen" % (SAG, SAG+3))
    srd(Q, SDBG, 22, 1024); Q("buffer_load_ushort v67, v64, s[%d:%d], 0 offen" % (SDBG, SDBG+3))
    C = Q.ins
    for t in range(4):
        dma_x(C, t, ('C', t)); dma_w(C, 4+t, ('C', t))
    Q("v_bfe_u32 v46, v4, 1, 3")
    Q("s_lshl_b32 s%d, s%d, 12" % (sT0, sRG))
    Q("v_lshlrev_b32 v45, 7, v4\nv_add_u32 v45, s%d, v45" % sT0)
    for s in range(4):
        Q("v_or_b32 v44, %d, v3\nv_xor_b32 v44, v44, v46\nv_lshl_add_u32 v%d, v44, 4, v45" % (2*s, vXA[s]))
    Q("v_bfe_u32 v46, v2, 1, 3\nv_lshlrev_b32 v45, 7, v2\nv_add_u32 v45, 65536, v45")
    for s in range(4):
        Q("v_or_b32 v44, %d, v3\nv_xor_b32 v44, v44, v46\nv_lshl_add_u32 v%d, v44, 4, v45" % (2*s, vBA[s]))
    Q("v_bfe_u32 v44, v1, 2, 2\nv_lshl_add_u32 v44, v3, 3, v44\nv_lshlrev_b32 v44, 6, v44")
    Q("v_bfe_u32 v45, v1, 4, 1\nv_lshl_add_u32 v44, v45, 5, v44\nv_and_b32 v45, 3, v1\nv_lshl_add_u32 v44, v45, 3, v44")
    Q("s_lshl_b32 s%d, s%d, 13\nv_add_u32 v%d, s%d, v44\nv_add_u32 v%d, 65536, v%d" % (sT0, sCG, vT0, sT0, vT1, vT0))
    Q("v_lshlrev_b32 v%d, 4, v4\nv_lshl_add_u32 v%d, v3, 9, v%d" % (vAO, vAO, vAO))
    Q("v_mov_b32 v%d, 0x%x\nv_mov_b32 v%d, 0x%x" % (vG0, f2u(GC0), vG1, f2u(GC1)))
    Q("s_mov_b32 s%d, 0x3f803f80" % sONES)
    for r in vS + vQ + vC: Q("v_mov_b32 v%d, 0" % r)
    Q("s_lshl_b32 s%d, s3, 2\ns_add_u32 s%d, s%d, s%d\ns_mul_i32 s%d, s%d, %d" % (sT0, sT0, sT0, sRG, sT0, sT0, RG_BYTES))
    srd(Q, SA, 30, RG_BYTES, "s%d" % sT0)
    Q("s_add_u32 s%d, s30, %d\ns_addc_u32 s%d, s31, 0\ns_cmp_eq_u32 s4, 0\ns_cselect_b32 s%d, 16384, 0\ns_mov_b32 s%d, 0x20000" % (SST, WS_ST, SST+1, SST+2, SST+3))
    Q("s_cmp_eq_u32 s%d, 1\ns_cbranch_scc1 L_p1_role1" % sCG)

    def reads(lst, cg, t, s):
        ks = (t % 8)*4 + s
        b = WF + 8*(ks & 1)
        if t < 8:
            xs = t % 4; wsl = 4 + t % 4
            lst.append(I("ds_read_b128 v[%d:%d], v%d offset:%d" % (XF+4*ks, XF+4*ks+3, vXA[s], xs*16384)))
        else:
            wsl = w2slot(t-8)
        if t < 8 and cg == 0:
            for acc in range(2):
                lst.append(I("ds_read_b128 v[%d:%d], v%d offset:%d" % (b+4*acc, b+4*acc+3, vBA[s], (wsl-4)*16384 + acc*4096)))
        else:
            vt = vT1 if wsl >= 4 else vT0
            for acc in range(2):
                o = (wsl & 3)*16384 + acc*4096 + s*1024
                lst.append(I("ds_read_b64_tr_b16 v[%d:%d], v%d offset:%d" % (b+4*acc, b+4*acc+1, vt, o)))
                lst.append(I("ds_read_b64_tr_b16 v[%d:%d], v%d offset:%d" % (b+4*acc+2, b+4*acc+3, vt, o+256)))
    def mfma(cg, t, s, acc):
        ks = (t % 8)*4 + s
        b = WF + 8*(ks & 1) + 4*acc
        A = (ACCA if t < 8 else ACCB) + 16*acc
        c = "0" if ks == 0 else "v[%d:%d]" % (A, A+15)
        x = "v[%d:%d]" % (XF+4*ks, XF+4*ks+3); w = "v[%d:%d]" % (b, b+3)
        if t < 8 and cg == 0: return I("v_mfma_f32_32x32x16_bf16 v[%d:%d], %s, %s, %s" % (A, A+15, x, w, c))
        return I("v_mfma_f32_32x32x16_bf16 v[%d:%d], %s, %s, %s" % (A, A+15, w, x, c))

    lab = [0]
    def role_main(cg, dens, go_steps):
        M = []
        M.append(Wait(vm_tag=('C', 0)))
        M.append(I("s_barrier"))
        M += ST(0)
        reads(M, cg, 0, 0)
        for t in range(16):
            for s in range(4):
                ks = (t % 8)*4 + s
                last = (s == 3)
                if not last: reads(M, cg, t, s+1)
                M.append(mfma(cg, t, s, 0))
                M.append(('SLOT', dens(t)))
                if last and t < 15:
                    if (t+1) in go_steps: M.append(('GO',))
                    M.append(Wait(lgkm_all=True))
                    M.append(Wait(vm_tag=('C', t+1)))
                    M.append(I("s_barrier"))
                    if t+1 in (4, 8, 12): M += ST((t+1)//4)
                    if t < 4:
                        dma_x(M, t, ('C', t+4)); dma_w(M, 4+t, ('C', t+4))
                    elif t < 8:
                        q = 2*(t-4)
                        dma_w2(M, w2slot(q), ('C', 8+q)); dma_w2(M, w2slot(q+1), ('C', 8+q+1))
                    reads(M, cg, t+1, 0)
                M.append(mfma(cg, t, s, 1))
                if t < 8 and (ks & 1) == cg:
                    for e in range(4):
                        x = XF + 4*ks + e
                        M.append(I("v_dot2c_f32_bf16 v%d, s%d, v%d" % (vS[e & 1], sONES, x)))
                        M.append(I("v_dot2c_f32_bf16 v%d, v%d, v%d" % (vQ[e & 1], x, x)))
                lab[0] += 1
                b = WF + 8*(ks & 1)
                M.append(I("s_cmp_lg_u32 s%d, %d" % (sRG, s)))
                M.append(I("s_cbranch_scc1 L_cs%d" % lab[0]))
                for e in range(4):
                    for acc in range(2):
                        M.append(I("v_dot2c_f32_bf16 v%d, s%d, v%d" % (vC[acc], sONES, b+4*acc+e)))
                M.append(I("L_cs%d:" % lab[0]))
                M.append(('SLOT', dens(t)))
            if t == 7 or t == 15:
                M += colsum_write(cg, vSP if (t == 7 or cg == 1) else ACCA+15)
                for r in vC: M.append(I("v_mov_b32 v%d, 0" % r))
            if t == 7:
                M.append(I("v_add_f32 v%d, v%d, v%d" % (vS[0], vS[0], vS[1])))
                M.append(I("v_add_f32 v%d, v%d, v%d" % (vS[1], vQ[0], vQ[1])))
                M.append(I("v_lshl_add_u32 v%d, s%d, 5, v2" % (vSP, sRG)))
                M.append(I("v_lshlrev_b32 v%d, 5, v%d" % (vSP, vSP)))
                M.append(I("v_lshl_add_u32 v%d, v3, 3, v%d" % (vSP, vSP)))
                M.append(I("v_add_u32 v%d, %d, v%d" % (vSP, PST + cg*16, vSP)))
                M.append(I("ds_write_b64 v%d, v[%d:%d]" % (vSP, vS[0], vS[1])))
        return M

    T = TMP
    R0 = Stream()
    R0("v_lshlrev_b32 v65, 16, v65\nv_lshlrev_b32 v66, 16, v66\nv_lshlrev_b32 v67, 16, v67")
    R0("v_mul_f32 v68, 0x%x, v67\nv_exp_f32 v68, v68" % f2u(LOG2E))
    tmp = []; bf16r(tmp, 68, 69); R0.extend(tmp)
    R0("v_mul_f32 v69, v68, v65\nv_mul_f32 v70, v68, v66")
    R0("v_mul_f32 v69, 0x%x, v69\nv_exp_f32 v69, v69" % f2u(LOG2E))
    R0("v_mul_f32 v70, 0.15915494, v70\nv_fract_f32 v70, v70\nv_cos_f32 v71, v70\nv_sin_f32 v72, v70")
    R0("v_mul_f32 v%d, v69, v71\nv_mul_f32 v%d, v69, v72" % (vLr, vLi))
    R0("v_add_f32 v73, -1.0, v%d" % vLr)
    R0("v_mul_f32 v74, v65, v65\nv_fma_f32 v74, v66, v66, v74\nv_rcp_f32 v74, v74\nv_add_f32 v74, v74, v74")
    R0("v_mul_f32 v75, v73, v65\nv_fma_f32 v75, v%d, v66, v75\nv_mul_f32 v%d, v75, v74" % (vLi, vcr))
    R0("v_mul_f32 v75, v%d, v65\nv_fma_f32 v75, -v73, v66, v75\nv_mul_f32 v%d, v75, v74" % (vLi, vci))
    R0("v_mov_b32 v%d, v%d\nv_mov_b32 v%d, v%d" % (vL16r, vLr, vL16i, vLi))
    tmp = []
    for _ in range(4): csq(tmp, vL16r, vL16i, 76)
    tmp.append(I("v_mov_b32 v78, v%d" % vL16r)); tmp.append(I("v_mov_b32 v79, v%d" % vL16i)); csq(tmp, 78, 79, 76)
    tmp.append(I("v_mov_b32 v80, v78")); tmp.append(I("v_mov_b32 v81, v79")); csq(tmp, 80, 81, 76)
    cmul_into(tmp, 82, 83, 80, 81, 78, 79)
    tmp.append(I("v_mov_b32 v%d, v80" % vL128r)); tmp.append(I("v_mov_b32 v%d, v81" % vL128i)); csq(tmp, vL128r, vL128i, 76)
    R0.extend(tmp)
    R0("v_mov_b32 v84, 1.0\nv_mov_b32 v85, 0")
    for r, (a, b) in ((1, (78, 79)), (2, (80, 81)), (3, (82, 83))):
        R0("s_cmp_lg_u32 s%d, %d\ns_cbranch_scc1 L_p1_g%d\nv_mov_b32 v84, v%d\nv_mov_b32 v85, v%d\nL_p1_g%d:" % (sRG, r, r, a, b, r))
    tmp = []; cmul_into(tmp, 86, 87, 84, 85, vL16r, vL16i); R0.extend(tmp)
    R0("v_cmp_eq_u32 vcc, 1, v3")
    R0("v_cndmask_b32 v%d, v84, v86, vcc\nv_cndmask_b32 v%d, v85, v87, vcc" % (vFr, vFi))
    R0("s_lshl_b32 s%d, s%d, 1" % (sT0, sRG))
    for k in range(7):
        R0("s_cmp_gt_u32 s%d, %d\ns_cselect_b32 s%d, -1, 0\ns_cmp_ge_u32 s%d, %d\ns_cselect_b32 s%d, -1, 0" % (sT0, k, sMASK+2*k, sT0, k, sMASK+2*k+1))
    R0("s_cmp_eq_u32 s%d, 3\ns_mov_b32 s%d, 0\ns_cselect_b32 s%d, -1, 0\ns_cselect_b32 s%d, 1, 0\ns_mov_b32 s%d, 0" % (sRG, sAGM, sAGM+1, sFLM, sFLM+1))
    R0("s_lshl_b32 s%d, s4, 12\ns_add_u32 s%d, s%d, %d" % (sT0, sT0, sT0, WS_AG))
    srd(R0, SAG, 30, 4096, "s%d" % sT0)
    srd(R0, SDBG, 28, 256)
    R0("s_lshl_b32 s%d, s4, 2" % sJ4)
    R0("s_lshl_b32 s%d, 1, s3\ns_sub_u32 s%d, s%d, 1" % (sFMASK, sFMASK, sFMASK))
    F0 = []
    re = [vSP] + [ACCA + q for q in range(15)]
    im = [ACCA + 16 + q for q in range(16)]
    for q in range(16):
        ar = ACCA + q; ai = im[q]; wr = re[q]
        F0.append(I("v_mul_f32 v%d, v%d, v%d" % (wr, vcr, ar)))
        F0.append(I("v_fma_f32 v%d, -v%d, v%d, v%d" % (wr, vci, ai, wr)))
        F0.append(I("v_mul_f32 v%d, v%d, v%d" % (ai, vcr, ai)))
        F0.append(I("v_fma_f32 v%d, v%d, v%d, v%d" % (ai, vci, ar, ai)))
    FREE = ACCA + 15
    F0.append('STOP')
    F0 += stats_finalize(T, 0)
    cs = [T[1], T[2]]
    F0 += colsum_read(0, cs, T)
    cmul_into(F0, vdr, vdi, vcr, vci, cs[0], cs[1])
    F0.append(I("v_mul_f32 v17, v%d, v%d" % (vNM, vINV)))
    F0.append(I("v_mov_b32 v16, v%d" % vINV))
    F0.append(I("s_lshl_b32 s%d, s%d, 8" % (sT0, sRG)))
    F0.append(I("v_lshlrev_b32 v%d, 3, v4" % T[0]))
    F0.append(I("v_add_u32 v%d, s%d, v%d" % (T[0], sT0, T[0])))
    F0.append(I("v_add_u32 v%d, %d, v%d" % (T[0], FST, T[0])))
    F0.append(I("ds_write_b64 v%d, v[16:17]" % T[0]))
    F0.append(I("v_lshlrev_b32 v%d, 7, v3" % T[0]))
    F0.append(I("v_add_u32 v%d, s%d, v%d" % (T[0], sT0, T[0])))
    F0.append(I("v_add_u32 v%d, %d, v%d" % (T[0], FST, T[0])))
    sr = [T[1], T[3]]; si = [T[2], 13]; tq = [14, 15]
    for q2 in range(8):
        qd = 16 + 4*(q2 & 1)
        F0.append(I("ds_read_b128 v[%d:%d], v%d offset:%d" % (qd, qd+3, T[0], q2*16)))
        for k in range(2):
            q = 2*q2 + k
            a = qd + 2*k; b = a + 1
            F0.append(I("v_mul_f32 v%d, v%d, v%d" % (tq[0], b, vdr)))
            F0.append(I("v_mul_f32 v%d, v%d, v%d" % (tq[1], b, vdi)))
            F0.append(I("v_fma_f32 v%d, v%d, v%d, v%d" % (re[q], a, re[q], tq[0])))
            F0.append(I("v_fma_f32 v%d, v%d, v%d, v%d" % (im[q], a, im[q], tq[1])))
            if q == 0:
                F0.append(I("v_mov_b32 v%d, v%d" % (sr[0], re[0]))); F0.append(I("v_mov_b32 v%d, v%d" % (si[0], im[0])))
            else:
                o = (q-1) & 1; n = q & 1
                F0.append(I("v_fma_f32 v%d, v%d, v%d, v%d" % (sr[n], vLr, sr[o], re[q])))
                F0.append(I("v_fma_f32 v%d, v%d, v%d, v%d" % (si[n], vLr, si[o], im[q])))
                F0.append(I("v_fma_f32 v%d, -v%d, v%d, v%d" % (sr[n], vLi, si[o], sr[n])))
                F0.append(I("v_fma_f32 v%d, v%d, v%d, v%d" % (si[n], vLi, sr[o], si[n])))
    F0.append(I("v_mov_b32 v14, v%d" % sr[1])); F0.append(I("v_mov_b32 v15, v%d" % si[1]))
    F0.append(I("s_lshl_b32 s%d, s%d, 9" % (sT0, sRG)))
    F0.append(I("v_lshlrev_b32 v%d, 3, v2" % T[0]))
    F0.append(I("v_add_u32 v%d, %d, v%d" % (T[0], SEG, T[0])))
    F0.append(I("v_lshl_add_u32 v%d, v3, 8, v%d" % (T[1], T[0])))
    F0.append(I("v_add_u32 v%d, s%d, v%d" % (T[1], sT0, T[1])))
    F0.append(I("ds_write_b64 v%d, v[14:15]" % T[1]))
    F0.append('STOP')
    F0.append(I("v_mov_b32 v%d, 0" % vPr)); F0.append(I("v_mov_b32 v%d, 0" % vPi))
    for k2 in range(4):
        qd = 16 + 4*(k2 & 1)
        if k2 < 3: F0.append(I("ds_read2_b64 v[%d:%d], v%d offset0:%d offset1:%d" % (qd, qd+3, T[0], k2*64, k2*64+32)))
        else: F0.append(I("ds_read_b64 v[%d:%d], v%d offset:%d" % (qd, qd+1, T[0], 6*256)))
        for kk in range(2 if k2 < 3 else 1):
            k = 2*k2 + kk
            s_r = qd + 2*kk; s_i = s_r + 1
            g = [I("s_mov_b64 exec, s[%d:%d]" % (sMASK+2*k, sMASK+2*k+1)),
                 I("v_fma_f32 v%d, v%d, v%d, v%d" % (s_r, vL16r, vPr, s_r)),
                 I("v_fma_f32 v%d, v%d, v%d, v%d" % (s_i, vL16r, vPi, s_i)),
                 I("v_fma_f32 v%d, -v%d, v%d, v%d" % (s_r, vL16i, vPi, s_r)),
                 I("v_fma_f32 v%d, v%d, v%d, v%d" % (s_i, vL16i, vPr, s_i)),
                 I("v_mov_b32 v%d, v%d" % (vPr, s_r)),
                 I("v_mov_b32 v%d, v%d" % (vPi, s_i)),
                 I("s_mov_b64 exec, -1")]
            F0.append(g)
    F0.append(I("v_fma_f32 v14, v%d, v%d, v14" % (vL16r, vPr)))
    F0.append(I("v_fma_f32 v15, v%d, v%d, v15" % (vL16r, vPi)))
    F0.append(I("v_fma_f32 v14, -v%d, v%d, v14" % (vL16i, vPi)))
    F0.append(I("v_fma_f32 v15, v%d, v%d, v15" % (vL16i, vPr)))
    F0.append(I("s_lshl_b32 s%d, s3, 8" % sT0))
    F0.append(I("v_lshlrev_b32 v%d, 3, v2" % T[0]))
    F0.append([I("s_mov_b64 exec, s[%d:%d]" % (sAGM, sAGM+1)),
               I("buffer_store_dwordx2 v[14:15], v%d, s[%d:%d], s%d offen sc1" % (T[0], SAG, SAG+3, sT0), 'agg'),
               I("s_mov_b64 exec, -1")])
    F0.append(I("s_lshl_b32 s%d, 1, s3" % sT0))
    F0.append(I("v_mov_b32 v%d, s%d" % (T[1], sT0)))
    F0.append('STOP')
    F0.append([Wait(vm_tag='agg'),
               I("s_mov_b64 exec, s[%d:%d]" % (sFLM, sFLM+1)),
               I("buffer_atomic_or v%d, off, s[%d:%d], s%d sc1" % (T[1], SDBG, SDBG+3, sJ4), 'flag'),
               I("s_mov_b64 exec, -1")])
    main0 = role_main(0, lambda t: 0 if t < 8 else 8, {9, 12, 14})
    body0, left0 = interleave2(main0, F0)
    assert not left0, len(left0)
    TL = Stream()
    TL.extend(ST(4)); TL.add(Wait(lgkm_all=True)); TL("s_barrier")
    TL("s_mov_b32 s51, 200000")
    TL("L_p1_poll:")
    TL("buffer_load_dword v130, off, s[%d:%d], s%d sc1" % (SDBG, SDBG+3, sJ4))
    TL("s_waitcnt vmcnt(0)")
    TL("v_readfirstlane_b32 s%d, v130" % sT0)
    TL("s_and_b32 s%d, s%d, s%d\ns_cmp_eq_u32 s%d, s%d\ns_cbranch_scc1 L_p1_pollok\ns_sleep 2\ns_sub_u32 s51, s51, 1\ns_cmp_lg_u32 s51, 0\ns_cbranch_scc1 L_p1_poll\nL_p1_pollok:" % (sT0, sT0, sFMASK, sT0, sFMASK))
    TL.extend(ST(5))
    TL("s_sub_u32 s%d, s3, 15\ns_lshl_b32 s%d, s%d, 8" % (sT0, sT0, sT0))
    TL("v_lshlrev_b32 v131, 3, v2\nv_add_u32 v131, s%d, v131" % sT0)
    for k in range(15):
        TL("buffer_load_dwordx2 v[%d:%d], v131, s[%d:%d], 0 offen sc1" % (132+2*k, 133+2*k, SAG, SAG+3))
        if k < 14: TL("v_add_u32 v131, 256, v131")
    TL.extend(flat(ffn_epilogue(ACCB, ACCB+16, 0, sUOFF2, T)))
    TL.extend(ST(6))
    H = (164, 165)
    TL("v_mov_b32 v164, v132\nv_mov_b32 v165, v133")
    for k in range(1, 15):
        a, b = 132+2*k, 133+2*k
        TL("v_fma_f32 v%d, v%d, v164, v%d\nv_fma_f32 v%d, v%d, v165, v%d" % (a, vL128r, a, b, vL128r, b))
        TL("v_fma_f32 v164, -v%d, v165, v%d" % (vL128i, a) if False else "v_fma_f32 v%d, -v%d, v165, v%d" % (a, vL128i, a))
        TL("v_fma_f32 v165, v%d, v164, v%d" % (vL128i, b))
        TL("v_mov_b32 v164, v%d" % a)
    TL("v_fma_f32 v%d, v%d, v164, v%d\nv_fma_f32 v%d, v%d, v165, v%d" % (vPr, vFr, vPr, vPi, vFr, vPi))
    TL("v_fma_f32 v%d, -v%d, v165, v%d\nv_fma_f32 v%d, v%d, v164, v%d" % (vPr, vFi, vPr, vPi, vFi, vPi))
    pr, pi = vPr, vPi
    for q in range(16):
        TL("v_fma_f32 v%d, v%d, v%d, v%d\nv_fma_f32 v%d, v%d, v%d, v%d" % (re[q], vLr, pr, re[q], im[q], vLr, pi, im[q]))
        TL("v_fma_f32 v%d, -v%d, v%d, v%d\nv_fma_f32 v%d, v%d, v%d, v%d" % (re[q], vLi, pi, re[q], im[q], vLi, pr, im[q]))
        pr, pi = re[q], im[q]
    for q2 in range(8):
        TL("v_cvt_pk_bf16_f32 v%d, v%d, v%d" % (168+q2, re[2*q2], re[2*q2+1]))
        TL("v_cvt_pk_bf16_f32 v%d, v%d, v%d" % (176+q2, im[2*q2], im[2*q2+1]))
    TL("s_lshl_b32 s%d, s%d, 12" % (sT0, sRG))
    TL("v_lshlrev_b32 v184, 6, v2\nv_lshl_add_u32 v184, v3, 5, v184\nv_add_u32 v184, s%d, v184" % sT0)
    TL("ds_write_b128 v184, v[168:171]\nds_write_b128 v184, v[172:175] offset:16\nds_write_b128 v184, v[176:179] offset:2048\nds_write_b128 v184, v[180:183] offset:2064")
    TL("v_add_u32 v185, s%d, v%d" % (sT0, vT0))
    TL("v_lshlrev_b32 v186, 4, v2\nv_lshl_add_u32 v186, v3, 9, v186")
    TL("s_lshl_b32 s%d, s4, 12\ns_add_u32 s%d, s%d, %d" % (sT1, sT1, sT1, 86*1024))
    for part in range(2):
        for s in range(2):
            q = 188 + 4*(2*part+s)
            o = part*2048 + s*1024
            TL("ds_read_b64_tr_b16 v[%d:%d], v185 offset:%d" % (q, q+1, o))
            TL("ds_read_b64_tr_b16 v[%d:%d], v185 offset:%d" % (q+2, q+3, o+256))
    for part in range(2):
        for s in range(2):
            q = 188 + 4*(2*part+s)
            TL("buffer_store_dwordx4 v[%d:%d], v186, s[%d:%d], s%d offen offset:%d" % (q, q+3, SA, SA+3, sT1, (2*part+s)*1024))
    TL("s_branch L_p1_fin")
    role0 = finalize(Q.ins + R0.ins + body0 + TL.ins)

    F1 = ['STOP']
    F1 += stats_finalize(T, 1)
    F1 += ffn_epilogue(ACCA, ACCA+16, 1, sUOFF1, T)
    main1 = role_main(1, lambda t: 0 if t < 9 else 5, {9})
    body1, left1 = interleave2(main1, F1)
    assert not left1, len(left1)
    T1 = Stream()
    T1.extend(ST(4)); T1.add(Wait(lgkm_all=True)); T1("s_barrier"); T1.extend(ST(5))
    T1.extend(flat(ffn_epilogue(ACCB, ACCB+16, 1, sUOFF2, T)))
    T1.extend(ST(6))
    pre1 = [x for x in Q.ins]
    r1full = finalize(pre1 + [I("L_p1_role1:")] + body1 + T1.ins)
    idx = [k for k, o in enumerate(r1full) if o.text == "L_p1_role1:"][0]
    role1 = r1full[idx:]
    F = Stream()
    F("L_p1_fin:")
    if stamp:
        F("s_waitcnt vmcnt(0)\ns_memtime s[22:23]\ns_memrealtime s[24:25]\ns_waitcnt lgkmcnt(0)")
        srd(F, 52, 30, 1 << 20, 0x2000000)
        F("v_mov_b32 v8, s98\nv_mov_b32 v9, s100")
        for k in range(8): F("v_mov_b32 v%d, s%d" % (10+k, 8+2*k))
        F("v_mov_b32 v18, s24\nv_mov_b32 v19, 0")
        F("s_lshl_b32 s26, s2, 3\ns_add_u32 s26, s26, s%d\ns_lshl_b32 s26, s26, 6\nv_mov_b32 v20, s26" % sW)
        F("v_cmp_eq_u32 vcc, 0, v1\ns_and_saveexec_b64 s[28:29], vcc")
        F("buffer_store_dwordx4 v[8:11], v20, s[52:55], 0 offen\nbuffer_store_dwordx4 v[12:15], v20, s[52:55], 0 offen offset:16\nbuffer_store_dwordx4 v[16:19], v20, s[52:55], 0 offen offset:32")
    F("L_p1_end:\ns_endpgm")
    fin = finalize(F.ins)
    return kernel_text(name, render(pro) + render(role0) + render(role1) + render(fin), 256, 102)
```

```python
from common import *
from k0 import gen_k0
from p1 import gen_p1
from p2 import gen_p2
import sys
n = int(sys.argv[1])
o = header_comments()
o.append("; @launch kernel=k0_kernel grid=(150,4,1) block=(256,1,1) lds=0")
o.append("; @launch kernel=p1_kernel grid=(256,1,1) block=(512,1,1) lds=163840")
o.append("; @launch kernel=p2_kernel grid=(256,1,1) block=(256,1,1) lds=65536")
for i in range(n): o.append("; @launch kernel=e1_kernel grid=(256,1,1) block=(256,1,1) lds=0")
o += ['.amdgcn_target "amdgcn-amd-amdhsa--gfx950"', ".text"]
t = "\n".join(o) + "\n" + gen_k0("k0_kernel") + gen_p1("p1_kernel") + gen_p2("p2_kernel") + kernel_text("e1_kernel", "s_endpgm\n", 8, 16)
open("t3_%d.s" % n, "w").write(t)
```

```python
from common import *
import struct
def f2u(x): return struct.unpack('<I', struct.pack('<f', x))[0]
LOG2E = 1.4426950408889634
GC0 = -2.0 * LOG2E * 0.7978845608028654
GC1 = GC0 * 0.044715

M0 = 131072
CSL = M0; INVL = M0 + 16384; SEG = M0 + 16896; CSR = M0 + 18944; NONL = M0 + 19456
LDS_BYTES = 163840
WS_AGR = 0x10000; WS_CS = 0x30000; WS_ZR = 0x40000; WS_FL = 0x60000; WSM_BYTES = 0x70000
vNK = [5, 6, 7, 8]; vKN = [9, 10, 11, 12]; vK2 = vKN; vW = [13, 14, 15, 16]
vT0, vT1 = 17, 18
vXA = [19, 20, 21, 22]; vBA = [23, 24, 25, 26]
vAO = 27
vK0 = [28, 29]; vK1 = [30, 31]; vS2 = [32, 33]
vT2a, vT2b = 34, 35
XAUG = [36, 40]; WAUG = [44, 48]
vLr, vLi, vL16r, vL16i, vL128r, vL128i, vcr, vci = range(52, 60)
vF = [(60, 61), (62, 63)]
vnLi, vnL16i, vnci = 13, 14, 15
U0 = 64
WF = 96
ACCA = 128; ACCB = 192
def acca(r, acc): return ACCA + 32*r + 16*acc
def accb(r, acc): return ACCB + 32*r + 16*acc
def XF(r, ks): return 128*r + 4*ks
sM, sJ, sW, sRGP, sCG = 3, 4, 5, 6, 7
P_X, P_LRE, P_LIM, P_BRE, P_BIM, P_CRE, P_CIM, P_LDT = 8, 10, 12, 14, 16, 18, 20, 22
P_DSK, P_BX, P_WG, P_WU, P_WD, P_OUT, P_DBG, P_WS = 24, 26, 28, 30, 32, 34, 36, 38
SX, SW1, SW2, SA0, SA1, SWS, SDBG, SC0, SP = 40, 44, 48, 52, 56, 60, 64, 68, 72
sXOFF, sWOFF, sWSTR, sW2OFF, sLDSW, sUOFF1, sUOFF2, sT0, sT1, sNON, sHIM, sRGPF = range(76, 88)
sHH = 88; sAGM = 90; sM0, sM1, sSPIN = 92, 93, 94
sUA, sUB, sUC = 95, 96, 97
sXK, sXK2, sDO = 101, 100, 99

def I(text, tag=None): return Ins(text, tag)
def IL(text, tag=None): return [Ins(l.strip(), tag) for l in text.strip().split("\n") if l.strip()]
def bf16r(lst, x, t):
    lst.append(I("v_cvt_pk_bf16_f32 v%d, v%d, v%d" % (t, x, x)))
    lst.append(I("v_lshlrev_b32 v%d, 16, v%d" % (x, t)))
def cmul_into(lst, dr, di, ar, ai, br, bi):
    lst.append(I("v_mul_f32 v%d, v%d, v%d" % (dr, ar, br)))
    lst.append(I("v_mul_f32 v%d, v%d, v%d" % (di, ar, bi)))
    lst.append(I("v_fma_f32 v%d, -v%d, v%d, v%d" % (dr, ai, bi, dr)))
    lst.append(I("v_fmac_f32 v%d, v%d, v%d" % (di, ai, br)))
def csq(lst, r, i, t):
    lst.append(I("v_mul_f32 v%d, v%d, v%d" % (t, i, i)))
    lst.append(I("v_mul_f32 v%d, v%d, v%d" % (i, r, i)))
    lst.append(I("v_fma_f32 v%d, v%d, v%d, -v%d" % (r, r, r, t)))
    lst.append(I("v_add_f32 v%d, v%d, v%d" % (i, i, i)))
def cacc(lst, sr, si, lr, li, nli, pr, pi):
    lst.append(I("v_fmac_f32 v%d, v%d, v%d" % (sr, lr, pr)))
    lst.append(I("v_fmac_f32 v%d, v%d, v%d" % (si, lr, pi)))
    lst.append(I("v_fmac_f32 v%d, v%d, v%d" % (sr, nli, pi)))
    lst.append(I("v_fmac_f32 v%d, v%d, v%d" % (si, li, pr)))

A2MOD = ""
def ffn_epilogue(r, G, U, suoff, tt, SA):
    L = []
    for g in range(4):
        R = [4*g + jj for jj in range(4)]
        for jj, x in enumerate(R): L.append(I("v_mul_f32 v%d, v%d, v%d" % (tt[jj], G+x, G+x)))
        for jj, x in enumerate(R): L.append(I("v_fma_f32 v%d, v%d, v%d, v%d" % (tt[jj], tt[jj], vK1[r], vK0[r])))
        for jj, x in enumerate(R): L.append(I("v_mul_f32 v%d, v%d, v%d" % (tt[jj], tt[jj], G+x)))
        for jj, x in enumerate(R): L.append(I("v_exp_f32 v%d, v%d" % (tt[jj], tt[jj])))
        for jj, x in enumerate(R): L.append(I("v_mul_f32 v%d, v%d, v%d" % (U+x, U+x, G+x)))
        for jj, x in enumerate(R): L.append(I("v_fma_f32 v%d, v%d, v%d, v%d" % (tt[jj], tt[jj], vS2[r], vS2[r])))
        for jj, x in enumerate(R): L.append(I("v_rcp_f32 v%d, v%d" % (tt[jj], tt[jj])))
        for jj, x in enumerate(R): L.append(I("v_mul_f32 v%d, v%d, v%d" % (U+x, U+x, tt[jj])))
        base = G + 8*(g >> 1) + 2*(g & 1)
        L.append(I("v_cvt_pk_bf16_f32 v%d, v%d, v%d" % (base, U+4*g, U+4*g+1)))
        L.append(I("v_cvt_pk_bf16_f32 v%d, v%d, v%d" % (base+1, U+4*g+2, U+4*g+3)))
        if g & 1:
            q = G + 8*(g >> 1)
            L.append(I("buffer_store_dwordx4 v[%d:%d], v%d, s[%d:%d], s%d offen offset:%d%s" % (q, q+3, vAO, SA, SA+3, suoff, 1024*(g >> 1), A2MOD), 'a2'))
    return L
def ffn_epilogue_pk(r, G, U, suoff, tt, SA, KP):
    L = []
    k01, s2 = KP
    for g in range(4):
        P2 = [(4*g, tt[0]), (4*g+2, tt[2])]
        for x, t in P2: L.append(I("v_pk_mul_f32 v[%d:%d], v[%d:%d], v[%d:%d]" % (t, t+1, G+x, G+x+1, G+x, G+x+1)))
        for x, t in P2: L.append(I("v_pk_fma_f32 v[%d:%d], v[%d:%d], v[%d:%d], v[%d:%d] op_sel:[0,1,0] op_sel_hi:[1,1,0]" % (t, t+1, t, t+1, k01, k01+1, k01, k01+1)))
        for x, t in P2: L.append(I("v_pk_mul_f32 v[%d:%d], v[%d:%d], v[%d:%d]" % (t, t+1, t, t+1, G+x, G+x+1)))
        for x, t in P2:
            L.append(I("v_exp_f32 v%d, v%d" % (t, t))); L.append(I("v_exp_f32 v%d, v%d" % (t+1, t+1)))
        for x, t in P2: L.append(I("v_pk_mul_f32 v[%d:%d], v[%d:%d], v[%d:%d]" % (U+x, U+x+1, U+x, U+x+1, G+x, G+x+1)))
        for x, t in P2: L.append(I("v_pk_fma_f32 v[%d:%d], v[%d:%d], v[%d:%d], v[%d:%d] op_sel_hi:[1,0,0]" % (t, t+1, t, t+1, s2, s2+1, s2, s2+1)))
        for x, t in P2:
            L.append(I("v_rcp_f32 v%d, v%d" % (t, t))); L.append(I("v_rcp_f32 v%d, v%d" % (t+1, t+1)))
        for x, t in P2: L.append(I("v_pk_mul_f32 v[%d:%d], v[%d:%d], v[%d:%d]" % (U+x, U+x+1, U+x, U+x+1, t, t+1)))
        base = G + 8*(g >> 1) + 2*(g & 1)
        L.append(I("v_cvt_pk_bf16_f32 v%d, v%d, v%d" % (base, U+4*g, U+4*g+1)))
        L.append(I("v_cvt_pk_bf16_f32 v%d, v%d, v%d" % (base+1, U+4*g+2, U+4*g+3)))
        if g & 1:
            q = G + 8*(g >> 1)
            L.append(I("buffer_store_dwordx4 v[%d:%d], v%d, s[%d:%d], s%d offen offset:%d%s" % (q, q+3, vAO, SA, SA+3, suoff, 1024*(g >> 1), A2MOD), 'a2'))
    return L
def tail_ffn(suoff, SA0, SA1):
    L = []
    for r in range(2):
        b = XAUG[r]
        L.append(I("v_mov_b32 v%d, v%d" % (b, vK0[r]))); L.append(I("v_mov_b32 v%d, v%d" % (b+1, vK1[r])))
        L.append(I("v_mov_b32 v%d, v%d" % (b+2, vS2[r])))
    A = ffn_epilogue_pk(0, accb(0, 0), accb(0, 1), suoff, [44, 45, 46, 47], SA0, (XAUG[0], XAUG[0]+2))
    B = ffn_epilogue_pk(1, accb(1, 0), accb(1, 1), suoff, [48, 49, 50, 51], SA1, (XAUG[1], XAUG[1]+2))
    for a_, b_ in zip(A, B): L.append(a_); L.append(b_)
    return L

def gen_p1(name, stamp=0, dens0=(5, 6), dens1=(5, 4), a2mod="", rotmask=7, w2sched=(5, 6, 7, 8, 9, 10, 11, 12), fused=None):
    global A2MOD
    A2MOD = a2mod
    SLOW = []
    def ST(k): return [I("s_memtime s[%d:%d]" % (8+2*k, 9+2*k))] if stamp == 1 else []
    P = Stream()
    P("s_cmp_ge_u32 s2, 256\ns_cbranch_scc1 L_p1_end")
    P("s_load_dwordx16 s[8:23], s[0:1], 0\ns_load_dwordx16 s[24:39], s[0:1], 64")
    if stamp == 1: P("s_memrealtime s[0:1]\ns_memtime s[98:99]")
    P("v_lshrrev_b32 v1, 6, v0\nv_and_b32 v2, 31, v0\nv_readfirstlane_b32 s%d, v1\nv_and_b32 v1, 63, v0\nv_bfe_u32 v3, v0, 5, 1" % sW)
    P("s_and_b32 s3, s2, 1\ns_lshl_b32 s3, s3, 3\ns_bfe_u32 s%d, s2, 0x30003\ns_add_u32 s3, s3, s%d" % (sT0, sT0))
    P("s_bfe_u32 s4, s2, 0x20001\ns_lshl_b32 s4, s4, 2\ns_lshr_b32 s%d, s2, 6\ns_add_u32 s4, s4, s%d" % (sT0, sT0))
    P("v_and_b32 v46, 7, v1\nv_lshrrev_b32 v45, 4, v1\nv_xor_b32 v46, v46, v45\nv_lshlrev_b32 v46, 4, v46")
    P("v_lshrrev_b32 v45, 3, v1\nv_lshl_add_u32 v%d, v45, 10, v46" % vNK[0])
    P("v_xor_b32 v%d, 64, v%d" % (vNK[1], vNK[0]))
    P("v_add_u32 v%d, %d, v%d\nv_add_u32 v%d, %d, v%d" % (vNK[2], 14336, vNK[0], vNK[3], 14336+7168, vNK[1]))
    P("v_add_u32 v%d, 7168, v%d" % (vNK[1], vNK[1]))
    P("s_lshl_b32 s%d, s%d, 12" % (sLDSW, sW))
    P("s_lshl_b32 s%d, s3, 17\ns_lshl_b32 s%d, s%d, 15\ns_add_u32 s%d, s%d, s%d" % (sXOFF, sT0, sW, sXOFF, sXOFF, sT0))
    P("s_mov_b32 s%d, %d\ns_mov_b32 s%d, 0x20000" % (SX+2, 2048*1024, SX+3))
    P("v_lshrrev_b32 v45, 2, v1\ns_movk_i32 s%d, 2752\nv_mul_lo_u32 v45, v45, s%d\nv_and_b32 v46, 3, v1\nv_lshl_add_u32 v%d, v46, 4, v45" % (sT0, sT0, vKN[0]))
    for i in range(1, 4): P("v_add_u32 v%d, %d, v%d" % (vKN[i], 43008*i, vKN[0]))
    P("s_and_b32 s%d, s%d, 1\ns_lshr_b32 s%d, s%d, 1" % (sRGP, sW, sCG, sW))
    P("s_mul_i32 s%d, s4, 3\ns_add_u32 s%d, s%d, 1\ns_add_u32 s%d, s%d, 2" % (sUA, sUB, sUA, sUC, sUA))
    P("s_lshl_b32 s%d, s%d, 11" % (sUOFF2, sUB))
    P("s_cmp_lt_u32 s4, 11\ns_cbranch_scc1 L_p1_u")
    P("s_lshl_b32 s%d, s4, 1\ns_add_u32 s%d, s%d, 11\ns_add_u32 s%d, s%d, 1\ns_mov_b32 s%d, s%d\ns_mov_b32 s%d, 0x10000000" % (sUA, sUA, sUA, sUC, sUA, sUB, sUA, sUOFF2))
    P("L_p1_u:")
    P("s_and_b32 s%d, s3, %d\ns_lshl_b32 s%d, s%d, 7\ns_mov_b32 s%d, s%d" % (sXK, rotmask, sXK, sXK, sXK2, sXK))
    P("s_mov_b32 s%d, 0x20000" % (SW1+3))
    def dma(vo, S_, slot, tag, pre, post=[]):
        G = []
        g0 = [I(x) for x in pre] + [I("s_add_u32 m0, s%d, %d" % (sLDSW, slot*16384))]
        for i in range(4):
            ins = I("buffer_load_dwordx4 v%d, s[%d:%d], s%d offen offset:%d lds" % (vo[i], S_, S_+3, sDO, 1024*i), tag)
            if i == 0: G.append(g0 + [ins])
            elif i == 3: G.append([ins] + [I(x) for x in post])
            else: G.append([ins])
        return G
    def dma_x(slot, tag): return dma(vNK, SX, slot, tag, ["s_add_u32 s%d, s%d, s%d" % (sDO, sXOFF, sXK)])
    def dma_w(slot, tag): return dma(vW, SW1, slot, tag, ["s_mul_i32 s%d, s%d, s%d" % (sDO, sXK, sWSTR), "s_add_u32 s%d, s%d, s%d" % (sDO, sDO, sWOFF)],
                                     ["s_add_u32 s%d, s%d, 128" % (sXK, sXK), "s_and_b32 s%d, s%d, 1023" % (sXK, sXK)])
    def dma_w2(slot, tag): return dma(vK2, SW2, slot, tag, ["s_mul_i32 s%d, s%d, 1376" % (sDO, sXK2), "s_add_u32 s%d, s%d, s%d" % (sDO, sDO, sW2OFF)],
                                      ["s_add_u32 s%d, s%d, 128" % (sXK2, sXK2), "s_and_b32 s%d, s%d, 1023" % (sXK2, sXK2)])
    def w2slot(q): return q//2 if q % 2 == 0 else 4 + (q-1)//2
    P("s_waitcnt lgkmcnt(0)")
    P("s_mov_b32 s%d, s%d\ns_mov_b32 s%d, s%d" % (SX, P_X, SX+1, P_X+1))
    P.extend(flat(dma_x(0, ('C', 0))))
    P("s_cmp_lt_u32 s%d, 2\ns_cbranch_scc0 L_p1_wffn" % sW)
    P("s_cmp_eq_u32 s%d, 0\ns_cselect_b32 s%d, s%d, s%d\ns_cselect_b32 s%d, s%d, s%d" % (sW, SW1, P_BRE, P_BIM, SW1+1, P_BRE+1, P_BIM+1))
    P("s_mov_b32 s%d, %d\ns_movk_i32 s%d, 1\ns_lshl_b32 s%d, s4, 15" % (SW1+2, 512*1024, sWSTR, sWOFF))
    for i in range(4): P("v_mov_b32 v%d, v%d" % (vW[i], vNK[i]))
    P("s_branch L_p1_wdone\nL_p1_wffn:")
    P("s_cmp_eq_u32 s%d, 2\ns_cselect_b32 s%d, s%d, s%d\ns_cselect_b32 s%d, s%d, s%d" % (sW, SW1, P_WG, P_WU, SW1+1, P_WG+1, P_WU+1))
    P("s_mov_b32 s%d, %d\ns_movk_i32 s%d, %d\ns_lshl_b32 s%d, s%d, 6" % (SW1+2, 512*2752, sWSTR, 1376, sWOFF, sUA))
    for i in range(4): P("v_mov_b32 v%d, v%d" % (vW[i], vKN[i]))
    P("L_p1_wdone:")
    P.extend(flat(dma_w(4, ('C', 0))))
    srd(P, SDBG, P_DBG, 256)
    P("s_or_b32 s%d, s2, s%d\ns_cmp_lg_u32 s%d, 0\ns_cbranch_scc1 L_p1_nn" % (sT0, sW, sT0))
    P("s_memrealtime s[90:91]\ns_waitcnt lgkmcnt(0)\ns_or_b32 s90, s90, 1\nv_mov_b32 v44, s90")
    P("buffer_store_dword v44, off, s[%d:%d], 0 sc1\nL_p1_nn:" % (SDBG, SDBG+3))
    P.extend(flat(dma_x(1, ('C', 1)) + dma_w(5, ('C', 1))))
    P("v_lshlrev_b32 v47, 4, v1")
    P("s_lshl_b32 s%d, s3, 17\ns_lshl_b32 s%d, s4, 13\ns_add_u32 s%d, s%d, s%d\ns_lshl_b32 s%d, s%d, 11\ns_add_u32 s%d, s%d, s%d" % (sM0, sT0, sM0, sM0, sT0, sT0, sW, sM0, sM0, sT0))
    P("buffer_load_dwordx4 v[64:67], v47, s[%d:%d], s%d offen" % (SX, SX+3, sM0), 'p0s')
    P("buffer_load_dwordx4 v[68:71], v47, s[%d:%d], s%d offen offset:1024" % (SX, SX+3, sM0), 'p0s')
    P("s_lshr_b32 s%d, s3, 1" % sM0)
    P("s_and_b32 s%d, s3, 1\ns_lshl_b32 s%d, s%d, 2\ns_add_u32 s%d, s%d, s%d" % (sSPIN, sSPIN, sSPIN, sSPIN, sSPIN, sW))
    P("s_add_u32 m0, s%d, %d" % (sLDSW, CSL))
    P("s_cmp_lt_u32 s%d, 2\ns_cbranch_scc0 L_p1_c0ffn" % sM0)
    P("s_cmp_eq_u32 s%d, 0\ns_cselect_b32 s%d, s%d, s%d\ns_cselect_b32 s%d, s%d, s%d" % (sM0, SC0, P_BRE, P_BIM, SC0+1, P_BRE+1, P_BIM+1))
    P("s_mov_b32 s%d, %d\ns_mov_b32 s%d, 0x20000" % (SC0+2, 512*1024, SC0+3))
    P("s_lshl_b32 s%d, s4, 15\ns_lshl_b32 s%d, s%d, 7\ns_add_u32 s%d, s%d, s%d" % (sT0, sT1, sSPIN, sT0, sT0, sT1))
    for i in range(4): P("buffer_load_dwordx4 v%d, s[%d:%d], s%d offen offset:%d lds" % (vNK[i], SC0, SC0+3, sT0, 1024*i), 'p0c')
    P("s_branch L_p1_c0done\nL_p1_c0ffn:")
    P("s_bitcmp1_b32 s%d, 0\ns_cselect_b32 s%d, s%d, s%d\ns_cselect_b32 s%d, s%d, s%d" % (sM0, SC0, P_WU, P_WG, SC0+1, P_WU+1, P_WG+1))
    P("s_mov_b32 s%d, %d\ns_mov_b32 s%d, 0x20000" % (SC0+2, 512*2752, SC0+3))
    P("s_lshr_b32 s%d, s%d, 1" % (sT1, sM0))
    P("s_cmp_eq_u32 s%d, 1\ns_cselect_b32 s%d, s%d, s%d\ns_cmp_eq_u32 s%d, 2\ns_cselect_b32 s%d, s%d, s%d" % (sT1, sT0, sUA, sUC, sT1, sT0, sUB, sT0))
    P("s_lshl_b32 s%d, s%d, 6\ns_mul_i32 s%d, s%d, %d\ns_add_u32 s%d, s%d, s%d" % (sT0, sT0, sT1, sSPIN, 64*2752, sT0, sT0, sT1))
    for i in range(4): P("buffer_load_dwordx4 v%d, s[%d:%d], s%d offen offset:%d lds" % (vKN[i], SC0, SC0+3, sT0, 1024*i), 'p0c2')
    P("L_p1_c0done:")
    model_pre = [x for x in P.ins if getattr(x, 'tag', None) != 'p0c2' and not (x.op == 'buffer_store_dword')]

    Q = Stream()
    Q("s_lshl_b32 s%d, s4, 6\nv_lshl_add_u32 v44, v2, 1, s%d" % (sT0, sT0))
    Q("s_movk_i32 s%d, 1024\ns_mov_b32 s%d, 0x20000" % (SP+2, SP+3))
    for k, p in enumerate((P_LRE, P_LIM, P_LDT)):
        Q("s_mov_b32 s%d, s%d\ns_mov_b32 s%d, s%d\nbuffer_load_ushort v%d, v44, s[%d:%d], 0 offen" % (SP, p, SP+1, p+1, 88+k, SP, SP+3))
    Q("buffer_load_dword v91, off, s[%d:%d], 0 sc1" % (SDBG, SDBG+3), 'non')
    Q("v_bfe_u32 v4, v2, 2, 1\nv_lshlrev_b32 v4, 4, v4\nv_lshrrev_b32 v46, 3, v2\nv_lshl_add_u32 v4, v46, 2, v4\nv_and_b32 v46, 3, v2\nv_add_u32 v4, v4, v46")
    Q("v_bfe_u32 v46, v4, 1, 3\ns_lshl_b32 s%d, s%d, 13\nv_lshlrev_b32 v45, 7, v4\nv_add_u32 v45, s%d, v45" % (sT0, sRGP, sT0))
    for s in range(4):
        Q("v_or_b32 v44, %d, v3\nv_xor_b32 v44, v44, v46\nv_lshl_add_u32 v%d, v44, 4, v45" % (2*s, vXA[s]))
    Q("v_bfe_u32 v46, v2, 1, 3\nv_lshlrev_b32 v45, 7, v2")
    for s in range(4):
        Q("v_or_b32 v44, %d, v3\nv_xor_b32 v44, v44, v46\nv_lshl_add_u32 v%d, v44, 4, v45" % (2*s, 84+s))
        Q("v_add_u32 v%d, 65536, v%d" % (vBA[s], 84+s))
    Q("v_bfe_u32 v44, v1, 2, 2\nv_lshl_add_u32 v44, v3, 3, v44\nv_lshlrev_b32 v44, 6, v44")
    Q("v_bfe_u32 v45, v1, 4, 1\nv_lshl_add_u32 v44, v45, 5, v44\nv_and_b32 v45, 3, v1\nv_lshl_add_u32 v%d, v45, 3, v44" % vT0)
    Q("s_lshl_b32 s%d, s%d, 13\ns_add_u32 s%d, s%d, 65536\nv_add_u32 v%d, s%d, v%d" % (sT0, sCG, sT0, sT0, vT1, sT0, vT0))
    Q("s_mov_b32 s%d, 0\ns_mov_b32 s%d, -1\ns_mov_b32 s%d, 0xffff0000" % (sHH, sHH+1, sHIM))
    Q("s_cmp_eq_u32 s%d, 1\ns_cbranch_scc1 L_p1_role1" % sCG)

    def setup2():
        L = []
        L += IL("s_bitcmp1_b32 s%d, 1" % sW)
        g = IL("s_bitcmp1_b32 s%d, 1\ns_cselect_b32 s%d, s%d, s%d\ns_cselect_b32 s%d, s%d, s%d" % (sW, SW2, P_WU, P_WG, SW2+1, P_WU+1, P_WG+1))
        L = [g]
        L += IL("s_mov_b32 s%d, %d\ns_mov_b32 s%d, 0x20000" % (SW2+2, 512*2752, SW2+3))
        L += IL("s_lshl_b32 s%d, s%d, 6\ns_mul_i32 s%d, s%d, %d\ns_add_u32 s%d, s%d, s%d" % (sW2OFF, sUB, sT0, sRGP, 32*2752, sW2OFF, sW2OFF, sT0))
        L += IL("v_lshrrev_b32 v45, 3, v1\ns_movk_i32 s%d, 2752\nv_mul_lo_u32 v45, v45, s%d\nv_bfe_u32 v46, v1, 4, 1\nv_lshlrev_b32 v46, 2, v46\nv_and_b32 v44, 7, v1\nv_xor_b32 v46, v46, v44\nv_lshl_add_u32 v%d, v46, 4, v45" % (sT0, sT0, vK2[0]))
        for i in range(1, 4): L += IL("v_add_u32 v%d, %d, v%d" % (vK2[i], (8*2752-1024)*i, vK2[0]))
        L.append(IL("s_add_u32 s%d, s%d, %d\ns_addc_u32 s%d, s%d, 0" % (SWS, P_WS, WS_ST, SWS+1, P_WS+1)))
        L += IL("s_mov_b32 s%d, %d\ns_mov_b32 s%d, 0x20000" % (SWS+2, WSM_BYTES, SWS+3))
        L += IL("s_lshl_b32 s%d, s%d, 11" % (sUOFF1, sUA))
        L.append(IL("s_lshl_b32 s%d, s%d, 11\ns_cmp_eq_u32 s%d, 0\ns_cselect_b32 s%d, s%d, s%d" % (sT0, sUC, sCG, sUOFF2, sUOFF2, sT0)))
        L += IL("v_lshlrev_b32 v%d, 4, v4\nv_lshl_add_u32 v%d, v3, 9, v%d" % (vAO, vAO, vAO))
        L += IL("v_bfe_u32 v44, v1, 2, 2\nv_lshl_add_u32 v44, v3, 3, v44\nv_lshlrev_b32 v44, 7, v44")
        L += IL("v_bfe_u32 v45, v1, 4, 1\nv_lshlrev_b32 v45, 1, v45\nv_bfe_u32 v46, v1, 1, 1\nv_add_u32 v45, v45, v46\ns_lshl_b32 s%d, s%d, 2\nv_add_u32 v45, s%d, v45" % (sT0, sCG, sT0))
        L += IL("v_bfe_u32 v46, v1, 3, 1\nv_lshlrev_b32 v46, 2, v46\nv_xor_b32 v45, v45, v46\nv_lshl_add_u32 v44, v45, 4, v44\nv_and_b32 v45, 1, v1\nv_lshl_add_u32 v%d, v45, 3, v44\nv_add_u32 v%d, 65536, v%d" % (vT2a, vT2b, vT2a))
        L += IL("s_lshl_b32 s%d, s3, 2\ns_lshl_b32 s%d, s%d, 1\ns_add_u32 s%d, s%d, s%d\ns_mul_i32 s%d, s%d, %d" % (sT0, sT1, sRGP, sT0, sT0, sT1, sT0, sT0, RG_BYTES))
        L.append(IL("s_add_u32 s%d, s%d, s%d\ns_addc_u32 s%d, s%d, 0" % (SA0, P_WS, sT0, SA0+1, P_WS+1)))
        L.append(IL("s_add_u32 s%d, s%d, %d\ns_addc_u32 s%d, s%d, 0" % (SA1, SA0, RG_BYTES, SA1+1, SA0+1)))
        L += IL("s_mov_b32 s%d, %d\ns_mov_b32 s%d, 0x20000\ns_mov_b32 s%d, %d\ns_mov_b32 s%d, 0x20000" % (SA0+2, RG_BYTES, SA0+3, SA1+2, RG_BYTES, SA1+3))
        for b in XAUG + WAUG: L += IL("v_mov_b32 v%d, 0\nv_mov_b32 v%d, 0" % (b+2, b+3))
        return L
    def phase0_stats():
        L = []
        for r in range(4): L.append(I("v_mov_b32 v%d, 0" % (72+r)))
        for e in range(4):
            for row in range(2):
                x = 64 + 4*row + e; lo = 76 + 2*row; hi = 77 + 2*row
                L += IL("v_lshlrev_b32 v%d, 16, v%d\nv_and_b32 v%d, s%d, v%d" % (lo, x, hi, sHIM, x))
                L += IL("v_add_f32 v%d, v%d, v%d\nv_fmac_f32 v%d, v%d, v%d\nv_add_f32 v%d, v%d, v%d\nv_fmac_f32 v%d, v%d, v%d" % (72+2*row, 72+2*row, lo, 73+2*row, lo, lo, 72+2*row, 72+2*row, hi, 73+2*row, hi, hi))
        for mod in ("row_shr:1", "row_shr:2", "row_shr:4", "row_shr:8", "row_bcast:15 row_mask:0xa", "row_bcast:31 row_mask:0xc"):
            for r in range(4):
                if mod.startswith("row_shr"): L.append(I("v_add_f32_dpp v%d, v%d, v%d %s bound_ctrl:0" % (72+r, 72+r, 72+r, mod)))
                else: L.append(I("v_add_f32_dpp v%d, v%d, v%d %s" % (72+r, 72+r, 72+r, mod)))
        LL = [[], []]
        for row in range(2):
            mean, ex2, t = 72+2*row, 73+2*row, 76+row
            K = LL[row]
            K.append(I("v_mul_f32 v%d, 0x%x, v%d" % (mean, f2u(1/512.), mean)))
            K.append(I("v_mul_f32 v%d, 0x%x, v%d" % (ex2, f2u(1/512.), ex2)))
            K.append(I("v_fma_f32 v%d, -v%d, v%d, v%d" % (ex2, mean, mean, ex2)))
            K.append(I("v_max_f32 v%d, 0, v%d" % (ex2, ex2)))
            bf16r(K, mean, t); bf16r(K, ex2, t)
            K.append(I("v_add_f32 v%d, 0x%x, v%d" % (ex2, f2u(1e-5), ex2)))
            bf16r(K, ex2, t)
            K.append(I("v_sqrt_f32 v%d, v%d" % (ex2, ex2)))
            bf16r(K, ex2, t)
            K.append(I("v_rcp_f32 v%d, v%d" % (ex2, ex2)))
        for a_, b_ in zip(*LL): L.append(a_); L.append(b_)
        L += IL("v_mov_b32 v78, v75\nv_mov_b32 v76, v74\nv_mov_b32 v74, v73")
        return L
    def phase0_colsum(role):
        L = []
        L.append(Wait(vm_tag='p0c'))
        L += IL("v_mov_b32 v80, 0x3f803f80\nv_mov_b32 v81, v80\nv_mov_b32 v82, v80\nv_mov_b32 v83, v80")
        L += IL("s_add_u32 s%d, s%d, %d" % (sM0, sLDSW, CSL))
        L += IL("s_cmp_lt_u32 s3, 4\ns_cbranch_scc0 L_p1_c1ffn%d" % role)
        for s in range(4):
            L += IL("v_add_u32 v%d, s%d, v%d\nds_read_b128 v[%d:%d], v%d" % (84+s, sM0, 84+s, 192+4*s, 195+4*s, 84+s))
        L += IL("s_branch L_p1_c1done%d\nL_p1_c1ffn%d:" % (role, role))
        L += IL("v_add_u32 v84, s%d, v%d" % (sM0, vT0))
        for s in range(4):
            L += IL("ds_read_b64_tr_b16 v[%d:%d], v84 offset:%d\nds_read_b64_tr_b16 v[%d:%d], v84 offset:%d" % (192+4*s, 193+4*s, 1024*s, 194+4*s, 195+4*s, 1024*s+256))
        L += IL("L_p1_c1done%d:" % role)
        L += IL("s_waitcnt lgkmcnt(0)")
        for s in range(4):
            L += IL("v_mfma_f32_32x32x16_bf16 v[224:239], v[80:83], v[%d:%d], %s" % (192+4*s, 195+4*s, "0" if s == 0 else "v[224:239]"))
        return L
    def phase0_colsum_write():
        return IL("s_lshl_b32 s%d, s%d, 7\nv_lshlrev_b32 v84, 2, v2\nv_add_u32 v84, s%d, v84\nv_add_u32 v84, %d, v84\nds_write_b32 v84, v224" % (sM0, sW, sM0, CSR))

    def reads(lst, cg, g):
        p, ks = g // 32, g % 32
        t = g // 4; s = g % 4
        b = WF + 8*(g & 3)
        if p == 0:
            xs = t % 4; wsl = 4 + t % 4
            for r in range(2):
                lst.append(I("ds_read_b128 a[%d:%d], v%d offset:%d" % (XF(r, ks), XF(r, ks)+3, vXA[s], xs*16384 + r*4096)))
        else:
            wsl = w2slot(t-8)
        if p == 0 and cg == 0:
            for acc in range(2):
                lst.append(I("ds_read_b128 v[%d:%d], v%d offset:%d" % (b+4*acc, b+4*acc+3, vBA[s], (wsl-4)*16384 + acc*4096)))
        elif p == 0:
            for acc in range(2):
                o = (wsl & 3)*16384 + acc*4096 + s*1024
                lst.append(I("ds_read_b64_tr_b16 v[%d:%d], v%d offset:%d" % (b+4*acc, b+4*acc+1, vT1, o)))
                lst.append(I("ds_read_b64_tr_b16 v[%d:%d], v%d offset:%d" % (b+4*acc+2, b+4*acc+3, vT1, o+256)))
        else:
            vt = vT2b if wsl >= 4 else vT2a
            for acc in range(2):
                o = (wsl & 3)*16384 + acc*8192 + s*2048
                lst.append(I("ds_read_b64_tr_b16 v[%d:%d], v%d offset:%d" % (b+4*acc, b+4*acc+1, vt, o)))
                lst.append(I("ds_read_b64_tr_b16 v[%d:%d], v%d offset:%d" % (b+4*acc+2, b+4*acc+3, vt, o+512)))
    def mfma(cg, p, x, w, r, acc, first):
        A = (acca if p == 0 else accb)(r, acc)
        c = "0" if first else "v[%d:%d]" % (A, A+15)
        if p == 0 and cg == 0: return I("v_mfma_f32_32x32x16_bf16 v[%d:%d], %s, %s, %s" % (A, A+15, x, w, c))
        return I("v_mfma_f32_32x32x16_bf16 v[%d:%d], %s, %s, %s" % (A, A+15, w, x, c))

    def nonce_pre(role):
        L = []
        if role == 0:
            L += IL("s_cmp_lg_u32 s%d, 0\ns_cbranch_scc1 L_p1_n0skip\nv_readfirstlane_b32 s%d, v91\ns_cmp_eq_u32 s%d, 0\ns_cbranch_scc1 L_p1_nslow\nL_p1_nok:\nv_mov_b32 v92, %d\nds_write_b32 v92, v91\nL_p1_n0skip:" % (sW, sM0, sM0, NONL))
            SLOW.extend(["L_p1_nslow:", "s_mov_b32 s%d, 400000" % sSPIN, "L_p1_nspin:", "s_sleep 1",
                         "buffer_load_dword v91, off, s[%d:%d], 0 sc1" % (SDBG, SDBG+3), "s_waitcnt vmcnt(0)",
                         "v_readfirstlane_b32 s%d, v91" % sM0, "s_sub_u32 s%d, s%d, 1" % (sSPIN, sSPIN), "s_cmp_eq_u32 s%d, 0" % sSPIN, "s_cbranch_scc1 L_p1_nok",
                         "s_cmp_eq_u32 s%d, 0" % sM0, "s_cbranch_scc1 L_p1_nspin", "s_branch L_p1_nok"])
        return L
    def nonce_post(role):
        L = []
        L += IL("v_mov_b32 v92, %d\nds_read_b32 v91, v92" % NONL)
        L += IL("v_lshlrev_b32 v93, 2, v2\nv_add_u32 v93, %d, v93" % CSR)
        L += IL("ds_read2_b32 v[84:85], v93 offset0:0 offset1:32\nds_read2_b32 v[86:87], v93 offset0:64 offset1:96")
        L += IL("v_readfirstlane_b32 s%d, v91" % sNON)
        L += IL("v_mov_b32 v73, v91\nv_mov_b32 v75, v91\nv_mov_b32 v77, v91\nv_mov_b32 v79, v91")
        L += IL("s_lshl_b32 s%d, s3, 11\ns_lshl_b32 s%d, s4, 7\ns_add_u32 s%d, s%d, s%d\ns_lshl_b32 s%d, s%d, 5\ns_add_u32 s%d, s%d, s%d" % (sM0, sM1, sM0, sM0, sM1, sM1, sW, sM0, sM0, sM1))
        L.append(IL("s_mov_b32 exec_lo, 0\ns_mov_b32 exec_hi, 0x80000000") +
                 [I("buffer_store_dwordx4 v[72:75], off, s[%d:%d], s%d sc1" % (SWS, SWS+3, sM0), 'pub'), I("buffer_store_dwordx4 v[76:79], off, s[%d:%d], s%d offset:16 sc1" % (SWS, SWS+3, sM0), 'pub')] +
                 IL("s_mov_b64 exec, -1"))
        L += IL("v_add_f32 v84, v84, v85\nv_add_f32 v86, v86, v87\nv_add_f32 v84, v84, v86\nv_mov_b32 v85, v91")
        L += IL("s_lshl_b32 s%d, s4, 3\ns_lshr_b32 s%d, s3, 1\ns_add_u32 s%d, s%d, s%d\ns_lshl_b32 s%d, s%d, 9" % (sM0, sM1, sM0, sM0, sM1, sM0, sM0))
        L += IL("s_and_b32 s%d, s3, 1\ns_lshl_b32 s%d, s%d, 3\ns_add_u32 s%d, s%d, s%d\ns_add_u32 s%d, s%d, %d" % (sM1, sM1, sM1, sM0, sM0, sM1, sM0, sM0, WS_CS))
        L += IL("v_lshlrev_b32 v93, 4, v2")
        L.append(IL("s_cmp_eq_u32 s%d, 0\ns_cselect_b32 exec_lo, -1, 0\ns_mov_b32 exec_hi, 0" % sW) +
                 [I("buffer_store_dwordx2 v[84:85], v93, s[%d:%d], s%d offen sc1" % (SWS, SWS+3, sM0), 'pub')] + IL("s_mov_b64 exec, -1"))
        if role == 0:
            L += IL("v_mov_b32 v84, 0\nv_mov_b32 v85, v91\nv_mov_b32 v86, 0\nv_mov_b32 v87, v91")
            L += IL("s_lshl_b32 s%d, s2, 9\ns_add_u32 s%d, s%d, %d" % (sM0, sM0, sM0, WS_ZR))
            L.append(I("buffer_store_dwordx4 v[84:87], v93, s[%d:%d], s%d offen sc1" % (SWS, SWS+3, sM0), 'zr'))
        return L

    LNQ = ACCB
    sLA, sLB = sUOFF1, None
    def ln_addr(cg):
        B = []
        B += IL("s_lshl_b32 s%d, s3, 11\ns_lshl_b32 s%d, s%d, 10\ns_add_u32 s%d, s%d, s%d" % (SC0, SC0+1, sRGP, SC0, SC0, SC0+1))
        B += IL("v_lshlrev_b32 v64, 4, v4")
        B += IL("s_lshl_b32 s%d, s4, 12\ns_add_u32 s%d, s%d, %d" % (SC0+1, SC0+1, SC0+1, WS_CS + cg*1024))
        B += IL("v_lshlrev_b32 v65, 4, v2")
        return B
    def ln_issue(cg, tag='ln'):
        B = []
        B.append(I("buffer_load_dwordx4 v[%d:%d], v64, s[%d:%d], s%d offen sc1" % (LNQ+16, LNQ+19, SWS, SWS+3, SC0), tag))
        B.append(I("buffer_load_dwordx4 v[%d:%d], v64, s[%d:%d], s%d offen offset:512 sc1" % (LNQ+20, LNQ+23, SWS, SWS+3, SC0), tag))
        for k in range(2):
            for acc in range(2):
                q = LNQ + 8*k + 4*acc
                B.append(I("buffer_load_dwordx4 v[%d:%d], v65, s[%d:%d], s%d offen offset:%d sc1" % (q, q+3, SWS, SWS+3, SC0+1, k*2048 + acc*512), tag))
        return B
    def ln_check(cg):
        L = []
        lab = "L_p1_ln%d" % cg
        seq = ["v_mov_b32 v66, 0"]
        for q in range(LNQ, LNQ+24, 4):
            seq.append("v_bitop3_b32 v66, v66, v%d, s%d bitop3:0xf6" % (q+1, sNON))
            seq.append("v_bitop3_b32 v66, v66, v%d, s%d bitop3:0xf6" % (q+3, sNON))
        seq.append("v_cmp_ne_u32 vcc, 0, v66")
        L.append(Wait(vm_tag='ln'))
        for x in seq: L.append(I(x))
        L += IL("s_cbranch_vccnz %s_slow\n%s_ok:" % (lab, lab))
        S = ["%s_slow:" % lab, "s_mov_b32 s%d, 400000" % sSPIN, "%s_spin:" % lab, "s_sleep 1"]
        S += [x.text for x in ln_issue(cg)]
        S += ["s_waitcnt vmcnt(0)"] + seq + ["s_nop 4", "s_sub_u32 s%d, s%d, 1" % (sSPIN, sSPIN), "s_cmp_eq_u32 s%d, 0" % sSPIN, "s_cbranch_scc1 %s_ok" % lab,
              "s_cbranch_vccnz %s_spin" % lab, "s_branch %s_ok" % lab]
        SLOW.extend(S)
        return L
    def ln_build(cg, WA2):
        C = []
        for r in range(2):
            mean, inv = LNQ+16+4*r, LNQ+18+4*r
            C += IL("v_mul_f32 v70, v%d, v%d\nv_mul_f32 v%d, 0x%x, v%d\nv_mul_f32 v71, v70, v%d\nv_rcp_f32 v%d, v70\nv_mul_f32 v%d, 0x%x, v71" % (inv, inv, vK0[r], f2u(GC0), inv, inv, vS2[r], vK1[r], f2u(GC1)))
            C += IL("v_xor_b32 v70, 0x80000000, v%d\nv_cndmask_b32 v70, v70, 0, s[%d:%d]\nv_lshrrev_b32 v%d, 16, v70\nv_and_or_b32 v%d, v70, s%d, v%d" % (mean, sHH, sHH+1, XAUG[r]+1, XAUG[r], sHIM, XAUG[r]+1))
            if cg == 0:
                C += IL("s_lshl_b32 s%d, s%d, 8\nv_lshlrev_b32 v70, 2, v4\nv_add_u32 v70, s%d, v70\nv_add_u32 v70, %d, v70\nds_write_b32 v70, v%d" % (sT1, sRGP, sT1, INVL + 128*r, inv))
        for k in range(2):
            for acc in range(2):
                q = LNQ + 8*k + 4*acc
                d0, d1 = (WAUG[acc], WAUG[acc]+1) if k == 0 else (WA2[2*acc], WA2[2*acc+1])
                C += IL("v_add_f32 v%d, v%d, v%d\nv_and_b32 v%d, s%d, v%d\nv_sub_f32 v%d, v%d, v%d\nv_and_b32 v%d, s%d, v%d\nv_sub_f32 v%d, v%d, v%d" % (q, q, q+2, q+1, sHIM, q, q+2, q, q+1, q+3, sHIM, q+2, q+2, q+2, q+3))
                C += IL("v_lshrrev_b32 v%d, 16, v%d\nv_or_b32 v%d, v%d, v%d\nv_lshrrev_b32 v%d, 16, v%d" % (q+1, q+1, d0, q+1, q+3, d1, q+2))
        return C

    def role_main(cg, dens, go_steps, pre_bar, extra, WA2):
        M = []
        dq = []
        M.append(Wait(vm_tag=('C', 0)))
        M.append(I("s_barrier"))
        M += ST(0)
        reads(M, cg, 0); reads(M, cg, 1)
        dq += dma_x(2, ('C', 2)) + dma_w(6, ('C', 2)) + dma_x(3, ('C', 3)) + dma_w(7, ('C', 3))
        order = [(0, 0), (1, 0), (0, 1), (1, 1)]
        pace = [1, 0]
        for g in range(64):
            p, ks, t, s = g // 32, g % 32, g // 4, g % 4
            b = WF + 8*(g & 3)
            bar = (s == 2 and t < 15)
            if not bar and g + 2 < 64: reads(M, cg, g+2)
            for n, (r, acc) in enumerate(order):
                x = "a[%d:%d]" % (XF(r, ks), XF(r, ks)+3); w = "v[%d:%d]" % (b+4*acc, b+4*acc+3)
                if bar and n == 0: M.append(Wait(lgkm_all=True))
                M.append(mfma(cg, p, x, w, r, acc, ks == 0))
                if bar and n == 0:
                    if (t+1) in go_steps: M.append(('GO',))
                    M += flat(pre_bar.get(t+1, []))
                    need = ('C', t+1)
                    while any(getattr(x_, 'tag', None) == need for gq in dq for x_ in gq):
                        M += dq.pop(0)
                    M.append(Wait(lgkm_all=True))
                    M.append(Wait(vm_tag=need))
                    M.append(I("s_barrier"))
                    if t+1 in (4, 8, 12): M += ST((t+1)//4)
                    if t < 4:
                        dq += dma_x(t, ('C', t+4)) + dma_w(4+t, ('C', t+4))
                    if (t+1) in w2sched:
                        for q, tq in enumerate(w2sched):
                            if tq == t+1: dq += dma_w2(w2slot(q), ('C', 8+q))
                    reads(M, cg, g+2)
                    M += flat(extra.get(t+1, []))
                    pace[0] = max(1, 15 // max(1, len(dq))); pace[1] = 0
                if dq and pace[1] % pace[0] == 0: M += dq.pop(0)
                pace[1] += 1
                M.append(('SLOT', dens(t)))
            if ks == 31:
                if p == 1:
                    for acc in range(2):
                        M += IL("v_mov_b32 v%d, v%d\nv_mov_b32 v%d, v%d" % (WAUG[acc], WA2[2*acc], WAUG[acc]+1, WA2[2*acc+1]))
                M.append(('GO',) if ('aug%d' % p) in go_steps else ('SLOT', 0))
                for n, (r, acc) in enumerate(order):
                    x = "v[%d:%d]" % (XAUG[r], XAUG[r]+3); w = "v[%d:%d]" % (WAUG[acc], WAUG[acc]+3)
                    M.append(mfma(cg, p, x, w, r, acc, False))
        assert not dq
        return M
    for q, tq in enumerate(w2sched):
        assert tq >= 5 + q//2, (q, tq)
        assert tq <= 8 + q - 1, (q, tq)

    R0 = []
    R0 += IL("v_lshlrev_b32 v88, 16, v88\nv_lshlrev_b32 v89, 16, v89\nv_lshlrev_b32 v90, 16, v90")
    R0 += IL("v_mul_f32 v92, 0x%x, v90\nv_exp_f32 v92, v92" % f2u(LOG2E))
    bf16r(R0, 92, 93)
    R0 += IL("v_mul_f32 v93, v92, v88\nv_mul_f32 v94, v92, v89")
    R0 += IL("v_mul_f32 v93, 0x%x, v93\nv_exp_f32 v93, v93" % f2u(LOG2E))
    R0 += IL("v_mul_f32 v94, 0.15915494, v94\nv_fract_f32 v94, v94\nv_cos_f32 v95, v94\nv_sin_f32 v94, v94")
    R0 += IL("v_mul_f32 v%d, v93, v95\nv_mul_f32 v%d, v93, v94" % (vLr, vLi))
    R0 += IL("v_add_f32 v92, -1.0, v%d" % vLr)
    R0 += IL("v_mul_f32 v93, v88, v88\nv_fmac_f32 v93, v89, v89\nv_rcp_f32 v93, v93\nv_add_f32 v93, v93, v93")
    R0 += IL("v_mul_f32 v94, v92, v88\nv_fmac_f32 v94, v%d, v89\nv_mul_f32 v%d, v94, v93" % (vLi, vcr))
    R0 += IL("v_mul_f32 v94, v%d, v88\nv_fma_f32 v94, -v92, v89, v94\nv_mul_f32 v%d, v94, v93" % (vLi, vci))
    R0 += IL("v_mov_b32 v%d, v%d\nv_mov_b32 v%d, v%d" % (vL16r, vLr, vL16i, vLi))
    for _ in range(4): csq(R0, vL16r, vL16i, 92)
    R0 += IL("v_mov_b32 v88, v%d\nv_mov_b32 v89, v%d" % (vL16r, vL16i)); csq(R0, 88, 89, 92)
    R0 += IL("v_mov_b32 v94, v88\nv_mov_b32 v95, v89"); csq(R0, 94, 95, 92)
    R0 += IL("v_mov_b32 v%d, v94\nv_mov_b32 v%d, v95" % (vL128r, vL128i)); csq(R0, vL128r, vL128i, 92)
    R0.append(IL("s_cmp_eq_u32 s%d, 1\ns_cselect_b32 s%d, 1.0, 0\ns_cselect_b32 s%d, -1, 0\ns_cselect_b32 s%d, 0, 1.0" % (sRGP, sRGPF, sAGM, sT1)))
    R0 += IL("s_mov_b32 s%d, 0" % (sAGM+1))
    R0 += IL("v_mul_f32 v94, s%d, v94\nv_mul_f32 v95, s%d, v95\nv_add_f32 v94, s%d, v94" % (sRGPF, sRGPF, sT1))
    cmul_into(R0, 92, 93, 94, 95, vL16r, vL16i)
    R0 += IL("v_cndmask_b32 v%d, v94, v92, s[%d:%d]\nv_cndmask_b32 v%d, v95, v93, s[%d:%d]" % (vF[0][0], sHH, sHH+1, vF[0][1], sHH, sHH+1))
    cmul_into(R0, vF[1][0], vF[1][1], vF[0][0], vF[0][1], 88, 89)
    WA2_0 = [0, 16, 18, 5]
    F0 = []
    F0 += setup2()
    F0 += phase0_stats()
    F0.append('STOP')
    F0 += phase0_colsum_write()
    F0 += R0
    F0.append('STOP')
    F0 += nonce_post(0)
    F0 += ln_addr(0)
    F0.append('STOP')
    F0 += ln_issue(0)
    F0.append('STOP')
    F0 += ln_build(0, WA2_0)
    F0 += IL("v_sub_f32 v%d, 0, v%d\nv_sub_f32 v%d, 0, v%d\nv_sub_f32 v%d, 0, v%d" % (vnLi, vLi, vnL16i, vL16i, vnci, vci))
    F0.append('STOP')
    T = [7, 8, 19, 20, 21]
    Ublk = [U0, acca(0, 0)]
    F0 += IL("s_lshl_b32 s%d, s%d, 8\nv_lshlrev_b32 v%d, 6, v3\nv_add_u32 v%d, s%d, v%d\nv_add_u32 v%d, %d, v%d" % (sT0, sRGP, T[0], T[0], sT0, T[0], T[0], INVL, T[0]))
    SO = [(22, 23), (24, 25)]
    for r in range(2):
        ar0, ai0 = acca(r, 0), acca(r, 1)
        D = Ublk[r]
        for q4 in range(4):
            qd = WAUG[q4 & 1]
            if r == 0 and q4 == 0: F0.append(I("ds_read_b128 v[%d:%d], v%d offset:%d" % (qd, qd+3, T[0], 0)))
            nq = r*4 + q4 + 1
            if nq < 8: F0.append(I("ds_read_b128 v[%d:%d], v%d offset:%d" % (WAUG[nq & 1], WAUG[nq & 1]+3, T[0], nq*16 if nq < 4 else 128 + (nq-4)*16)))
            for jj in range(4):
                q = 4*q4 + jj
                ar, ai = ar0+q, ai0+q; d0, d1 = D+2*q, D+2*q+1
                F0 += IL("v_mul_f32 v%d, v%d, v%d\nv_mul_f32 v%d, v%d, v%d\nv_mul_f32 v%d, v%d, v%d\nv_mul_f32 v%d, v%d, v%d\nv_fmac_f32 v%d, v%d, v%d\nv_fmac_f32 v%d, v%d, v%d" % (ar, qd+jj, ar, ai, qd+jj, ai, d0, vcr, ar, d1, vcr, ai, d0, vnci, ai, d1, vci, ar))
                if q == 0: pr, pi = d0, d1
                else:
                    nr, ni = ((T[1], T[2]), (T[3], T[4]))[q & 1]
                    if q == 15: nr, ni = SO[r]
                    F0 += IL("v_fma_f32 v%d, v%d, v%d, v%d\nv_fma_f32 v%d, v%d, v%d, v%d\nv_fmac_f32 v%d, v%d, v%d\nv_fmac_f32 v%d, v%d, v%d" % (nr, vLr, pr, d0, ni, vLr, pi, d1, nr, vnLi, pi, ni, vLi, pr))
                    pr, pi = nr, ni
        F0 += IL("s_lshl_b32 s%d, s%d, 10\nv_lshlrev_b32 v%d, 3, v2\nv_lshl_add_u32 v%d, v3, 8, v%d\nv_add_u32 v%d, s%d, v%d\nv_add_u32 v%d, %d, v%d\nds_write_b64 v%d, v[%d:%d]" % (sT0, sRGP, T[1], T[1], T[1], T[1], sT0, T[1], T[1], SEG + 512*r, T[1], T[1], SO[r][0], SO[r][1]))
    F0.append('STOP')
    X = acca(1, 0)
    vPP = [(X+24, X+25), (X+26, X+27)]
    F0 += IL("v_lshlrev_b32 v%d, 3, v2\nv_add_u32 v%d, %d, v%d" % (T[0], T[0], SEG, T[0]))
    F0 += IL("ds_read2_b64 v[%d:%d], v%d offset0:0 offset1:32\nds_read2_b64 v[%d:%d], v%d offset0:64 offset1:96" % (X, X+3, T[0], X+4, X+7, T[0]))
    F0 += IL("s_lshl_b32 s%d, s%d, 10\nv_add_u32 v%d, s%d, v%d" % (sT0, sRGP, T[0], sT0, T[0]))
    F0 += IL("ds_read2_b64 v[%d:%d], v%d offset0:0 offset1:32\nds_read2_b64 v[%d:%d], v%d offset0:64 offset1:96" % (X+8, X+11, T[0], X+12, X+15, T[0]))
    cacc(F0, X+2, X+3, vL16r, vL16i, vnL16i, X, X+1)
    cacc(F0, X+4, X+5, vL16r, vL16i, vnL16i, X+2, X+3)
    cacc(F0, X+6, X+7, vL16r, vL16i, vnL16i, X+4, X+5)
    F0 += IL("v_mul_f32 v%d, s%d, v%d\nv_mul_f32 v%d, s%d, v%d" % (X+6, sRGPF, X+6, X+7, sRGPF, X+7))
    cacc(F0, X+8, X+9, vL16r, vL16i, vnL16i, X+6, X+7)
    cacc(F0, X+10, X+11, vL16r, vL16i, vnL16i, X+8, X+9)
    cacc(F0, X+12, X+13, vL16r, vL16i, vnL16i, X+10, X+11)
    cacc(F0, X+14, X+15, vL16r, vL16i, vnL16i, X+12, X+13)
    F0 += IL("v_mov_b32 v%d, v%d\nv_mov_b32 v%d, s%d\nv_mov_b32 v%d, v%d\nv_mov_b32 v%d, s%d" % (X+16, X+14, X+17, sNON, X+18, X+15, X+19, sNON))
    F0 += IL("s_lshl_b32 s%d, s4, 13\ns_lshl_b32 s%d, s3, 9\ns_add_u32 s%d, s%d, s%d\ns_add_u32 s%d, s%d, %d\nv_lshlrev_b32 v%d, 4, v2" % (sT0, sT1, sT0, sT0, sT1, sT0, sT0, WS_AGR, T[0]))
    F0.append([I("s_mov_b64 exec, s[%d:%d]" % (sAGM, sAGM+1)),
               I("buffer_store_dwordx4 v[%d:%d], v%d, s[%d:%d], s%d offen sc1" % (X+16, X+19, T[0], SWS, SWS+3, sT0), 'agg'),
               I("s_mov_b64 exec, -1")])
    for c in range(2):
        F0.append(I("v_cndmask_b32 v%d, v%d, v%d, s[%d:%d]" % (vPP[0][c], X+6+c, X+8+c, sHH, sHH+1)))
        F0.append(I("v_cndmask_b32 v%d, v%d, v%d, s[%d:%d]" % (vPP[1][c], X+10+c, X+12+c, sHH, sHH+1)))
    GOB = 12
    main0 = role_main(0, lambda t: dens0[0] if t < 8 else dens0[1], {2, 3, 5, 8, 'aug0', GOB},
                      {2: phase0_colsum(0), 3: nonce_pre(0), 8: ln_check(0)}, {}, WA2_0)
    body0, left0 = interleave2(main0, F0)
    assert not left0, len(left0)
    TL = Stream()
    TL.extend(ST(4))
    AGR = [WF + 4*k for k in range(8)] + [X + 4*k for k in range(6)] + [20]
    TL("v_lshlrev_b32 v7, 4, v2")
    TL("s_lshl_b32 s%d, s4, 13\ns_add_u32 s%d, s%d, %d" % (sT0, sT0, sT0, WS_AGR))
    TL("s_lshl_b32 s%d, s2, 9\ns_add_u32 s%d, s%d, %d" % (sT1, sT1, sT1, WS_ZR))
    TL("s_sub_u32 s%d, s3, 15\ns_lshl_b32 s%d, s%d, 9\ns_add_u32 s%d, s%d, s%d" % (sM0, sM0, sM0, sM0, sM0, sT0))
    def agg_loads():
        L = []
        for k in range(15):
            L.append("s_add_u32 s%d, s%d, %d" % (sM1, sM0, 512*k))
            L.append("s_cmp_ge_u32 s3, %d" % (15-k))
            L.append("s_cselect_b32 s%d, s%d, s%d" % (sM1, sM1, sT1))
            L.append("buffer_load_dwordx4 v[%d:%d], v7, s[%d:%d], s%d offen sc1" % (AGR[k], AGR[k]+3, SWS, SWS+3, sM1))
        return L
    def agg_chk():
        seq = ["v_mov_b32 v8, 0"]
        for k in range(15):
            seq.append("v_bitop3_b32 v8, v8, v%d, s%d bitop3:0xf6" % (AGR[k]+1, sNON))
            seq.append("v_bitop3_b32 v8, v8, v%d, s%d bitop3:0xf6" % (AGR[k]+3, sNON))
        seq.append("v_cmp_ne_u32 vcc, 0, v8")
        return seq
    for x in agg_loads(): TL(x)
    TL.extend(tail_ffn(sUOFF2, SA0, SA1))
    TL.extend(ST(5))
    for x in agg_chk(): TL(x)
    TL("s_cbranch_vccnz L_p1_agslow\nL_p1_agok:")
    SLOW.extend(["L_p1_agslow:", "s_mov_b32 s%d, 400000" % sSPIN, "L_p1_agspin:", "s_sleep 1"] + agg_loads() + ["s_waitcnt vmcnt(0)"] + agg_chk() +
                ["s_nop 4", "s_sub_u32 s%d, s%d, 1" % (sSPIN, sSPIN), "s_cmp_eq_u32 s%d, 0" % sSPIN, "s_cbranch_scc1 L_p1_agok", "s_cbranch_vccnz L_p1_agspin", "s_branch L_p1_agok"])
    TL.extend(ST(6))
    def pkstep(S, d, l, p, s):
        S("v_pk_fma_f32 v[%d:%d], v[%d:%d], v[%d:%d], v[%d:%d] op_sel_hi:[0,1,1]" % (d, d+1, l, l+1, p, p+1, s, s+1))
        S("v_pk_fma_f32 v[%d:%d], v[%d:%d], v[%d:%d], v[%d:%d] op_sel:[1,1,0] op_sel_hi:[1,0,1] neg_lo:[1,0,0]" % (d, d+1, l, l+1, p, p+1, d, d+1))
    for k in range(15): TL("v_mov_b32 v%d, v%d" % (AGR[k]+1, AGR[k]+2))
    for k in range(1, 15): pkstep(TL, AGR[k], vL128r, AGR[k-1], AGR[k])
    H = AGR[14]
    for r in range(2): pkstep(TL, vPP[r][0], vF[r][0], H, vPP[r][0])
    prev = [vPP[0][0], vPP[1][0]]
    for q in range(16):
        for r in range(2):
            d = Ublk[r] + 2*q
            pkstep(TL, d, vLr, prev[r], d)
            prev[r] = d
    TL("s_lshl_b32 s%d, s%d, 13\ns_add_u32 s%d, s%d, %d" % (sT0, sRGP, sT0, sT0, CSL))
    TL("v_lshlrev_b32 v7, 6, v2\nv_lshl_add_u32 v7, v3, 5, v7\nv_add_u32 v7, s%d, v7" % sT0)
    TL("v_add_u32 v8, s%d, v%d" % (sT0, vT0))
    TL("v_lshlrev_b32 v19, 4, v2\nv_lshl_add_u32 v19, v3, 9, v19")
    TL("s_lshl_b32 s%d, s4, 12\ns_add_u32 s%d, s%d, %d" % (sT1, sT1, sT1, 86*1024))
    for r in range(2):
        Z = accb(r, 1); D = Ublk[r]
        for q2 in range(8):
            TL("v_cvt_pk_bf16_f32 v%d, v%d, v%d" % (Z+q2, D+4*q2, D+4*q2+2))
            TL("v_cvt_pk_bf16_f32 v%d, -v%d, -v%d" % (Z+8+q2, D+4*q2+1, D+4*q2+3))
        o = r*4096
        TL("ds_write_b128 v7, v[%d:%d] offset:%d\nds_write_b128 v7, v[%d:%d] offset:%d\nds_write_b128 v7, v[%d:%d] offset:%d\nds_write_b128 v7, v[%d:%d] offset:%d" % (Z, Z+3, o, Z+4, Z+7, o+16, Z+8, Z+11, o+2048, Z+12, Z+15, o+2064))
    for r in range(2):
        Z = WF + 16*r; o = r*4096
        for part in range(2):
            for s in range(2):
                q = Z + 4*(2*part+s); oo = o + part*2048 + s*1024
                TL("ds_read_b64_tr_b16 v[%d:%d], v8 offset:%d\nds_read_b64_tr_b16 v[%d:%d], v8 offset:%d" % (q, q+1, oo, q+2, q+3, oo+256))
        for part in range(2):
            for s in range(2):
                q = Z + 4*(2*part+s)
                TL("buffer_store_dwordx4 v[%d:%d], v19, s[%d:%d], s%d offen offset:%d%s" % (q, q+3, (SA0, SA1)[r], (SA0, SA1)[r]+3, sT1, (2*part+s)*1024, A2MOD), 'a2')
    TL("s_branch L_p1_fin")
    full0 = finalize(model_pre + [I("L_MARK_Q:")] + Q.ins + body0 + TL.ins)
    idx = [k for k, o in enumerate(full0) if o.text == "L_MARK_Q:"][0]
    role0 = full0[idx+1:]
    pro = finalize(P.ins)

    WA2_1 = [52, 53, 54, 55]
    F1 = []
    F1 += setup2()
    F1 += phase0_stats()
    F1.append('STOP')
    F1 += phase0_colsum_write()
    F1.append('STOP')
    F1 += nonce_post(1)
    F1 += ln_addr(1)
    F1.append('STOP')
    F1 += ln_issue(1)
    F1.append('STOP')
    F1 += ln_build(1, WA2_1)
    F1.append('STOP')
    tt = [19, 20, 21, 22]
    for r in range(2):
        F1 += ffn_epilogue(r, acca(r, 0), acca(r, 1), sUOFF1, tt, (SA0, SA1)[r])
    main1 = role_main(1, lambda t: dens1[0] if t < 8 else dens1[1], {2, 3, 5, 8, 'aug0'}, {2: phase0_colsum(1), 8: ln_check(1)}, {}, WA2_1)
    body1, left1 = interleave2(main1, F1)
    assert not left1, len(left1)
    T1 = Stream()
    T1.extend(ST(4))
    T1.extend(tail_ffn(sUOFF2, SA0, SA1))
    T1.extend(ST(5)); T1.extend(ST(6))
    r1full = finalize(model_pre + Q.ins + [I("L_p1_role1:")] + body1 + T1.ins)
    idx = [k for k, o in enumerate(r1full) if o.text == "L_p1_role1:"][0]
    role1 = r1full[idx:]
    F = Stream()
    F("L_p1_fin:")
    if stamp == 1:
        F("s_waitcnt vmcnt(0)\ns_memtime s[22:23]\ns_memrealtime s[24:25]\ns_waitcnt lgkmcnt(0)")
        srd(F, 52, P_WS, 1 << 20, 0x2000000)
        F("v_mov_b32 v8, s0\nv_mov_b32 v9, s98")
        for k in range(8): F("v_mov_b32 v%d, s%d" % (10+k, 8+2*k))
        F("v_mov_b32 v18, s24\nv_mov_b32 v19, 0")
        F("s_lshl_b32 s26, s2, 3\ns_add_u32 s26, s26, s%d\ns_lshl_b32 s26, s26, 6\nv_mov_b32 v20, s26" % sW)
        F("v_cmp_eq_u32 vcc, 0, v1\ns_and_saveexec_b64 s[28:29], vcc")
        F("buffer_store_dwordx4 v[8:11], v20, s[52:55], 0 offen\nbuffer_store_dwordx4 v[12:15], v20, s[52:55], 0 offen offset:16\nbuffer_store_dwordx4 v[16:19], v20, s[52:55], 0 offen offset:32")
    F("L_p1_end:\ns_endpgm")
    fin = finalize(F.ins)
    slow = "\n".join(SLOW) + "\n"
    return kernel_text(name, render(pro) + render(role0) + render(role1) + render(fin) + slow, 512, 102, accum=256)
```

```python
from common import *
WS_FL = 0x60000
def I(text, tag=None): return Ins(text, tag)
def IL(text, tag=None): return [Ins(l.strip(), tag) for l in text.strip().split("\n") if l.strip()]

class R:
    ACC = 64
    AB = 128
    WB = 192
LDSW_BYTES = 16384
RED = 65536

def p2_body(S, E, sg, fused=False, a2ld="", pollfn=None, stamp=False):
    pass

def gen_p2(name, stamp=False, a2ld=""):
    S = Stream()
    ACC, AB, WB = R.ACC, R.AB, R.WB
    S("s_cmp_ge_u32 s2, 256\ns_cbranch_scc1 L_p2_end")
    if stamp: S("s_memrealtime s[60:61]\ns_memtime s[62:63]")
    S("s_load_dwordx16 s[8:23], s[0:1], 0\ns_load_dwordx16 s[24:39], s[0:1], 64")
    S("s_and_b32 s3, s2, 1\ns_lshl_b32 s3, s3, 3\ns_bfe_u32 s40, s2, 0x30003\ns_add_u32 s3, s3, s40")
    S("s_bfe_u32 s4, s2, 0x20001\ns_lshl_b32 s4, s4, 2\ns_lshr_b32 s40, s2, 6\ns_add_u32 s4, s4, s40")
    S("v_lshrrev_b32 v2, 6, v0\nv_and_b32 v1, 63, v0\nv_readfirstlane_b32 s5, v2")
    S("s_waitcnt lgkmcnt(0)")
    body = p2_phase("s3", "s4", "s5", dict(x=8, cre=18, cim=20, dsk=24, wd=32, out=34, ws=38), stamp=stamp, a2ld=a2ld)
    pre = render(finalize(S.ins))
    return kernel_text(name, pre + body + "L_p2_end:\ns_endpgm\n", 256, 102)

def p2_phase(sM, sJ, sW, P, stamp=False, a2ld="", poll=None, lab="L_p2"):
    ACC, AB, WB = R.ACC, R.AB, R.WB
    SA0, SA1, SWD, SC, SXo, SDS, SO, SST = 40, 44, 48, 52, 56, 60, 64, 68
    sMT, sNT, sLB, sAOF, sWOF, sIT, sT0, sT1, sM0 = 72, 73, 74, 75, 76, 77, 78, 79, 80
    S = Stream()
    S("s_lshr_b32 s%d, %s, 3\ns_lshl_b32 s%d, %s, 1\ns_add_u32 s%d, s%d, s%d\ns_and_b32 s%d, %s, 7" % (sT0, sJ, sMT, sM, sMT, sMT, sT0, sNT, sJ))
    S("s_lshl_b32 s%d, %s, 14" % (sLB, sW))
    S("v_lshrrev_b32 v4, 3, v1\nv_bfe_u32 v5, v1, 4, 1\nv_lshlrev_b32 v5, 2, v5\nv_and_b32 v6, 7, v1\nv_xor_b32 v5, v5, v6\nv_lshlrev_b32 v5, 4, v5\nv_lshl_add_u32 v3, v4, 10, v5")
    S("v_add_u32 v7, %d, v3" % (8192 - 1024))
    srd(S, SWD, P['wd'], 1376*1024)
    S("s_lshl_b32 s%d, s%d, 7\ns_lshl_b32 s%d, %s, 14\ns_add_u32 s%d, s%d, s%d" % (sWOF, sNT, sT0, sW, sWOF, sWOF, sT0))
    def w_dma(lst, slot):
        lst += IL("s_add_u32 m0, s%d, %d" % (sLB, slot*2048))
        lst += IL("buffer_load_dwordx4 v3, s[%d:%d], s%d offen lds\nbuffer_load_dwordx4 v7, s[%d:%d], s%d offen offset:1024 lds\ns_add_u32 s%d, s%d, 65536" % (SWD, SWD+3, sWOF, SWD, SWD+3, sWOF, sWOF, sWOF))
    L0 = []
    for b in range(8): w_dma(L0, b)
    S.extend(L0)
    S("s_mul_i32 s%d, s%d, %d" % (sT0, sMT, 2*RG_BYTES))
    srd(S, SA0, P['ws'], 86*1024, "s%d" % sT0)
    S("s_add_u32 s%d, s%d, %d" % (sT0, sT0, RG_BYTES))
    srd(S, SA1, P['ws'], 86*1024, "s%d" % sT0)
    S("v_lshlrev_b32 v8, 4, v1\ns_lshl_b32 s%d, %s, 10" % (sAOF, sW))
    S("v_bfe_u32 v4, v1, 2, 2\nv_bfe_u32 v5, v1, 5, 1\nv_lshl_add_u32 v4, v5, 2, v4\nv_lshlrev_b32 v4, 7, v4")
    S("v_bfe_u32 v5, v1, 4, 1\nv_lshlrev_b32 v5, 1, v5\nv_bfe_u32 v6, v1, 1, 1\nv_add_u32 v5, v5, v6\nv_bfe_u32 v6, v1, 3, 1\nv_lshlrev_b32 v6, 2, v6\nv_xor_b32 v5, v5, v6")
    S("v_lshl_add_u32 v4, v5, 4, v4\nv_and_b32 v5, 1, v1\nv_lshl_add_u32 v4, v5, 3, v4\nv_add_u32 v9, s%d, v4\nv_xor_b32 v10, 64, v9" % sLB)
    S("v_lshrrev_b32 v11, 4, v1\ns_lshl_b32 s%d, %s, 4\nv_add_u32 v11, s%d, v11" % (sT0, sW, sT0))
    S("v_and_b32 v12, 15, v1\ns_lshl_b32 s%d, s%d, 6\nv_add_u32 v13, s%d, v11" % (sT0, sMT, sT0))
    S("s_lshl_b32 s%d, s%d, 7\nv_lshlrev_b32 v14, 10, v13\nv_lshl_add_u32 v14, v12, 3, v14\nv_add_u32 v14, s%d, v14" % (sT0, sNT, sT0))
    S("v_lshlrev_b32 v15, 4, v13\nv_lshlrev_b32 v16, 3, v12\nv_add_u32 v16, s%d, v16" % sT0)
    srd(S, SXo, P['x'], 2048*1024); srd(S, SDS, P['dsk'], 1024); srd(S, SO, P['out'], 2048*2048); srd(S, SST, P['ws'], 2048*16, WS_ST)
    XR, SR, DR = 18, 26, 34
    S("s_mov_b32 s84, 0\ns_movk_i32 s85, 4096\ns_movk_i32 s86, 8192\ns_movk_i32 s87, 12288")
    for i in range(4): S("buffer_load_dwordx2 v[%d:%d], v14, s[%d:%d], s%d offen" % (XR+2*i, XR+2*i+1, SXo, SXo+3, 84+i))
    S("buffer_load_dwordx2 v[%d:%d], v16, s[%d:%d], 0 offen" % (DR, DR+1, SDS, SDS+3))
    for i in range(64): S("v_mov_b32 v%d, 0" % (ACC+i))
    txt = render(finalize(S.ins))
    if poll: txt += poll
    S = Stream()
    for i in range(4):
        S("buffer_load_dword v%d, v15, s[%d:%d], 0 offen offset:%d%s\nbuffer_load_dword v%d, v15, s[%d:%d], 0 offen offset:%d%s" % (SR+2*i, SST, SST+3, 64*i, a2ld, SR+2*i+1, SST, SST+3, 64*i+8, a2ld))
    def a_ld(b):
        r = AB + 8*b
        return "buffer_load_dwordx4 v[%d:%d], v8, s[%d:%d], s%d offen%s\nbuffer_load_dwordx4 v[%d:%d], v8, s[%d:%d], s%d offen%s\ns_add_u32 s%d, s%d, 4096\n" % (r, r+3, SA0, SA0+3, sAOF, a2ld, r+4, r+7, SA1, SA1+3, sAOF, a2ld, sAOF, sAOF)
    for b in range(8): txt += ""
    txt += render(finalize(S.ins))
    for b in range(8): txt += a_ld(b)
    if stamp: txt += "s_memrealtime s[64+30:65+30]\n" if False else ""
    def tr(buf, slot):
        w = WB + 8*buf
        o = slot*2048
        return ("ds_read_b64_tr_b16 v[%d:%d], v9 offset:%d\nds_read_b64_tr_b16 v[%d:%d], v9 offset:%d\nds_read_b64_tr_b16 v[%d:%d], v10 offset:%d\nds_read_b64_tr_b16 v[%d:%d], v10 offset:%d\n"
                % (w, w+1, o, w+2, w+3, o+1024, w+4, w+5, o, w+6, w+7, o+1024))
    def mf(buf, b):
        w = WB + 8*buf; r = AB + 8*b; t = ""
        for a in range(2):
            for bb in range(2):
                acc = ACC + (a*2+bb)*16
                t += "v_mfma_f32_32x32x16_bf16 v[%d:%d], v[%d:%d], v[%d:%d], v[%d:%d]\n" % (acc, acc+15, w+4*a, w+4*a+3, r+4*bb, r+4*bb+3, acc, acc+15)
        return t
    txt += "s_waitcnt vmcnt(16)\n" + tr(0, 0)
    def kstep(b, vm):
        nb = (b+1) & 7
        t = "s_waitcnt vmcnt(%d)\n" % vm
        t += tr((b+1) & 1, nb)
        t += "s_waitcnt lgkmcnt(4)\n"
        t += mf(b & 1, b)
        t += "s_add_u32 m0, s%d, %d\n" % (sLB, b*2048)
        t += "buffer_load_dwordx4 v3, s[%d:%d], s%d offen lds\nbuffer_load_dwordx4 v7, s[%d:%d], s%d offen offset:1024 lds\ns_add_u32 s%d, s%d, 65536\n" % (SWD, SWD+3, sWOF, SWD, SWD+3, sWOF, sWOF, sWOF)
        t += a_ld(b)
        return t
    for b in range(8): txt += kstep(b, 14 + 2*b)
    txt += "s_mov_b32 s%d, 2\n%s_ffn:\n" % (sIT, lab)
    for b in range(8): txt += kstep(b, 24)
    txt += "s_sub_u32 s%d, s%d, 1\ns_cmp_lg_u32 s%d, 0\ns_cbranch_scc1 %s_ffn\n" % (sIT, sIT, sIT, lab)
    txt += "s_waitcnt vmcnt(0) lgkmcnt(0)\n"
    S = Stream()
    S("s_bitcmp1_b32 %s, 0\ns_cselect_b32 s%d, s%d, s%d\ns_cselect_b32 s%d, s%d, s%d\ns_mov_b32 s%d, %d\ns_mov_b32 s%d, 0x20000" % (sW, SC, P['cim'], P['cre'], SC+1, P['cim']+1, P['cre']+1, SC+2, 512*1024, SC+3))
    S("v_and_b32 v5, 7, v1\nv_lshrrev_b32 v4, 4, v1\nv_xor_b32 v5, v5, v4\nv_lshlrev_b32 v5, 4, v5\nv_lshrrev_b32 v4, 3, v1\nv_lshl_add_u32 v36, v4, 10, v5")
    S("v_xor_b32 v37, 64, v36\nv_add_u32 v38, 14336, v36\nv_add_u32 v39, %d, v37\nv_add_u32 v37, 7168, v37" % (14336+7168))
    S("s_lshl_b32 s%d, s%d, 16\ns_lshr_b32 s%d, %s, 1\ns_lshl_b32 s%d, s%d, 7\ns_add_u32 s%d, s%d, s%d" % (sWOF, sNT, sT0, sW, sT0, sT0, sWOF, sWOF, sT0))
    def c_dma(buf):
        t = ""
        for h in range(2):
            t += "s_add_u32 m0, s%d, %d\n" % (sLB, buf*8192 + h*4096)
            if h == 1: t += "s_add_u32 s%d, s%d, 32768\n" % (sT1, sWOF)
            so = sWOF if h == 0 else sT1
            for i in range(4):
                t += "buffer_load_dwordx4 v%d, s[%d:%d], s%d offen offset:%d lds\n" % (36+i, SC, SC+3, so, 1024*i)
        t += "s_add_u32 s%d, s%d, 256\n" % (sWOF, sWOF)
        return t
    S("s_mul_i32 s%d, s%d, %d\ns_add_u32 s%d, s%d, %d" % (sT0, sMT, 2*RG_BYTES, sT0, sT0, 86*1024))
    srd(S, SA0, P['ws'], 64*1024, "s%d" % sT0)
    S("s_add_u32 s%d, s%d, %d" % (sT0, sT0, RG_BYTES))
    srd(S, SA1, P['ws'], 64*1024, "s%d" % sT0)
    S("s_lshr_b32 s%d, %s, 1\ns_lshl_b32 s%d, s%d, 13\ns_and_b32 s%d, %s, 1\ns_lshl_b32 s%d, s%d, 11\ns_add_u32 s%d, s%d, s%d" % (sAOF, sW, sAOF, sAOF, sT0, sW, sT0, sT0, sAOF, sAOF, sT0))
    S("v_and_b32 v4, 31, v1\nv_lshrrev_b32 v5, 5, v1\nv_bfe_u32 v6, v4, 1, 3\nv_lshlrev_b32 v4, 7, v4\nv_add_u32 v4, s%d, v4" % sLB)
    for k in range(4):
        S("v_or_b32 v40, %d, v5\nv_xor_b32 v40, v40, v6\nv_lshl_add_u32 v%d, v40, 4, v4" % (2*k, 41+k))
    txt += render(finalize(S.ins))
    def ga_ld(buf):
        t = ""
        for k in range(4):
            jj, s = k >> 1, k & 1
            r = AB + 32*buf + 8*k
            o = jj*4096 + s*1024
            so = sAOF
            t += "buffer_load_dwordx4 v[%d:%d], v8, s[%d:%d], s%d offen offset:%d%s\n" % (r, r+3, SA0, SA0+3, so, s*1024, a2ld) if jj == 0 else "buffer_load_dwordx4 v[%d:%d], v8, s[%d:%d], s%d offen offset:%d%s\n" % (r, r+3, SA0, SA0+3, sT0, s*1024, a2ld)
            t += "buffer_load_dwordx4 v[%d:%d], v8, s[%d:%d], s%d offen offset:%d%s\n" % (r+4, r+7, SA1, SA1+3, so if jj == 0 else sT0, s*1024, a2ld)
        return "s_add_u32 s%d, s%d, 4096\n" % (sT0, sAOF) + t + "s_add_u32 s%d, s%d, 16384\n" % (sAOF, sAOF)
    txt += c_dma(0) + ga_ld(0) + c_dma(1) + ga_ld(1)
    for g in range(4):
        buf = g & 1
        txt += "s_waitcnt vmcnt(%d)\n" % (16 if g < 3 else 0)
        for k in range(4):
            w = WB + 8*(k & 1)
            for a in range(2):
                txt += "ds_read_b128 v[%d:%d], v%d offset:%d\n" % (w+4*a, w+4*a+3, 41+k, buf*8192 + a*4096)
            txt += "s_waitcnt lgkmcnt(0)\n"
            r = AB + 32*buf + 8*k
            for a in range(2):
                for bb in range(2):
                    acc = ACC + (a*2+bb)*16
                    txt += "v_mfma_f32_32x32x16_bf16 v[%d:%d], v[%d:%d], v[%d:%d], v[%d:%d]\n" % (acc, acc+15, w+4*a, w+4*a+3, r+4*bb, r+4*bb+3, acc, acc+15)
        if g + 2 < 4: txt += c_dma(buf) + ga_ld(buf)
    E = Stream()
    BUF = AB
    E("v_and_b32 v44, 31, v1\nv_lshrrev_b32 v45, 5, v1\nv_and_b32 v46, 15, v1\nv_xor_b32 v46, v46, v45\nv_lshlrev_b32 v46, 4, v46\nv_lshlrev_b32 v47, 8, v44")
    E("s_add_u32 s%d, s%d, %d\nv_add_u32 v47, s%d, v47" % (sT0, sLB, RED, sT0))
    for a in range(2):
        for g in range(4):
            E("v_xor_b32 v48, %d, v46\nv_add_u32 v%d, v47, v48" % ((8*a+2*g) << 4, 50 + a*4 + g))
    E("s_nop 7")
    for a in range(2):
        for bb in range(2):
            acc = ACC + (a*2+bb)*16
            for g in range(4):
                E("ds_write_b128 v%d, v[%d:%d] offset:%d" % (50+a*4+g, acc+4*g, acc+4*g+3, bb*8192))
    E.add(Wait(lgkm_all=True))
    E("s_barrier")
    for i in range(4):
        E("v_add_u32 v44, %d, v11\nv_and_b32 v45, 15, v44\nv_xor_b32 v45, v45, v12\nv_lshlrev_b32 v45, 4, v45\nv_lshl_add_u32 v%d, v44, 8, v45\nv_add_u32 v%d, %d, v%d" % (4*i, 58+i, 58+i, RED, 58+i))
    for i in range(4):
        for pw in range(4):
            r = BUF + (i*4+pw)*4
            E("ds_read_b128 v[%d:%d], v%d offset:%d" % (r, r+3, 58+i, pw*16384))
    E("s_lshl_b32 s%d, s%d, 8\nv_lshlrev_b32 v48, 11, v13\nv_lshl_add_u32 v48, v12, 4, v48\nv_add_u32 v48, s%d, v48" % (sT0, sNT, sT0))
    E("s_mov_b32 s84, 0\ns_movk_i32 s85, 8192\ns_movk_i32 s86, 16384\ns_movk_i32 s87, 24576\ns_mov_b32 s88, 0xffff0000")
    E("v_lshlrev_b32 v50, 16, v%d\nv_and_b32 v51, s88, v%d\nv_lshlrev_b32 v52, 16, v%d\nv_and_b32 v53, s88, v%d" % (DR, DR, DR+1, DR+1))
    blocks = []
    for i in range(4):
        B = []
        r = BUF + i*16
        x0 = XR+2*i; mean = SR+2*i; inv = SR+2*i+1
        T = 64 + i*16
        B += IL("v_lshlrev_b32 v%d, 16, v%d\nv_and_b32 v%d, s88, v%d\nv_lshlrev_b32 v%d, 16, v%d\nv_and_b32 v%d, s88, v%d" % (T, x0, T+1, x0, T+2, x0+1, T+3, x0+1))
        for e in range(4): B += IL("v_sub_f32 v%d, v%d, v%d" % (T+4+e, T+e, mean))
        def rnd(a, b, tmp):
            return IL("v_cvt_pk_bf16_f32 v%d, v%d, v%d\nv_lshlrev_b32 v%d, 16, v%d\nv_and_b32 v%d, s88, v%d" % (tmp, a, b, a, tmp, b, tmp))
        B += rnd(T+4, T+5, T+8) + rnd(T+6, T+7, T+9)
        for e in range(4): B += IL("v_mul_f32 v%d, v%d, v%d" % (T+4+e, T+4+e, inv))
        B += rnd(T+4, T+5, T+8) + rnd(T+6, T+7, T+9)
        for e in range(4): B += IL("v_mul_f32 v%d, v%d, v%d" % (T+4+e, T+4+e, 50+e))
        B += rnd(T+4, T+5, T+8) + rnd(T+6, T+7, T+9)
        B += IL("v_pk_add_f32 v[%d:%d], v[%d:%d], v[%d:%d]\nv_pk_add_f32 v[%d:%d], v[%d:%d], v[%d:%d]" % (T, T+1, T, T+1, T+4, T+5, T+2, T+3, T+2, T+3, T+6, T+7))
        B2 = []
        for h in range(2):
            B2 += IL("v_pk_add_f32 v[%d:%d], v[%d:%d], v[%d:%d]\nv_pk_add_f32 v[%d:%d], v[%d:%d], v[%d:%d]" % (r+2*h, r+2*h+1, r+2*h, r+2*h+1, r+4+2*h, r+5+2*h, r+8+2*h, r+9+2*h, r+8+2*h, r+9+2*h, r+12+2*h, r+13+2*h))
        for h in range(2):
            B2 += IL("v_pk_add_f32 v[%d:%d], v[%d:%d], v[%d:%d]\nv_pk_add_f32 v[%d:%d], v[%d:%d], v[%d:%d]" % (r+2*h, r+2*h+1, r+2*h, r+2*h+1, r+8+2*h, r+9+2*h, r+2*h, r+2*h+1, r+2*h, r+2*h+1, T+2*h, T+2*h+1))
        B2 += IL("buffer_store_dwordx4 v[%d:%d], v48, s[%d:%d], s%d offen" % (r, r+3, SO, SO+3, 84+i))
        blocks.append((B, B2))
    for k in range(len(blocks[0][0])):
        for i in range(4): E.add(blocks[i][0][k])
    for i in range(4): E.extend(blocks[i][1])
    txt += render(finalize(E.ins))
    return txt
```

```python
from common import *
from p1e import gen_p1
from p2c import gen_p2
import sys
st = int(sys.argv[1]) if len(sys.argv) > 1 else 0
o = header_comments()
o.append("; @launch kernel=p1_kernel grid=(256,1,1) block=(256,1,1) lds=163840")
o.append("; @launch kernel=p2_kernel grid=(256,1,1) block=(256,1,1) lds=131072")
o += ['.amdgcn_target "amdgcn-amd-amdhsa--gfx950"', ".text"]
t = "\n".join(o) + "\n" + gen_p1("p1_kernel", stamp=st) + gen_p2("p2_kernel")
open("t8s%d.s" % st if st else "t8.s", "w").write(t)
```

```python
from common import *
import p2c, p2d
import struct
def f2u(x): return struct.unpack('<I', struct.pack('<f', x))[0]
LOG2E = 1.4426950408889634
GC0 = -2.0 * LOG2E * 0.7978845608028654
GC1 = GC0 * 0.044715

M0 = 131072
CSL = M0; INVL = M0 + 16384; SEG = M0 + 16896; CSR = M0 + 18944; NONL = M0 + 19456
LDS_BYTES = 163840
WS_AGR = 0x10000; WS_CS = 0x30000; WS_ZR = 0x40000; WS_FL = 0x60000; WSM_BYTES = 0x70000
vNK = [5, 6, 7, 8]; vKN = [9, 10, 11, 12]; vK2 = vKN; vW = [13, 14, 15, 16]
vT0, vT1 = 17, 18
vXA = [19, 20, 21, 22]; vBA = [23, 24, 25, 26]
vAO = 27
vK0 = [28, 29]; vK1 = [30, 31]; vS2 = [32, 33]
vT2a, vT2b = 34, 35
XAUG = [36, 40]; WAUG = [44, 48]
vLr, vLi, vL16r, vL16i, vL128r, vL128i, vcr, vci = range(52, 60)
vF = [(60, 61), (62, 63)]
vnLi, vnL16i, vnci = 13, 14, 15
U0 = 64
WF = 96
ACCA = 128; ACCB = 192
def acca(r, acc): return ACCA + 32*r + 16*acc
def accb(r, acc): return ACCB + 32*r + 16*acc
def XF(r, ks): return 128*r + 4*ks
sM, sJ, sW, sRGP, sCG = 3, 4, 5, 6, 7
P_X, P_LRE, P_LIM, P_BRE, P_BIM, P_CRE, P_CIM, P_LDT = 8, 10, 12, 14, 16, 18, 20, 22
P_DSK, P_BX, P_WG, P_WU, P_WD, P_OUT, P_DBG, P_WS = 24, 26, 28, 30, 32, 34, 36, 38
SX, SW1, SW2, SA0, SA1, SWS, SDBG, SC0, SP = 40, 44, 48, 52, 56, 60, 64, 68, 72
sXOFF, sWOFF, sWSTR, sW2OFF, sLDSW, sUOFF1, sUOFF2, sT0, sT1, sNON, sHIM, sRGPF = range(76, 88)
sHH = 88; sAGM = 90; sM0, sM1, sSPIN = 92, 93, 94
sUA, sUB, sUC = 95, 96, 97
sXK, sXK2, sDO = 101, 100, 99

def I(text, tag=None): return Ins(text, tag)
def IL(text, tag=None): return [Ins(l.strip(), tag) for l in text.strip().split("\n") if l.strip()]
def bf16r(lst, x, t):
    lst.append(I("v_cvt_pk_bf16_f32 v%d, v%d, v%d" % (t, x, x)))
    lst.append(I("v_lshlrev_b32 v%d, 16, v%d" % (x, t)))
def cmul_into(lst, dr, di, ar, ai, br, bi):
    lst.append(I("v_mul_f32 v%d, v%d, v%d" % (dr, ar, br)))
    lst.append(I("v_mul_f32 v%d, v%d, v%d" % (di, ar, bi)))
    lst.append(I("v_fma_f32 v%d, -v%d, v%d, v%d" % (dr, ai, bi, dr)))
    lst.append(I("v_fmac_f32 v%d, v%d, v%d" % (di, ai, br)))
def csq(lst, r, i, t):
    lst.append(I("v_mul_f32 v%d, v%d, v%d" % (t, i, i)))
    lst.append(I("v_mul_f32 v%d, v%d, v%d" % (i, r, i)))
    lst.append(I("v_fma_f32 v%d, v%d, v%d, -v%d" % (r, r, r, t)))
    lst.append(I("v_add_f32 v%d, v%d, v%d" % (i, i, i)))
def cacc(lst, sr, si, lr, li, nli, pr, pi):
    lst.append(I("v_fmac_f32 v%d, v%d, v%d" % (sr, lr, pr)))
    lst.append(I("v_fmac_f32 v%d, v%d, v%d" % (si, lr, pi)))
    lst.append(I("v_fmac_f32 v%d, v%d, v%d" % (sr, nli, pi)))
    lst.append(I("v_fmac_f32 v%d, v%d, v%d" % (si, li, pr)))

A2MOD = ""
def ffn_epilogue(r, G, U, suoff, tt, SA):
    L = []
    for g in range(4):
        R = [4*g + jj for jj in range(4)]
        for jj, x in enumerate(R): L.append(I("v_mul_f32 v%d, v%d, v%d" % (tt[jj], G+x, G+x)))
        for jj, x in enumerate(R): L.append(I("v_fma_f32 v%d, v%d, v%d, v%d" % (tt[jj], tt[jj], vK1[r], vK0[r])))
        for jj, x in enumerate(R): L.append(I("v_mul_f32 v%d, v%d, v%d" % (tt[jj], tt[jj], G+x)))
        for jj, x in enumerate(R): L.append(I("v_exp_f32 v%d, v%d" % (tt[jj], tt[jj])))
        for jj, x in enumerate(R): L.append(I("v_mul_f32 v%d, v%d, v%d" % (U+x, U+x, G+x)))
        for jj, x in enumerate(R): L.append(I("v_fma_f32 v%d, v%d, v%d, v%d" % (tt[jj], tt[jj], vS2[r], vS2[r])))
        for jj, x in enumerate(R): L.append(I("v_rcp_f32 v%d, v%d" % (tt[jj], tt[jj])))
        for jj, x in enumerate(R): L.append(I("v_mul_f32 v%d, v%d, v%d" % (U+x, U+x, tt[jj])))
        base = G + 8*(g >> 1) + 2*(g & 1)
        L.append(I("v_cvt_pk_bf16_f32 v%d, v%d, v%d" % (base, U+4*g, U+4*g+1)))
        L.append(I("v_cvt_pk_bf16_f32 v%d, v%d, v%d" % (base+1, U+4*g+2, U+4*g+3)))
        if g & 1:
            q = G + 8*(g >> 1)
            L.append(I("buffer_store_dwordx4 v[%d:%d], v%d, s[%d:%d], s%d offen offset:%d%s" % (q, q+3, vAO, SA, SA+3, suoff, 1024*(g >> 1), A2MOD), 'a2'))
    return L
def ffn_epilogue_pk(r, G, U, suoff, tt, SA, KP):
    L = []
    k01, s2 = KP
    for g in range(4):
        P2 = [(4*g, tt[0]), (4*g+2, tt[2])]
        for x, t in P2: L.append(I("v_pk_mul_f32 v[%d:%d], v[%d:%d], v[%d:%d]" % (t, t+1, G+x, G+x+1, G+x, G+x+1)))
        for x, t in P2: L.append(I("v_pk_fma_f32 v[%d:%d], v[%d:%d], v[%d:%d], v[%d:%d] op_sel:[0,1,0] op_sel_hi:[1,1,0]" % (t, t+1, t, t+1, k01, k01+1, k01, k01+1)))
        for x, t in P2: L.append(I("v_pk_mul_f32 v[%d:%d], v[%d:%d], v[%d:%d]" % (t, t+1, t, t+1, G+x, G+x+1)))
        for x, t in P2:
            L.append(I("v_exp_f32 v%d, v%d" % (t, t))); L.append(I("v_exp_f32 v%d, v%d" % (t+1, t+1)))
        for x, t in P2: L.append(I("v_pk_mul_f32 v[%d:%d], v[%d:%d], v[%d:%d]" % (U+x, U+x+1, U+x, U+x+1, G+x, G+x+1)))
        for x, t in P2: L.append(I("v_pk_fma_f32 v[%d:%d], v[%d:%d], v[%d:%d], v[%d:%d] op_sel_hi:[1,0,0]" % (t, t+1, t, t+1, s2, s2+1, s2, s2+1)))
        for x, t in P2:
            L.append(I("v_rcp_f32 v%d, v%d" % (t, t))); L.append(I("v_rcp_f32 v%d, v%d" % (t+1, t+1)))
        for x, t in P2: L.append(I("v_pk_mul_f32 v[%d:%d], v[%d:%d], v[%d:%d]" % (U+x, U+x+1, U+x, U+x+1, t, t+1)))
        base = G + 8*(g >> 1) + 2*(g & 1)
        L.append(I("v_cvt_pk_bf16_f32 v%d, v%d, v%d" % (base, U+4*g, U+4*g+1)))
        L.append(I("v_cvt_pk_bf16_f32 v%d, v%d, v%d" % (base+1, U+4*g+2, U+4*g+3)))
        if g & 1:
            q = G + 8*(g >> 1)
            L.append(I("buffer_store_dwordx4 v[%d:%d], v%d, s[%d:%d], s%d offen offset:%d%s" % (q, q+3, vAO, SA, SA+3, suoff, 1024*(g >> 1), A2MOD), 'a2'))
    return L
def tail_ffn(suoff, SA0, SA1):
    L = []
    for r in range(2):
        b = XAUG[r]
        L.append(I("v_mov_b32 v%d, v%d" % (b, vK0[r]))); L.append(I("v_mov_b32 v%d, v%d" % (b+1, vK1[r])))
        L.append(I("v_mov_b32 v%d, v%d" % (b+2, vS2[r])))
    A = ffn_epilogue_pk(0, accb(0, 0), accb(0, 1), suoff, [44, 45, 46, 47], SA0, (XAUG[0], XAUG[0]+2))
    B = ffn_epilogue_pk(1, accb(1, 0), accb(1, 1), suoff, [48, 49, 50, 51], SA1, (XAUG[1], XAUG[1]+2))
    for a_, b_ in zip(A, B): L.append(a_); L.append(b_)
    return L

def gen_p1(name, stamp=0, dens0=(5, 6), dens1=(5, 4), a2mod="", rotmask=7, w2sched=(5, 6, 7, 8, 9, 10, 11, 12), fused=None, acq=False):
    global A2MOD
    A2MOD = a2mod
    SLOW = []
    RT = {0: 10, 2: 12, 4: 14}
    def ST(k):
        if stamp == 1: return [I("s_memtime s[%d:%d]" % (8+2*k, 9+2*k))]
        if stamp == 3 and k in RT: return [I("s_memrealtime s[%d:%d]" % (RT[k], RT[k]+1))]
        return []
    P = Stream()
    P("s_cmp_ge_u32 s2, 256\ns_cbranch_scc1 L_p1_end")
    P("s_load_dwordx16 s[8:23], s[0:1], 0\ns_load_dwordx16 s[24:39], s[0:1], 64")
    if stamp == 1: P("s_memrealtime s[0:1]\ns_memtime s[98:99]")
    if stamp == 3: P("s_memrealtime s[0:1]")
    P("v_lshrrev_b32 v1, 6, v0\nv_and_b32 v2, 31, v0\nv_readfirstlane_b32 s%d, v1\nv_and_b32 v1, 63, v0\nv_bfe_u32 v3, v0, 5, 1" % sW)
    P("s_and_b32 s3, s2, 1\ns_lshl_b32 s3, s3, 3\ns_bfe_u32 s%d, s2, 0x30003\ns_add_u32 s3, s3, s%d" % (sT0, sT0))
    P("s_bfe_u32 s4, s2, 0x20001\ns_lshl_b32 s4, s4, 2\ns_lshr_b32 s%d, s2, 6\ns_add_u32 s4, s4, s%d" % (sT0, sT0))
    P("v_and_b32 v46, 7, v1\nv_lshrrev_b32 v45, 4, v1\nv_xor_b32 v46, v46, v45\nv_lshlrev_b32 v46, 4, v46")
    P("v_lshrrev_b32 v45, 3, v1\nv_lshl_add_u32 v%d, v45, 10, v46" % vNK[0])
    P("v_xor_b32 v%d, 64, v%d" % (vNK[1], vNK[0]))
    P("v_add_u32 v%d, %d, v%d\nv_add_u32 v%d, %d, v%d" % (vNK[2], 14336, vNK[0], vNK[3], 14336+7168, vNK[1]))
    P("v_add_u32 v%d, 7168, v%d" % (vNK[1], vNK[1]))
    P("s_lshl_b32 s%d, s%d, 12" % (sLDSW, sW))
    P("s_lshl_b32 s%d, s3, 17\ns_lshl_b32 s%d, s%d, 15\ns_add_u32 s%d, s%d, s%d" % (sXOFF, sT0, sW, sXOFF, sXOFF, sT0))
    P("s_mov_b32 s%d, %d\ns_mov_b32 s%d, 0x20000" % (SX+2, 2048*1024, SX+3))
    P("v_lshrrev_b32 v45, 2, v1\ns_movk_i32 s%d, 2752\nv_mul_lo_u32 v45, v45, s%d\nv_and_b32 v46, 3, v1\nv_lshl_add_u32 v%d, v46, 4, v45" % (sT0, sT0, vKN[0]))
    for i in range(1, 4): P("v_add_u32 v%d, %d, v%d" % (vKN[i], 43008*i, vKN[0]))
    P("s_and_b32 s%d, s%d, 1\ns_lshr_b32 s%d, s%d, 1" % (sRGP, sW, sCG, sW))
    P("s_mul_i32 s%d, s4, 3\ns_add_u32 s%d, s%d, 1\ns_add_u32 s%d, s%d, 2" % (sUA, sUB, sUA, sUC, sUA))
    P("s_lshl_b32 s%d, s%d, 11" % (sUOFF2, sUB))
    P("s_cmp_lt_u32 s4, 11\ns_cbranch_scc1 L_p1_u")
    P("s_lshl_b32 s%d, s4, 1\ns_add_u32 s%d, s%d, 11\ns_add_u32 s%d, s%d, 1\ns_mov_b32 s%d, s%d\ns_mov_b32 s%d, 0x10000000" % (sUA, sUA, sUA, sUC, sUA, sUB, sUA, sUOFF2))
    P("L_p1_u:")
    P("s_and_b32 s%d, s3, %d\ns_lshl_b32 s%d, s%d, 7\ns_mov_b32 s%d, s%d" % (sXK, rotmask, sXK, sXK, sXK2, sXK))
    P("s_mov_b32 s%d, 0x20000" % (SW1+3))
    def dma(vo, S_, slot, tag, pre, post=[]):
        G = []
        g0 = [I(x) for x in pre] + [I("s_add_u32 m0, s%d, %d" % (sLDSW, slot*16384))]
        for i in range(4):
            ins = I("buffer_load_dwordx4 v%d, s[%d:%d], s%d offen offset:%d lds" % (vo[i], S_, S_+3, sDO, 1024*i), tag)
            if i == 0: G.append(g0 + [ins])
            elif i == 3: G.append([ins] + [I(x) for x in post])
            else: G.append([ins])
        return G
    def dma_x(slot, tag): return dma(vNK, SX, slot, tag, ["s_add_u32 s%d, s%d, s%d" % (sDO, sXOFF, sXK)])
    def dma_w(slot, tag): return dma(vW, SW1, slot, tag, ["s_mul_i32 s%d, s%d, s%d" % (sDO, sXK, sWSTR), "s_add_u32 s%d, s%d, s%d" % (sDO, sDO, sWOFF)],
                                     ["s_add_u32 s%d, s%d, 128" % (sXK, sXK), "s_and_b32 s%d, s%d, 1023" % (sXK, sXK)])
    def dma_w2(slot, tag): return dma(vK2, SW2, slot, tag, ["s_mul_i32 s%d, s%d, 1376" % (sDO, sXK2), "s_add_u32 s%d, s%d, s%d" % (sDO, sDO, sW2OFF)],
                                      ["s_add_u32 s%d, s%d, 128" % (sXK2, sXK2), "s_and_b32 s%d, s%d, 1023" % (sXK2, sXK2)])
    def w2slot(q): return q//2 if q % 2 == 0 else 4 + (q-1)//2
    P("s_waitcnt lgkmcnt(0)")
    P("s_mov_b32 s%d, s%d\ns_mov_b32 s%d, s%d" % (SX, P_X, SX+1, P_X+1))
    P.extend(flat(dma_x(0, ('C', 0))))
    P("s_cmp_lt_u32 s%d, 2\ns_cbranch_scc0 L_p1_wffn" % sW)
    P("s_cmp_eq_u32 s%d, 0\ns_cselect_b32 s%d, s%d, s%d\ns_cselect_b32 s%d, s%d, s%d" % (sW, SW1, P_BRE, P_BIM, SW1+1, P_BRE+1, P_BIM+1))
    P("s_mov_b32 s%d, %d\ns_movk_i32 s%d, 1\ns_lshl_b32 s%d, s4, 15" % (SW1+2, 512*1024, sWSTR, sWOFF))
    for i in range(4): P("v_mov_b32 v%d, v%d" % (vW[i], vNK[i]))
    P("s_branch L_p1_wdone\nL_p1_wffn:")
    P("s_cmp_eq_u32 s%d, 2\ns_cselect_b32 s%d, s%d, s%d\ns_cselect_b32 s%d, s%d, s%d" % (sW, SW1, P_WG, P_WU, SW1+1, P_WG+1, P_WU+1))
    P("s_mov_b32 s%d, %d\ns_movk_i32 s%d, %d\ns_lshl_b32 s%d, s%d, 6" % (SW1+2, 512*2752, sWSTR, 1376, sWOFF, sUA))
    for i in range(4): P("v_mov_b32 v%d, v%d" % (vW[i], vKN[i]))
    P("L_p1_wdone:")
    P.extend(flat(dma_w(4, ('C', 0))))
    srd(P, SDBG, P_DBG, 256)
    P("s_or_b32 s%d, s2, s%d\ns_cmp_lg_u32 s%d, 0\ns_cbranch_scc1 L_p1_nn" % (sT0, sW, sT0))
    P("s_memrealtime s[90:91]\ns_waitcnt lgkmcnt(0)\ns_or_b32 s90, s90, 1\nv_mov_b32 v44, s90")
    P("buffer_store_dword v44, off, s[%d:%d], 0 sc1\nL_p1_nn:" % (SDBG, SDBG+3))
    P.extend(flat(dma_x(1, ('C', 1)) + dma_w(5, ('C', 1))))
    P("v_lshlrev_b32 v47, 4, v1")
    P("s_lshl_b32 s%d, s3, 17\ns_lshl_b32 s%d, s4, 13\ns_add_u32 s%d, s%d, s%d\ns_lshl_b32 s%d, s%d, 11\ns_add_u32 s%d, s%d, s%d" % (sM0, sT0, sM0, sM0, sT0, sT0, sW, sM0, sM0, sT0))
    P("buffer_load_dwordx4 v[64:67], v47, s[%d:%d], s%d offen" % (SX, SX+3, sM0), 'p0s')
    P("buffer_load_dwordx4 v[68:71], v47, s[%d:%d], s%d offen offset:1024" % (SX, SX+3, sM0), 'p0s')
    P("s_lshr_b32 s%d, s3, 1" % sM0)
    P("s_and_b32 s%d, s3, 1\ns_lshl_b32 s%d, s%d, 2\ns_add_u32 s%d, s%d, s%d" % (sSPIN, sSPIN, sSPIN, sSPIN, sSPIN, sW))
    P("s_add_u32 m0, s%d, %d" % (sLDSW, CSL))
    P("s_cmp_lt_u32 s%d, 2\ns_cbranch_scc0 L_p1_c0ffn" % sM0)
    P("s_cmp_eq_u32 s%d, 0\ns_cselect_b32 s%d, s%d, s%d\ns_cselect_b32 s%d, s%d, s%d" % (sM0, SC0, P_BRE, P_BIM, SC0+1, P_BRE+1, P_BIM+1))
    P("s_mov_b32 s%d, %d\ns_mov_b32 s%d, 0x20000" % (SC0+2, 512*1024, SC0+3))
    P("s_lshl_b32 s%d, s4, 15\ns_lshl_b32 s%d, s%d, 7\ns_add_u32 s%d, s%d, s%d" % (sT0, sT1, sSPIN, sT0, sT0, sT1))
    for i in range(4): P("buffer_load_dwordx4 v%d, s[%d:%d], s%d offen offset:%d lds" % (vNK[i], SC0, SC0+3, sT0, 1024*i), 'p0c')
    P("s_branch L_p1_c0done\nL_p1_c0ffn:")
    P("s_bitcmp1_b32 s%d, 0\ns_cselect_b32 s%d, s%d, s%d\ns_cselect_b32 s%d, s%d, s%d" % (sM0, SC0, P_WU, P_WG, SC0+1, P_WU+1, P_WG+1))
    P("s_mov_b32 s%d, %d\ns_mov_b32 s%d, 0x20000" % (SC0+2, 512*2752, SC0+3))
    P("s_lshr_b32 s%d, s%d, 1" % (sT1, sM0))
    P("s_cmp_eq_u32 s%d, 1\ns_cselect_b32 s%d, s%d, s%d\ns_cmp_eq_u32 s%d, 2\ns_cselect_b32 s%d, s%d, s%d" % (sT1, sT0, sUA, sUC, sT1, sT0, sUB, sT0))
    P("s_lshl_b32 s%d, s%d, 6\ns_mul_i32 s%d, s%d, %d\ns_add_u32 s%d, s%d, s%d" % (sT0, sT0, sT1, sSPIN, 64*2752, sT0, sT0, sT1))
    for i in range(4): P("buffer_load_dwordx4 v%d, s[%d:%d], s%d offen offset:%d lds" % (vKN[i], SC0, SC0+3, sT0, 1024*i), 'p0c2')
    P("L_p1_c0done:")
    model_pre = [x for x in P.ins if getattr(x, 'tag', None) != 'p0c2' and not (x.op == 'buffer_store_dword')]

    Q = Stream()
    Q("s_lshl_b32 s%d, s4, 6\nv_lshl_add_u32 v44, v2, 1, s%d" % (sT0, sT0))
    Q("s_movk_i32 s%d, 1024\ns_mov_b32 s%d, 0x20000" % (SP+2, SP+3))
    for k, p in enumerate((P_LRE, P_LIM, P_LDT)):
        Q("s_mov_b32 s%d, s%d\ns_mov_b32 s%d, s%d\nbuffer_load_ushort v%d, v44, s[%d:%d], 0 offen" % (SP, p, SP+1, p+1, 88+k, SP, SP+3))
    Q("buffer_load_dword v91, off, s[%d:%d], 0 sc1" % (SDBG, SDBG+3), 'non')
    Q("v_bfe_u32 v4, v2, 2, 1\nv_lshlrev_b32 v4, 4, v4\nv_lshrrev_b32 v46, 3, v2\nv_lshl_add_u32 v4, v46, 2, v4\nv_and_b32 v46, 3, v2\nv_add_u32 v4, v4, v46")
    Q("v_bfe_u32 v46, v4, 1, 3\ns_lshl_b32 s%d, s%d, 13\nv_lshlrev_b32 v45, 7, v4\nv_add_u32 v45, s%d, v45" % (sT0, sRGP, sT0))
    for s in range(4):
        Q("v_or_b32 v44, %d, v3\nv_xor_b32 v44, v44, v46\nv_lshl_add_u32 v%d, v44, 4, v45" % (2*s, vXA[s]))
    Q("v_bfe_u32 v46, v2, 1, 3\nv_lshlrev_b32 v45, 7, v2")
    for s in range(4):
        Q("v_or_b32 v44, %d, v3\nv_xor_b32 v44, v44, v46\nv_lshl_add_u32 v%d, v44, 4, v45" % (2*s, 84+s))
        Q("v_add_u32 v%d, 65536, v%d" % (vBA[s], 84+s))
    Q("v_bfe_u32 v44, v1, 2, 2\nv_lshl_add_u32 v44, v3, 3, v44\nv_lshlrev_b32 v44, 6, v44")
    Q("v_bfe_u32 v45, v1, 4, 1\nv_lshl_add_u32 v44, v45, 5, v44\nv_and_b32 v45, 3, v1\nv_lshl_add_u32 v%d, v45, 3, v44" % vT0)
    Q("s_lshl_b32 s%d, s%d, 13\ns_add_u32 s%d, s%d, 65536\nv_add_u32 v%d, s%d, v%d" % (sT0, sCG, sT0, sT0, vT1, sT0, vT0))
    Q("s_mov_b32 s%d, 0\ns_mov_b32 s%d, -1\ns_mov_b32 s%d, 0xffff0000" % (sHH, sHH+1, sHIM))
    Q("s_cmp_eq_u32 s%d, 1\ns_cbranch_scc1 L_p1_role1" % sCG)

    def setup2():
        L = []
        L += IL("s_bitcmp1_b32 s%d, 1" % sW)
        g = IL("s_bitcmp1_b32 s%d, 1\ns_cselect_b32 s%d, s%d, s%d\ns_cselect_b32 s%d, s%d, s%d" % (sW, SW2, P_WU, P_WG, SW2+1, P_WU+1, P_WG+1))
        L = [g]
        L += IL("s_mov_b32 s%d, %d\ns_mov_b32 s%d, 0x20000" % (SW2+2, 512*2752, SW2+3))
        L += IL("s_lshl_b32 s%d, s%d, 6\ns_mul_i32 s%d, s%d, %d\ns_add_u32 s%d, s%d, s%d" % (sW2OFF, sUB, sT0, sRGP, 32*2752, sW2OFF, sW2OFF, sT0))
        L += IL("v_lshrrev_b32 v45, 3, v1\ns_movk_i32 s%d, 2752\nv_mul_lo_u32 v45, v45, s%d\nv_bfe_u32 v46, v1, 4, 1\nv_lshlrev_b32 v46, 2, v46\nv_and_b32 v44, 7, v1\nv_xor_b32 v46, v46, v44\nv_lshl_add_u32 v%d, v46, 4, v45" % (sT0, sT0, vK2[0]))
        for i in range(1, 4): L += IL("v_add_u32 v%d, %d, v%d" % (vK2[i], (8*2752-1024)*i, vK2[0]))
        L.append(IL("s_add_u32 s%d, s%d, %d\ns_addc_u32 s%d, s%d, 0" % (SWS, P_WS, WS_ST, SWS+1, P_WS+1)))
        L += IL("s_mov_b32 s%d, %d\ns_mov_b32 s%d, 0x20000" % (SWS+2, WSM_BYTES, SWS+3))
        L += IL("s_lshl_b32 s%d, s%d, 11" % (sUOFF1, sUA))
        L.append(IL("s_lshl_b32 s%d, s%d, 11\ns_cmp_eq_u32 s%d, 0\ns_cselect_b32 s%d, s%d, s%d" % (sT0, sUC, sCG, sUOFF2, sUOFF2, sT0)))
        L += IL("v_lshlrev_b32 v%d, 4, v4\nv_lshl_add_u32 v%d, v3, 9, v%d" % (vAO, vAO, vAO))
        L += IL("v_bfe_u32 v44, v1, 2, 2\nv_lshl_add_u32 v44, v3, 3, v44\nv_lshlrev_b32 v44, 7, v44")
        L += IL("v_bfe_u32 v45, v1, 4, 1\nv_lshlrev_b32 v45, 1, v45\nv_bfe_u32 v46, v1, 1, 1\nv_add_u32 v45, v45, v46\ns_lshl_b32 s%d, s%d, 2\nv_add_u32 v45, s%d, v45" % (sT0, sCG, sT0))
        L += IL("v_bfe_u32 v46, v1, 3, 1\nv_lshlrev_b32 v46, 2, v46\nv_xor_b32 v45, v45, v46\nv_lshl_add_u32 v44, v45, 4, v44\nv_and_b32 v45, 1, v1\nv_lshl_add_u32 v%d, v45, 3, v44\nv_add_u32 v%d, 65536, v%d" % (vT2a, vT2b, vT2a))
        L += IL("s_lshl_b32 s%d, s3, 2\ns_lshl_b32 s%d, s%d, 1\ns_add_u32 s%d, s%d, s%d\ns_mul_i32 s%d, s%d, %d" % (sT0, sT1, sRGP, sT0, sT0, sT1, sT0, sT0, RG_BYTES))
        L.append(IL("s_add_u32 s%d, s%d, s%d\ns_addc_u32 s%d, s%d, 0" % (SA0, P_WS, sT0, SA0+1, P_WS+1)))
        L.append(IL("s_add_u32 s%d, s%d, %d\ns_addc_u32 s%d, s%d, 0" % (SA1, SA0, RG_BYTES, SA1+1, SA0+1)))
        L += IL("s_mov_b32 s%d, %d\ns_mov_b32 s%d, 0x20000\ns_mov_b32 s%d, %d\ns_mov_b32 s%d, 0x20000" % (SA0+2, RG_BYTES, SA0+3, SA1+2, RG_BYTES, SA1+3))
        for b in XAUG + WAUG: L += IL("v_mov_b32 v%d, 0\nv_mov_b32 v%d, 0" % (b+2, b+3))
        return L
    def phase0_stats():
        L = []
        for r in range(4): L.append(I("v_mov_b32 v%d, 0" % (72+r)))
        for e in range(4):
            for row in range(2):
                x = 64 + 4*row + e; lo = 76 + 2*row; hi = 77 + 2*row
                L += IL("v_lshlrev_b32 v%d, 16, v%d\nv_and_b32 v%d, s%d, v%d" % (lo, x, hi, sHIM, x))
                L += IL("v_add_f32 v%d, v%d, v%d\nv_fmac_f32 v%d, v%d, v%d\nv_add_f32 v%d, v%d, v%d\nv_fmac_f32 v%d, v%d, v%d" % (72+2*row, 72+2*row, lo, 73+2*row, lo, lo, 72+2*row, 72+2*row, hi, 73+2*row, hi, hi))
        for mod in ("row_shr:1", "row_shr:2", "row_shr:4", "row_shr:8", "row_bcast:15 row_mask:0xa", "row_bcast:31 row_mask:0xc"):
            for r in range(4):
                if mod.startswith("row_shr"): L.append(I("v_add_f32_dpp v%d, v%d, v%d %s bound_ctrl:0" % (72+r, 72+r, 72+r, mod)))
                else: L.append(I("v_add_f32_dpp v%d, v%d, v%d %s" % (72+r, 72+r, 72+r, mod)))
        LL = [[], []]
        for row in range(2):
            mean, ex2, t = 72+2*row, 73+2*row, 76+row
            K = LL[row]
            K.append(I("v_mul_f32 v%d, 0x%x, v%d" % (mean, f2u(1/512.), mean)))
            K.append(I("v_mul_f32 v%d, 0x%x, v%d" % (ex2, f2u(1/512.), ex2)))
            K.append(I("v_fma_f32 v%d, -v%d, v%d, v%d" % (ex2, mean, mean, ex2)))
            K.append(I("v_max_f32 v%d, 0, v%d" % (ex2, ex2)))
            bf16r(K, mean, t); bf16r(K, ex2, t)
            K.append(I("v_add_f32 v%d, 0x%x, v%d" % (ex2, f2u(1e-5), ex2)))
            bf16r(K, ex2, t)
            K.append(I("v_sqrt_f32 v%d, v%d" % (ex2, ex2)))
            bf16r(K, ex2, t)
            K.append(I("v_rcp_f32 v%d, v%d" % (ex2, ex2)))
        for a_, b_ in zip(*LL): L.append(a_); L.append(b_)
        L += IL("v_mov_b32 v78, v75\nv_mov_b32 v76, v74\nv_mov_b32 v74, v73")
        return L
    def phase0_colsum(role):
        L = []
        L.append(Wait(vm_tag='p0c'))
        L += IL("v_mov_b32 v80, 0x3f803f80\nv_mov_b32 v81, v80\nv_mov_b32 v82, v80\nv_mov_b32 v83, v80")
        L += IL("s_add_u32 s%d, s%d, %d" % (sM0, sLDSW, CSL))
        L += IL("s_cmp_lt_u32 s3, 4\ns_cbranch_scc0 L_p1_c1ffn%d" % role)
        for s in range(4):
            L += IL("v_add_u32 v%d, s%d, v%d\nds_read_b128 v[%d:%d], v%d" % (84+s, sM0, 84+s, 192+4*s, 195+4*s, 84+s))
        L += IL("s_branch L_p1_c1done%d\nL_p1_c1ffn%d:" % (role, role))
        L += IL("v_add_u32 v84, s%d, v%d" % (sM0, vT0))
        for s in range(4):
            L += IL("ds_read_b64_tr_b16 v[%d:%d], v84 offset:%d\nds_read_b64_tr_b16 v[%d:%d], v84 offset:%d" % (192+4*s, 193+4*s, 1024*s, 194+4*s, 195+4*s, 1024*s+256))
        L += IL("L_p1_c1done%d:" % role)
        L += IL("s_waitcnt lgkmcnt(0)")
        for s in range(4):
            L += IL("v_mfma_f32_32x32x16_bf16 v[224:239], v[80:83], v[%d:%d], %s" % (192+4*s, 195+4*s, "0" if s == 0 else "v[224:239]"))
        return L
    def phase0_colsum_write():
        return IL("s_lshl_b32 s%d, s%d, 7\nv_lshlrev_b32 v84, 2, v2\nv_add_u32 v84, s%d, v84\nv_add_u32 v84, %d, v84\nds_write_b32 v84, v224" % (sM0, sW, sM0, CSR))

    def reads(lst, cg, g):
        p, ks = g // 32, g % 32
        t = g // 4; s = g % 4
        b = WF + 8*(g & 3)
        if p == 0:
            xs = t % 4; wsl = 4 + t % 4
            for r in range(2):
                lst.append(I("ds_read_b128 a[%d:%d], v%d offset:%d" % (XF(r, ks), XF(r, ks)+3, vXA[s], xs*16384 + r*4096)))
        else:
            wsl = w2slot(t-8)
        if p == 0 and cg == 0:
            for acc in range(2):
                lst.append(I("ds_read_b128 v[%d:%d], v%d offset:%d" % (b+4*acc, b+4*acc+3, vBA[s], (wsl-4)*16384 + acc*4096)))
        elif p == 0:
            for acc in range(2):
                o = (wsl & 3)*16384 + acc*4096 + s*1024
                lst.append(I("ds_read_b64_tr_b16 v[%d:%d], v%d offset:%d" % (b+4*acc, b+4*acc+1, vT1, o)))
                lst.append(I("ds_read_b64_tr_b16 v[%d:%d], v%d offset:%d" % (b+4*acc+2, b+4*acc+3, vT1, o+256)))
        else:
            vt = vT2b if wsl >= 4 else vT2a
            for acc in range(2):
                o = (wsl & 3)*16384 + acc*8192 + s*2048
                lst.append(I("ds_read_b64_tr_b16 v[%d:%d], v%d offset:%d" % (b+4*acc, b+4*acc+1, vt, o)))
                lst.append(I("ds_read_b64_tr_b16 v[%d:%d], v%d offset:%d" % (b+4*acc+2, b+4*acc+3, vt, o+512)))
    def mfma(cg, p, x, w, r, acc, first):
        A = (acca if p == 0 else accb)(r, acc)
        c = "0" if first else "v[%d:%d]" % (A, A+15)
        if p == 0 and cg == 0: return I("v_mfma_f32_32x32x16_bf16 v[%d:%d], %s, %s, %s" % (A, A+15, x, w, c))
        return I("v_mfma_f32_32x32x16_bf16 v[%d:%d], %s, %s, %s" % (A, A+15, w, x, c))

    def nonce_pre(role):
        L = []
        if role == 0:
            L += IL("s_cmp_lg_u32 s%d, 0\ns_cbranch_scc1 L_p1_n0skip\nv_readfirstlane_b32 s%d, v91\ns_cmp_eq_u32 s%d, 0\ns_cbranch_scc1 L_p1_nslow\nL_p1_nok:\nv_mov_b32 v92, %d\nds_write_b32 v92, v91\nL_p1_n0skip:" % (sW, sM0, sM0, NONL))
            SLOW.extend(["L_p1_nslow:", "s_mov_b32 s%d, 400000" % sSPIN, "L_p1_nspin:", "s_sleep 1",
                         "buffer_load_dword v91, off, s[%d:%d], 0 sc1" % (SDBG, SDBG+3), "s_waitcnt vmcnt(0)",
                         "v_readfirstlane_b32 s%d, v91" % sM0, "s_sub_u32 s%d, s%d, 1" % (sSPIN, sSPIN), "s_cmp_eq_u32 s%d, 0" % sSPIN, "s_cbranch_scc1 L_p1_nok",
                         "s_cmp_eq_u32 s%d, 0" % sM0, "s_cbranch_scc1 L_p1_nspin", "s_branch L_p1_nok"])
        return L
    def nonce_post(role):
        L = []
        L += IL("v_mov_b32 v92, %d\nds_read_b32 v91, v92" % NONL)
        L += IL("v_lshlrev_b32 v93, 2, v2\nv_add_u32 v93, %d, v93" % CSR)
        L += IL("ds_read2_b32 v[84:85], v93 offset0:0 offset1:32\nds_read2_b32 v[86:87], v93 offset0:64 offset1:96")
        L += IL("v_readfirstlane_b32 s%d, v91" % sNON)
        L += IL("v_mov_b32 v73, v91\nv_mov_b32 v75, v91\nv_mov_b32 v77, v91\nv_mov_b32 v79, v91")
        L += IL("s_lshl_b32 s%d, s3, 11\ns_lshl_b32 s%d, s4, 7\ns_add_u32 s%d, s%d, s%d\ns_lshl_b32 s%d, s%d, 5\ns_add_u32 s%d, s%d, s%d" % (sM0, sM1, sM0, sM0, sM1, sM1, sW, sM0, sM0, sM1))
        L.append(IL("s_mov_b32 exec_lo, 0\ns_mov_b32 exec_hi, 0x80000000") +
                 [I("buffer_store_dwordx4 v[72:75], off, s[%d:%d], s%d sc1" % (SWS, SWS+3, sM0), 'pub'), I("buffer_store_dwordx4 v[76:79], off, s[%d:%d], s%d offset:16 sc1" % (SWS, SWS+3, sM0), 'pub')] +
                 IL("s_mov_b64 exec, -1"))
        L += IL("v_add_f32 v84, v84, v85\nv_add_f32 v86, v86, v87\nv_add_f32 v84, v84, v86\nv_mov_b32 v85, v91")
        L += IL("s_lshl_b32 s%d, s4, 3\ns_lshr_b32 s%d, s3, 1\ns_add_u32 s%d, s%d, s%d\ns_lshl_b32 s%d, s%d, 9" % (sM0, sM1, sM0, sM0, sM1, sM0, sM0))
        L += IL("s_and_b32 s%d, s3, 1\ns_lshl_b32 s%d, s%d, 3\ns_add_u32 s%d, s%d, s%d\ns_add_u32 s%d, s%d, %d" % (sM1, sM1, sM1, sM0, sM0, sM1, sM0, sM0, WS_CS))
        L += IL("v_lshlrev_b32 v93, 4, v2")
        L.append(IL("s_cmp_eq_u32 s%d, 0\ns_cselect_b32 exec_lo, -1, 0\ns_mov_b32 exec_hi, 0" % sW) +
                 [I("buffer_store_dwordx2 v[84:85], v93, s[%d:%d], s%d offen sc1" % (SWS, SWS+3, sM0), 'pub')] + IL("s_mov_b64 exec, -1"))
        if role == 0:
            L += IL("v_mov_b32 v84, 0\nv_mov_b32 v85, v91\nv_mov_b32 v86, 0\nv_mov_b32 v87, v91")
            L += IL("s_lshl_b32 s%d, s2, 9\ns_add_u32 s%d, s%d, %d" % (sM0, sM0, sM0, WS_ZR))
            L.append(I("buffer_store_dwordx4 v[84:87], v93, s[%d:%d], s%d offen sc1" % (SWS, SWS+3, sM0), 'zr'))
        return L

    LNQ = ACCB
    sLA, sLB = sUOFF1, None
    def ln_addr(cg):
        B = []
        B += IL("s_lshl_b32 s%d, s3, 11\ns_lshl_b32 s%d, s%d, 10\ns_add_u32 s%d, s%d, s%d" % (SC0, SC0+1, sRGP, SC0, SC0, SC0+1))
        B += IL("v_lshlrev_b32 v64, 4, v4")
        B += IL("s_lshl_b32 s%d, s4, 12\ns_add_u32 s%d, s%d, %d" % (SC0+1, SC0+1, SC0+1, WS_CS + cg*1024))
        B += IL("v_lshlrev_b32 v65, 4, v2")
        return B
    def ln_issue(cg, tag='ln'):
        B = []
        B.append(I("buffer_load_dwordx4 v[%d:%d], v64, s[%d:%d], s%d offen sc1" % (LNQ+16, LNQ+19, SWS, SWS+3, SC0), tag))
        B.append(I("buffer_load_dwordx4 v[%d:%d], v64, s[%d:%d], s%d offen offset:512 sc1" % (LNQ+20, LNQ+23, SWS, SWS+3, SC0), tag))
        for k in range(2):
            for acc in range(2):
                q = LNQ + 8*k + 4*acc
                B.append(I("buffer_load_dwordx4 v[%d:%d], v65, s[%d:%d], s%d offen offset:%d sc1" % (q, q+3, SWS, SWS+3, SC0+1, k*2048 + acc*512), tag))
        return B
    def ln_check(cg):
        L = []
        lab = "L_p1_ln%d" % cg
        seq = ["v_mov_b32 v66, 0"]
        for q in range(LNQ, LNQ+24, 4):
            seq.append("v_bitop3_b32 v66, v66, v%d, s%d bitop3:0xf6" % (q+1, sNON))
            seq.append("v_bitop3_b32 v66, v66, v%d, s%d bitop3:0xf6" % (q+3, sNON))
        seq.append("v_cmp_ne_u32 vcc, 0, v66")
        L.append(Wait(vm_tag='ln'))
        for x in seq: L.append(I(x))
        L += IL("s_cbranch_vccnz %s_slow\n%s_ok:" % (lab, lab))
        S = ["%s_slow:" % lab, "s_mov_b32 s%d, 400000" % sSPIN, "%s_spin:" % lab, "s_sleep 1"]
        S += [x.text for x in ln_issue(cg)]
        S += ["s_waitcnt vmcnt(0)"] + seq + ["s_nop 4", "s_sub_u32 s%d, s%d, 1" % (sSPIN, sSPIN), "s_cmp_eq_u32 s%d, 0" % sSPIN, "s_cbranch_scc1 %s_ok" % lab,
              "s_cbranch_vccnz %s_spin" % lab, "s_branch %s_ok" % lab]
        SLOW.extend(S)
        return L
    def ln_build(cg, WA2):
        C = []
        for r in range(2):
            mean, inv = LNQ+16+4*r, LNQ+18+4*r
            C += IL("v_mul_f32 v70, v%d, v%d\nv_mul_f32 v%d, 0x%x, v%d\nv_mul_f32 v71, v70, v%d\nv_rcp_f32 v%d, v70\nv_mul_f32 v%d, 0x%x, v71" % (inv, inv, vK0[r], f2u(GC0), inv, inv, vS2[r], vK1[r], f2u(GC1)))
            C += IL("v_xor_b32 v70, 0x80000000, v%d\nv_cndmask_b32 v70, v70, 0, s[%d:%d]\nv_lshrrev_b32 v%d, 16, v70\nv_and_or_b32 v%d, v70, s%d, v%d" % (mean, sHH, sHH+1, XAUG[r]+1, XAUG[r], sHIM, XAUG[r]+1))
            if cg == 0:
                C += IL("s_lshl_b32 s%d, s%d, 8\nv_lshlrev_b32 v70, 2, v4\nv_add_u32 v70, s%d, v70\nv_add_u32 v70, %d, v70\nds_write_b32 v70, v%d" % (sT1, sRGP, sT1, INVL + 128*r, inv))
        for k in range(2):
            for acc in range(2):
                q = LNQ + 8*k + 4*acc
                d0, d1 = (WAUG[acc], WAUG[acc]+1) if k == 0 else (WA2[2*acc], WA2[2*acc+1])
                C += IL("v_add_f32 v%d, v%d, v%d\nv_and_b32 v%d, s%d, v%d\nv_sub_f32 v%d, v%d, v%d\nv_and_b32 v%d, s%d, v%d\nv_sub_f32 v%d, v%d, v%d" % (q, q, q+2, q+1, sHIM, q, q+2, q, q+1, q+3, sHIM, q+2, q+2, q+2, q+3))
                C += IL("v_lshrrev_b32 v%d, 16, v%d\nv_or_b32 v%d, v%d, v%d\nv_lshrrev_b32 v%d, 16, v%d" % (q+1, q+1, d0, q+1, q+3, d1, q+2))
        return C

    def role_main(cg, dens, go_steps, pre_bar, extra, WA2):
        M = []
        dq = []
        M.append(Wait(vm_tag=('C', 0)))
        M.append(I("s_barrier"))
        M += ST(0)
        reads(M, cg, 0); reads(M, cg, 1)
        dq += dma_x(2, ('C', 2)) + dma_w(6, ('C', 2)) + dma_x(3, ('C', 3)) + dma_w(7, ('C', 3))
        order = [(0, 0), (1, 0), (0, 1), (1, 1)]
        pace = [1, 0]
        for g in range(64):
            p, ks, t, s = g // 32, g % 32, g // 4, g % 4
            b = WF + 8*(g & 3)
            bar = (s == 2 and t < 15)
            if not bar and g + 2 < 64: reads(M, cg, g+2)
            for n, (r, acc) in enumerate(order):
                x = "a[%d:%d]" % (XF(r, ks), XF(r, ks)+3); w = "v[%d:%d]" % (b+4*acc, b+4*acc+3)
                if bar and n == 0: M.append(Wait(lgkm_all=True))
                M.append(mfma(cg, p, x, w, r, acc, ks == 0))
                if bar and n == 0:
                    if (t+1) in go_steps: M.append(('GO',))
                    M += flat(pre_bar.get(t+1, []))
                    need = ('C', t+1)
                    while any(getattr(x_, 'tag', None) == need for gq in dq for x_ in gq):
                        M += dq.pop(0)
                    M.append(Wait(lgkm_all=True))
                    M.append(Wait(vm_tag=need))
                    M.append(I("s_barrier"))
                    if t+1 in (4, 8, 12): M += ST((t+1)//4)
                    if t < 4:
                        dq += dma_x(t, ('C', t+4)) + dma_w(4+t, ('C', t+4))
                    if (t+1) in w2sched:
                        for q, tq in enumerate(w2sched):
                            if tq == t+1: dq += dma_w2(w2slot(q), ('C', 8+q))
                    reads(M, cg, g+2)
                    M += flat(extra.get(t+1, []))
                    pace[0] = max(1, 15 // max(1, len(dq))); pace[1] = 0
                if dq and pace[1] % pace[0] == 0: M += dq.pop(0)
                pace[1] += 1
                M.append(('SLOT', dens(t)))
            if ks == 31:
                if p == 1:
                    for acc in range(2):
                        M += IL("v_mov_b32 v%d, v%d\nv_mov_b32 v%d, v%d" % (WAUG[acc], WA2[2*acc], WAUG[acc]+1, WA2[2*acc+1]))
                M.append(('GO',) if ('aug%d' % p) in go_steps else ('SLOT', 0))
                for n, (r, acc) in enumerate(order):
                    x = "v[%d:%d]" % (XAUG[r], XAUG[r]+3); w = "v[%d:%d]" % (WAUG[acc], WAUG[acc]+3)
                    M.append(mfma(cg, p, x, w, r, acc, False))
        assert not dq
        return M
    for q, tq in enumerate(w2sched):
        assert tq >= 5 + q//2, (q, tq)
        assert tq <= 8 + q - 1, (q, tq)

    R0 = []
    R0 += IL("v_lshlrev_b32 v88, 16, v88\nv_lshlrev_b32 v89, 16, v89\nv_lshlrev_b32 v90, 16, v90")
    R0 += IL("v_mul_f32 v92, 0x%x, v90\nv_exp_f32 v92, v92" % f2u(LOG2E))
    bf16r(R0, 92, 93)
    R0 += IL("v_mul_f32 v93, v92, v88\nv_mul_f32 v94, v92, v89")
    R0 += IL("v_mul_f32 v93, 0x%x, v93\nv_exp_f32 v93, v93" % f2u(LOG2E))
    R0 += IL("v_mul_f32 v94, 0.15915494, v94\nv_fract_f32 v94, v94\nv_cos_f32 v95, v94\nv_sin_f32 v94, v94")
    R0 += IL("v_mul_f32 v%d, v93, v95\nv_mul_f32 v%d, v93, v94" % (vLr, vLi))
    R0 += IL("v_add_f32 v92, -1.0, v%d" % vLr)
    R0 += IL("v_mul_f32 v93, v88, v88\nv_fmac_f32 v93, v89, v89\nv_rcp_f32 v93, v93\nv_add_f32 v93, v93, v93")
    R0 += IL("v_mul_f32 v94, v92, v88\nv_fmac_f32 v94, v%d, v89\nv_mul_f32 v%d, v94, v93" % (vLi, vcr))
    R0 += IL("v_mul_f32 v94, v%d, v88\nv_fma_f32 v94, -v92, v89, v94\nv_mul_f32 v%d, v94, v93" % (vLi, vci))
    R0 += IL("v_mov_b32 v%d, v%d\nv_mov_b32 v%d, v%d" % (vL16r, vLr, vL16i, vLi))
    for _ in range(4): csq(R0, vL16r, vL16i, 92)
    R0 += IL("v_mov_b32 v88, v%d\nv_mov_b32 v89, v%d" % (vL16r, vL16i)); csq(R0, 88, 89, 92)
    R0 += IL("v_mov_b32 v94, v88\nv_mov_b32 v95, v89"); csq(R0, 94, 95, 92)
    R0 += IL("v_mov_b32 v%d, v94\nv_mov_b32 v%d, v95" % (vL128r, vL128i)); csq(R0, vL128r, vL128i, 92)
    R0.append(IL("s_cmp_eq_u32 s%d, 1\ns_cselect_b32 s%d, 1.0, 0\ns_cselect_b32 s%d, -1, 0\ns_cselect_b32 s%d, 0, 1.0" % (sRGP, sRGPF, sAGM, sT1)))
    R0 += IL("s_mov_b32 s%d, 0" % (sAGM+1))
    R0 += IL("v_mul_f32 v94, s%d, v94\nv_mul_f32 v95, s%d, v95\nv_add_f32 v94, s%d, v94" % (sRGPF, sRGPF, sT1))
    cmul_into(R0, 92, 93, 94, 95, vL16r, vL16i)
    R0 += IL("v_cndmask_b32 v%d, v94, v92, s[%d:%d]\nv_cndmask_b32 v%d, v95, v93, s[%d:%d]" % (vF[0][0], sHH, sHH+1, vF[0][1], sHH, sHH+1))
    cmul_into(R0, vF[1][0], vF[1][1], vF[0][0], vF[0][1], 88, 89)
    WA2_0 = [0, 16, 18, 5]
    F0 = []
    F0 += setup2()
    F0 += phase0_stats()
    F0.append('STOP')
    F0 += phase0_colsum_write()
    F0 += R0
    F0.append('STOP')
    F0 += nonce_post(0)
    F0 += ln_addr(0)
    F0.append('STOP')
    F0 += ln_issue(0)
    F0.append('STOP')
    F0 += ln_build(0, WA2_0)
    F0 += IL("v_sub_f32 v%d, 0, v%d\nv_sub_f32 v%d, 0, v%d\nv_sub_f32 v%d, 0, v%d" % (vnLi, vLi, vnL16i, vL16i, vnci, vci))
    F0.append('STOP')
    T = [7, 8, 19, 20, 21]
    Ublk = [U0, acca(0, 0)]
    F0 += IL("s_lshl_b32 s%d, s%d, 8\nv_lshlrev_b32 v%d, 6, v3\nv_add_u32 v%d, s%d, v%d\nv_add_u32 v%d, %d, v%d" % (sT0, sRGP, T[0], T[0], sT0, T[0], T[0], INVL, T[0]))
    SO = [(22, 23), (24, 25)]
    for r in range(2):
        ar0, ai0 = acca(r, 0), acca(r, 1)
        D = Ublk[r]
        for q4 in range(4):
            qd = WAUG[q4 & 1]
            if r == 0 and q4 == 0: F0.append(I("ds_read_b128 v[%d:%d], v%d offset:%d" % (qd, qd+3, T[0], 0)))
            nq = r*4 + q4 + 1
            if nq < 8: F0.append(I("ds_read_b128 v[%d:%d], v%d offset:%d" % (WAUG[nq & 1], WAUG[nq & 1]+3, T[0], nq*16 if nq < 4 else 128 + (nq-4)*16)))
            for jj in range(4):
                q = 4*q4 + jj
                ar, ai = ar0+q, ai0+q; d0, d1 = D+2*q, D+2*q+1
                F0 += IL("v_mul_f32 v%d, v%d, v%d\nv_mul_f32 v%d, v%d, v%d\nv_mul_f32 v%d, v%d, v%d\nv_mul_f32 v%d, v%d, v%d\nv_fmac_f32 v%d, v%d, v%d\nv_fmac_f32 v%d, v%d, v%d" % (ar, qd+jj, ar, ai, qd+jj, ai, d0, vcr, ar, d1, vcr, ai, d0, vnci, ai, d1, vci, ar))
                if q == 0: pr, pi = d0, d1
                else:
                    nr, ni = ((T[1], T[2]), (T[3], T[4]))[q & 1]
                    if q == 15: nr, ni = SO[r]
                    F0 += IL("v_fma_f32 v%d, v%d, v%d, v%d\nv_fma_f32 v%d, v%d, v%d, v%d\nv_fmac_f32 v%d, v%d, v%d\nv_fmac_f32 v%d, v%d, v%d" % (nr, vLr, pr, d0, ni, vLr, pi, d1, nr, vnLi, pi, ni, vLi, pr))
                    pr, pi = nr, ni
        F0 += IL("s_lshl_b32 s%d, s%d, 10\nv_lshlrev_b32 v%d, 3, v2\nv_lshl_add_u32 v%d, v3, 8, v%d\nv_add_u32 v%d, s%d, v%d\nv_add_u32 v%d, %d, v%d\nds_write_b64 v%d, v[%d:%d]" % (sT0, sRGP, T[1], T[1], T[1], T[1], sT0, T[1], T[1], SEG + 512*r, T[1], T[1], SO[r][0], SO[r][1]))
    F0.append('STOP')
    X = acca(1, 0)
    vPP = [(X+24, X+25), (X+26, X+27)]
    F0 += IL("v_lshlrev_b32 v%d, 3, v2\nv_add_u32 v%d, %d, v%d" % (T[0], T[0], SEG, T[0]))
    F0 += IL("ds_read2_b64 v[%d:%d], v%d offset0:0 offset1:32\nds_read2_b64 v[%d:%d], v%d offset0:64 offset1:96" % (X, X+3, T[0], X+4, X+7, T[0]))
    F0 += IL("s_lshl_b32 s%d, s%d, 10\nv_add_u32 v%d, s%d, v%d" % (sT0, sRGP, T[0], sT0, T[0]))
    F0 += IL("ds_read2_b64 v[%d:%d], v%d offset0:0 offset1:32\nds_read2_b64 v[%d:%d], v%d offset0:64 offset1:96" % (X+8, X+11, T[0], X+12, X+15, T[0]))
    cacc(F0, X+2, X+3, vL16r, vL16i, vnL16i, X, X+1)
    cacc(F0, X+4, X+5, vL16r, vL16i, vnL16i, X+2, X+3)
    cacc(F0, X+6, X+7, vL16r, vL16i, vnL16i, X+4, X+5)
    F0 += IL("v_mul_f32 v%d, s%d, v%d\nv_mul_f32 v%d, s%d, v%d" % (X+6, sRGPF, X+6, X+7, sRGPF, X+7))
    cacc(F0, X+8, X+9, vL16r, vL16i, vnL16i, X+6, X+7)
    cacc(F0, X+10, X+11, vL16r, vL16i, vnL16i, X+8, X+9)
    cacc(F0, X+12, X+13, vL16r, vL16i, vnL16i, X+10, X+11)
    cacc(F0, X+14, X+15, vL16r, vL16i, vnL16i, X+12, X+13)
    F0 += IL("v_mov_b32 v%d, v%d\nv_mov_b32 v%d, s%d\nv_mov_b32 v%d, v%d\nv_mov_b32 v%d, s%d" % (X+16, X+14, X+17, sNON, X+18, X+15, X+19, sNON))
    F0 += IL("s_lshl_b32 s%d, s4, 13\ns_lshl_b32 s%d, s3, 9\ns_add_u32 s%d, s%d, s%d\ns_add_u32 s%d, s%d, %d\nv_lshlrev_b32 v%d, 4, v2" % (sT0, sT1, sT0, sT0, sT1, sT0, sT0, WS_AGR, T[0]))
    F0.append([I("s_mov_b64 exec, s[%d:%d]" % (sAGM, sAGM+1)),
               I("buffer_store_dwordx4 v[%d:%d], v%d, s[%d:%d], s%d offen sc1" % (X+16, X+19, T[0], SWS, SWS+3, sT0), 'agg'),
               I("s_mov_b64 exec, -1")])
    for c in range(2):
        F0.append(I("v_cndmask_b32 v%d, v%d, v%d, s[%d:%d]" % (vPP[0][c], X+6+c, X+8+c, sHH, sHH+1)))
        F0.append(I("v_cndmask_b32 v%d, v%d, v%d, s[%d:%d]" % (vPP[1][c], X+10+c, X+12+c, sHH, sHH+1)))
    GOB = 12
    main0 = role_main(0, lambda t: dens0[0] if t < 8 else dens0[1], {2, 3, 5, 8, 'aug0', GOB},
                      {2: phase0_colsum(0), 3: nonce_pre(0), 8: ln_check(0)}, {}, WA2_0)
    body0, left0 = interleave2(main0, F0)
    assert not left0, len(left0)
    PD = dict(x=P_X, cre=P_CRE, cim=P_CIM, dsk=P_DSK, wd=P_WD, out=P_OUT, ws=P_WS)
    def fpre():
        if not fused: return []
        if fused == 2: return [Wait(lgkm_all=True), I("s_barrier")]
        return [Wait(lgkm_all=True), I("s_barrier")] + p2c.p2_pre("s4", "s5", PD, SW1, sWOFF, sWSTR, 5, 6, (24, 25, 26))
    def merge(tail, side, start=0):
        if not side: return tail
        out = []; n = len(tail) - start; k = 0
        step = max(1.0, n / float(len(side)))
        nxt = start
        for idx, x in enumerate(tail):
            out.append(x)
            while k < len(side) and idx >= nxt and x.cls not in ('label',) and not (x.op.startswith('s_cmp') or x.op.startswith('s_cbranch') or 'exec' in x.wr or x.op == 's_add_u32' or x.op.startswith('v_cmp')):
                out.extend(flat([side[k]])); k += 1; nxt += step
                if step >= 1: break
        while k < len(side): out.extend(flat([side[k]])); k += 1
        return out
    def w2side():
        d1, r1, d2, r2 = p2d.rounds()
        return p2d.w2_setup("s4", "s5", PD), d1, p2d.w2_setup2("s4", "s5", PD), r1, d2, r2
    TL = Stream()
    TL.extend(ST(4))
    TL.extend(fpre())
    AGR = [WF + 4*k for k in range(8)] + [X + 4*k for k in range(6)] + [20]
    TL("v_lshlrev_b32 v7, 4, v2")
    TL("s_lshl_b32 s%d, s4, 13\ns_add_u32 s%d, s%d, %d" % (sT0, sT0, sT0, WS_AGR))
    TL("s_lshl_b32 s%d, s2, 9\ns_add_u32 s%d, s%d, %d" % (sT1, sT1, sT1, WS_ZR))
    TL("s_sub_u32 s%d, s3, 15\ns_lshl_b32 s%d, s%d, 9\ns_add_u32 s%d, s%d, s%d" % (sM0, sM0, sM0, sM0, sM0, sT0))
    def agg_loads():
        L = []
        for k in range(15):
            L.append("s_add_u32 s%d, s%d, %d" % (sM1, sM0, 512*k))
            L.append("s_cmp_ge_u32 s3, %d" % (15-k))
            L.append("s_cselect_b32 s%d, s%d, s%d" % (sM1, sM1, sT1))
            L.append("buffer_load_dwordx4 v[%d:%d], v7, s[%d:%d], s%d offen sc1" % (AGR[k], AGR[k]+3, SWS, SWS+3, sM1))
        return L
    def agg_chk():
        seq = ["v_mov_b32 v8, 0"]
        for k in range(15):
            seq.append("v_bitop3_b32 v8, v8, v%d, s%d bitop3:0xf6" % (AGR[k]+1, sNON))
            seq.append("v_bitop3_b32 v8, v8, v%d, s%d bitop3:0xf6" % (AGR[k]+3, sNON))
        seq.append("v_cmp_ne_u32 vcc, 0, v8")
        return seq
    for x in agg_loads(): TL(x)
    if fused == 2:
        su, d1, su2, r1, d2, r2 = w2side()
        TL.extend(flat(su))
        TL.extend(merge(tail_ffn(sUOFF2, SA0, SA1), d1 + su2))
    else:
        TL.extend(tail_ffn(sUOFF2, SA0, SA1))
    TL.extend(ST(5))
    markB = len(TL.ins)
    for x in agg_chk(): TL(x)
    TL("s_cbranch_vccnz L_p1_agslow\nL_p1_agok:")
    SLOW.extend(["L_p1_agslow:", "s_mov_b32 s%d, 400000" % sSPIN, "L_p1_agspin:", "s_sleep 1"] + agg_loads() + ["s_waitcnt vmcnt(0)"] + agg_chk() +
                ["s_nop 4", "s_sub_u32 s%d, s%d, 1" % (sSPIN, sSPIN), "s_cmp_eq_u32 s%d, 0" % sSPIN, "s_cbranch_scc1 L_p1_agok", "s_cbranch_vccnz L_p1_agspin", "s_branch L_p1_agok"])
    TL.extend(ST(6))
    def pkstep(S, d, l, p, s):
        S("v_pk_fma_f32 v[%d:%d], v[%d:%d], v[%d:%d], v[%d:%d] op_sel_hi:[0,1,1]" % (d, d+1, l, l+1, p, p+1, s, s+1))
        S("v_pk_fma_f32 v[%d:%d], v[%d:%d], v[%d:%d], v[%d:%d] op_sel:[1,1,0] op_sel_hi:[1,0,1] neg_lo:[1,0,0]" % (d, d+1, l, l+1, p, p+1, d, d+1))
    for k in range(15): TL("v_mov_b32 v%d, v%d" % (AGR[k]+1, AGR[k]+2))
    for k in range(1, 15): pkstep(TL, AGR[k], vL128r, AGR[k-1], AGR[k])
    H = AGR[14]
    for r in range(2): pkstep(TL, vPP[r][0], vF[r][0], H, vPP[r][0])
    prev = [vPP[0][0], vPP[1][0]]
    for q in range(16):
        for r in range(2):
            d = Ublk[r] + 2*q
            pkstep(TL, d, vLr, prev[r], d)
            prev[r] = d
    TL("s_lshl_b32 s%d, s%d, 13\ns_add_u32 s%d, s%d, %d" % (sT0, sRGP, sT0, sT0, CSL))
    TL("v_lshlrev_b32 v7, 6, v2\nv_lshl_add_u32 v7, v3, 5, v7\nv_add_u32 v7, s%d, v7" % sT0)
    TL("v_add_u32 v8, s%d, v%d" % (sT0, vT0))
    TL("v_lshlrev_b32 v19, 4, v2\nv_lshl_add_u32 v19, v3, 9, v19")
    TL("s_lshl_b32 s%d, s4, 12\ns_add_u32 s%d, s%d, %d" % (sT1, sT1, sT1, 86*1024))
    for r in range(2):
        Z = accb(r, 1); D = Ublk[r]
        for q2 in range(8):
            TL("v_cvt_pk_bf16_f32 v%d, v%d, v%d" % (Z+q2, D+4*q2, D+4*q2+2))
            TL("v_cvt_pk_bf16_f32 v%d, -v%d, -v%d" % (Z+8+q2, D+4*q2+1, D+4*q2+3))
        o = r*4096
        TL("ds_write_b128 v7, v[%d:%d] offset:%d\nds_write_b128 v7, v[%d:%d] offset:%d\nds_write_b128 v7, v[%d:%d] offset:%d\nds_write_b128 v7, v[%d:%d] offset:%d" % (Z, Z+3, o, Z+4, Z+7, o+16, Z+8, Z+11, o+2048, Z+12, Z+15, o+2064))
    for r in range(2):
        Z = WF + 16*r; o = r*4096
        for part in range(2):
            for s in range(2):
                q = Z + 4*(2*part+s); oo = o + part*2048 + s*1024
                TL("ds_read_b64_tr_b16 v[%d:%d], v8 offset:%d\nds_read_b64_tr_b16 v[%d:%d], v8 offset:%d" % (q, q+1, oo, q+2, q+3, oo+256))
        for part in range(2):
            for s in range(2):
                q = Z + 4*(2*part+s)
                TL("buffer_store_dwordx4 v[%d:%d], v19, s[%d:%d], s%d offen offset:%d%s" % (q, q+3, (SA0, SA1)[r], (SA0, SA1)[r]+3, sT1, (2*part+s)*1024, A2MOD), 'a2')
    if fused == 2:
        segB = TL.ins[markB:]
        ia = [k for k, x in enumerate(segB) if x.text == "L_p1_agok:"][0]
        pass
    TL("s_branch L_p1_fin")
    full0 = finalize(model_pre + [I("L_MARK_Q:")] + Q.ins + body0 + TL.ins)
    idx = [k for k, o in enumerate(full0) if o.text == "L_MARK_Q:"][0]
    role0 = full0[idx+1:]
    pro = finalize(P.ins)

    WA2_1 = [52, 53, 54, 55]
    F1 = []
    F1 += setup2()
    F1 += phase0_stats()
    F1.append('STOP')
    F1 += phase0_colsum_write()
    F1.append('STOP')
    F1 += nonce_post(1)
    F1 += ln_addr(1)
    F1.append('STOP')
    F1 += ln_issue(1)
    F1.append('STOP')
    F1 += ln_build(1, WA2_1)
    F1.append('STOP')
    tt = [19, 20, 21, 22]
    for r in range(2):
        F1 += ffn_epilogue(r, acca(r, 0), acca(r, 1), sUOFF1, tt, (SA0, SA1)[r])
    if fused == 2:
        F1 += IL("s_and_b32 s%d, s3, 7\ns_lshl_b32 s%d, s%d, 2\ns_and_b32 s%d, s4, 3\ns_add_u32 s%d, s%d, s%d" % (sT0, sT0, sT0, sT1, sT0, sT0, sT1))
        F1 += IL("s_mov_b32 s%d, s%d\ns_mov_b32 s%d, s%d\ns_mov_b32 s%d, %d\ns_mov_b32 s%d, 0x20000" % (SC0, P_WD, SC0+1, P_WD+1, SC0+2, 1376*1024, SC0+3))
        F1 += IL("v_lshrrev_b32 v56, 2, v1\nv_lshlrev_b32 v56, 10, v56\nv_and_b32 v57, 3, v1\nv_lshl_add_u32 v56, v57, 7, v56")
        F1 += IL("s_mul_i32 s%d, s%d, %d\ns_bfe_u32 s%d, s4, 0x10002\ns_lshl_b32 s%d, s%d, 9\ns_add_u32 s%d, s%d, s%d\ns_lshl_b32 s%d, s%d, 15\ns_add_u32 s%d, s%d, s%d" % (sT1, sT0, 43*1024, sM0, sM0, sM0, sT1, sT1, sM0, sM0, sRGP, sT1, sT1, sM0))
        F1.append(I("buffer_load_dword v58, v56, s[%d:%d], s%d offen" % (SC0, SC0+3, sT1), 'touch'))
        F1 += IL("s_add_u32 s%d, s%d, 16384" % (sT1, sT1))
        F1.append(I("buffer_load_dword v59, v56, s[%d:%d], s%d offen" % (SC0, SC0+3, sT1), 'touch'))
        F1.append(IL("s_cmp_eq_u32 s%d, 0\ns_cselect_b32 s%d, s%d, s%d\ns_cselect_b32 s%d, s%d, s%d" % (sRGP, SC0, P_CRE, P_CIM, SC0+1, P_CRE+1, P_CIM+1)))
        F1 += IL("s_mov_b32 s%d, %d" % (SC0+2, 512*1024))
        F1 += IL("v_lshlrev_b32 v56, 7, v1")
        F1 += IL("s_bfe_u32 s%d, s4, 0x10002\ns_lshl_b32 s%d, s%d, 18\ns_lshl_b32 s%d, s%d, 13\ns_add_u32 s%d, s%d, s%d" % (sM0, sM0, sM0, sT1, sT0, sT1, sT1, sM0))
        F1.append(I("buffer_load_dword v60, v56, s[%d:%d], s%d offen" % (SC0, SC0+3, sT1), 'touch'))
    main1 = role_main(1, lambda t: dens1[0] if t < 8 else dens1[1], {2, 3, 5, 8, 'aug0'}, {2: phase0_colsum(1), 8: ln_check(1)}, {}, WA2_1)
    body1, left1 = interleave2(main1, F1)
    assert not left1, len(left1)
    T1 = Stream()
    T1.extend(ST(4))
    T1.extend(fpre())
    if fused == 2:
        su, d1, su2, r1, d2, r2 = w2side()
        T1.extend(flat(su))
        T1.extend(merge(tail_ffn(sUOFF2, SA0, SA1), d1 + su2))
        pass
    else:
        T1.extend(tail_ffn(sUOFF2, SA0, SA1))
    T1.extend(ST(5)); T1.extend(ST(6))
    r1full = finalize(model_pre + Q.ins + [I("L_p1_role1:")] + body1 + T1.ins)
    idx = [k for k, o in enumerate(r1full) if o.text == "L_p1_role1:"][0]
    role1 = r1full[idx:]
    F = Stream()
    F("L_p1_fin:")
    if stamp == 1:
        F("s_waitcnt vmcnt(0)\ns_memtime s[22:23]\ns_memrealtime s[24:25]\ns_waitcnt lgkmcnt(0)")
        srd(F, 52, P_WS, 1 << 20, 0x2000000)
        F("v_mov_b32 v8, s0\nv_mov_b32 v9, s98")
        for k in range(8): F("v_mov_b32 v%d, s%d" % (10+k, 8+2*k))
        F("v_mov_b32 v18, s24\nv_mov_b32 v19, 0")
        F("s_lshl_b32 s26, s2, 3\ns_add_u32 s26, s26, s%d\ns_lshl_b32 s26, s26, 6\nv_mov_b32 v20, s26" % sW)
        F("v_cmp_eq_u32 vcc, 0, v1\ns_and_saveexec_b64 s[28:29], vcc")
        F("buffer_store_dwordx4 v[8:11], v20, s[52:55], 0 offen\nbuffer_store_dwordx4 v[12:15], v20, s[52:55], 0 offen offset:16\nbuffer_store_dwordx4 v[16:19], v20, s[52:55], 0 offen offset:32")
    fin = finalize(F.ins)
    ftxt = ""
    if fused:
        if stamp == 3: ftxt += "s_memrealtime s[26:27]\n"
        ftxt += "s_waitcnt vmcnt(0)\ns_barrier\n"
        if stamp == 3: ftxt += "s_memrealtime s[16:17]\n"
        ftxt += "s_mov_b32 s98, s%d\n" % sNON
        ftxt += "s_cmp_lg_u32 s5, 0\ns_cbranch_scc1 L_f_fskip\n"
        ftxt += "v_mov_b32 v36, s98\nv_mov_b32 v37, s98\ns_lshl_b32 s95, s3, 4\ns_add_u32 s95, s95, s4\ns_lshl_b32 s95, s95, 3\ns_add_u32 s95, s95, %d\ns_mov_b64 exec, 1\n" % WS_FL
        ftxt += "buffer_store_dwordx2 v[36:37], off, s[%d:%d], s95 sc1\ns_mov_b64 exec, -1\nL_f_fskip:\n" % (SWS, SWS+3)
        poll = "s_cmp_lg_u32 s5, 0\ns_cbranch_scc1 L_f_pskip\nv_lshlrev_b32 v46, 3, v1\ns_lshl_b32 s95, s3, 7\ns_add_u32 s95, s95, %d\ns_mov_b32 s94, 400000\ns_mov_b64 exec, 0xffff\n" % WS_FL
        poll += "L_f_poll:\nbuffer_load_dwordx2 v[48:49], v46, s[%d:%d], s95 offen sc1\ns_waitcnt vmcnt(0)\nv_xor_b32 v48, s98, v48\nv_xor_b32 v49, s98, v49\nv_or_b32 v48, v48, v49\nv_cmp_ne_u32 vcc, 0, v48\ns_nop 4\ns_cbranch_vccz L_f_pok\n" % (SWS, SWS+3)
        poll += "s_sleep 1\ns_sub_u32 s94, s94, 1\ns_cmp_lg_u32 s94, 0\ns_cbranch_scc1 L_f_poll\nL_f_pok:\ns_mov_b64 exec, -1\n" + ("buffer_inv sc1\ns_waitcnt vmcnt(0)\n" if acq else "") + "L_f_pskip:\ns_barrier\n"
        if stamp == 3: poll += "s_memrealtime s[22:23]\n"
        if fused == 2:
            d1, r1, d2, r2 = p2d.rounds()
            ftxt += render(finalize(flat(r1[1:] + d2 + r2 + [Wait(lgkm_all=True), I("s_barrier")])))
            ftxt += p2d.p2_main("s3", "s4", "s5", PD, poll)
        else: ftxt += p2c.p2_phase("s3", "s4", "s5", PD, a2ld=("" if acq else " sc1"), poll=poll, lab="L_f", stamp=(stamp == 3), pre=dict(SWD=SW1, sWOF=sWOFF, sLB=sWSTR, vP0=5, vP1=6, done=True))
    if fused and stamp == 3:
        ftxt += "s_waitcnt vmcnt(0)\ns_memrealtime s[28:29]\ns_waitcnt lgkmcnt(0)\n"
        for k, r in enumerate((0, 10, 12, 14, 26, 16, 22, 30, 28)): ftxt += "v_mov_b32 v%d, s%d\n" % (64+k, r)
        ftxt += "s_lshl_b32 s94, s2, 2\ns_add_u32 s94, s94, s5\ns_lshl_b32 s94, s94, 6\ns_add_u32 s94, s94, 0x2000000\nv_mov_b32 v76, s94\n"
        ftxt += "global_store_dwordx4 v76, v[64:67], s[38:39]\nglobal_store_dwordx4 v76, v[68:71], s[38:39] offset:16\nglobal_store_dwordx4 v76, v[72:75], s[38:39] offset:32\n"
    ftxt += "L_p1_end:\ns_endpgm\n"
    slow = "\n".join(SLOW) + "\n"
    return kernel_text(name, render(pro) + render(role0) + render(role1) + render(fin) + ftxt + slow, 512, 102, accum=256)
```

```python
from common import *
WS_FL = 0x60000
def I(text, tag=None): return Ins(text, tag)
def IL(text, tag=None): return [Ins(l.strip(), tag) for l in text.strip().split("\n") if l.strip()]

class R:
    ACC = 64
    AB = 128
    WB = 192
LDSW_BYTES = 16384
RED = 65536

def p2_body(S, E, sg, fused=False, a2ld="", pollfn=None, stamp=False):
    pass

def gen_p2(name, stamp=False, a2ld=""):
    S = Stream()
    ACC, AB, WB = R.ACC, R.AB, R.WB
    S("s_cmp_ge_u32 s2, 256\ns_cbranch_scc1 L_p2_end")
    if stamp: S("s_memrealtime s[60:61]\ns_memtime s[62:63]")
    S("s_load_dwordx16 s[8:23], s[0:1], 0\ns_load_dwordx16 s[24:39], s[0:1], 64")
    S("s_and_b32 s3, s2, 1\ns_lshl_b32 s3, s3, 3\ns_bfe_u32 s40, s2, 0x30003\ns_add_u32 s3, s3, s40")
    S("s_bfe_u32 s4, s2, 0x20001\ns_lshl_b32 s4, s4, 2\ns_lshr_b32 s40, s2, 6\ns_add_u32 s4, s4, s40")
    S("v_lshrrev_b32 v2, 6, v0\nv_and_b32 v1, 63, v0\nv_readfirstlane_b32 s5, v2")
    S("s_waitcnt lgkmcnt(0)")
    body = p2_phase("s3", "s4", "s5", dict(x=8, cre=18, cim=20, dsk=24, wd=32, out=34, ws=38), stamp=stamp, a2ld=a2ld)
    pre = render(finalize(S.ins))
    return kernel_text(name, pre + body + "L_p2_end:\ns_endpgm\n", 256, 102)

def p2_pre(sJ, sW, P, SWD, sWOF, sLB, vP0, vP1, vt):
    L = []
    a, b, c = vt
    L += IL("s_lshl_b32 s%d, %s, 14" % (sLB, sW))
    L += IL("v_lshrrev_b32 v%d, 3, v1\nv_bfe_u32 v%d, v1, 4, 1\nv_lshlrev_b32 v%d, 2, v%d\nv_and_b32 v%d, 7, v1\nv_xor_b32 v%d, v%d, v%d\nv_lshlrev_b32 v%d, 4, v%d\nv_lshl_add_u32 v%d, v%d, 10, v%d" % (a, b, b, b, c, b, b, c, b, b, vP0, a, b))
    L += IL("v_add_u32 v%d, %d, v%d" % (vP1, 8192 - 1024, vP0))
    L += IL("s_mov_b32 s%d, s%d\ns_mov_b32 s%d, s%d\ns_mov_b32 s%d, %d\ns_mov_b32 s%d, 0x20000" % (SWD, P['wd'], SWD+1, P['wd']+1, SWD+2, 1376*1024, SWD+3))
    L += IL("s_and_b32 s%d, %s, 7\ns_lshl_b32 s%d, s%d, 7\ns_add_u32 s%d, s%d, s%d" % (sWOF, sJ, sWOF, sWOF, sWOF, sWOF, sLB))
    for slot in range(8):
        L += IL("s_add_u32 m0, s%d, %d" % (sLB, slot*2048))
        L += IL("buffer_load_dwordx4 v%d, s[%d:%d], s%d offen lds\nbuffer_load_dwordx4 v%d, s[%d:%d], s%d offen offset:1024 lds\ns_add_u32 s%d, s%d, 65536" % (vP0, SWD, SWD+3, sWOF, vP1, SWD, SWD+3, sWOF, sWOF, sWOF), 'w2pre')
    return L

def p2_phase(sM, sJ, sW, P, stamp=False, a2ld="", poll=None, lab="L_p2", pre=None):
    ACC, AB, WB = R.ACC, R.AB, R.WB
    SA0, SA1, SC, SXo, SDS, SO, SST = 52, 56, 60, 64, 68, 72, 40
    sMT, sNT, sAOF, sIT, sT0, sT1 = 88, 89, 90, 91, 92, 93
    if pre is None: pre = dict(SWD=44, sWOF=77, sLB=80, vP0=5, vP1=6, done=False)
    SWD, sWOF, sLB, vP0, vP1 = pre['SWD'], pre['sWOF'], pre['sLB'], pre['vP0'], pre['vP1']
    S = Stream()
    if not pre.get('done', True): S.extend(p2_pre(sJ, sW, P, SWD, sWOF, sLB, vP0, vP1, (4, 7, 8)))
    S("s_lshr_b32 s%d, %s, 3\ns_lshl_b32 s%d, %s, 1\ns_add_u32 s%d, s%d, s%d\ns_and_b32 s%d, %s, 7" % (sT0, sJ, sMT, sM, sMT, sMT, sT0, sNT, sJ))
    S("s_mul_i32 s%d, s%d, %d" % (sT0, sMT, 2*RG_BYTES))
    srd(S, SA0, P['ws'], 86*1024, "s%d" % sT0)
    S("s_add_u32 s%d, s%d, %d" % (sT0, sT0, RG_BYTES))
    srd(S, SA1, P['ws'], 86*1024, "s%d" % sT0)
    S("v_lshlrev_b32 v8, 4, v1\ns_lshl_b32 s%d, %s, 10" % (sAOF, sW))
    S("v_bfe_u32 v4, v1, 2, 2\nv_bfe_u32 v3, v1, 5, 1\nv_lshl_add_u32 v4, v3, 2, v4\nv_lshlrev_b32 v4, 7, v4")
    S("v_bfe_u32 v3, v1, 4, 1\nv_lshlrev_b32 v3, 1, v3\nv_bfe_u32 v7, v1, 1, 1\nv_add_u32 v3, v3, v7\nv_bfe_u32 v7, v1, 3, 1\nv_lshlrev_b32 v7, 2, v7\nv_xor_b32 v3, v3, v7")
    S("v_lshl_add_u32 v4, v3, 4, v4\nv_and_b32 v3, 1, v1\nv_lshl_add_u32 v4, v3, 3, v4\nv_add_u32 v9, s%d, v4\nv_xor_b32 v10, 64, v9" % sLB)
    S("v_lshrrev_b32 v11, 4, v1\ns_lshl_b32 s%d, %s, 4\nv_add_u32 v11, s%d, v11" % (sT0, sW, sT0))
    S("v_and_b32 v12, 15, v1\ns_lshl_b32 s%d, s%d, 6\nv_add_u32 v13, s%d, v11" % (sT0, sMT, sT0))
    S("s_lshl_b32 s%d, s%d, 7\nv_lshlrev_b32 v14, 10, v13\nv_lshl_add_u32 v14, v12, 3, v14\nv_add_u32 v14, s%d, v14" % (sT0, sNT, sT0))
    S("v_lshlrev_b32 v15, 4, v13\nv_lshlrev_b32 v16, 3, v12\nv_add_u32 v16, s%d, v16" % sT0)
    srd(S, SXo, P['x'], 2048*1024); srd(S, SDS, P['dsk'], 1024); srd(S, SO, P['out'], 2048*2048); srd(S, SST, P['ws'], 2048*16, WS_ST)
    XR, SR, DR = 18, 26, 34
    S("s_mov_b32 s84, 0\ns_movk_i32 s85, 4096\ns_movk_i32 s86, 8192\ns_movk_i32 s87, 12288")
    for i in range(4): S("buffer_load_dwordx2 v[%d:%d], v14, s[%d:%d], s%d offen" % (XR+2*i, XR+2*i+1, SXo, SXo+3, 84+i))
    S("buffer_load_dwordx2 v[%d:%d], v16, s[%d:%d], 0 offen" % (DR, DR+1, SDS, SDS+3))
    for i in range(64): S("v_mov_b32 v%d, 0" % (ACC+i))
    txt = render(finalize(S.ins))
    if poll: txt += poll
    S = Stream()
    for i in range(4):
        S("buffer_load_dword v%d, v15, s[%d:%d], 0 offen offset:%d%s\nbuffer_load_dword v%d, v15, s[%d:%d], 0 offen offset:%d%s" % (SR+2*i, SST, SST+3, 64*i, a2ld, SR+2*i+1, SST, SST+3, 64*i+8, a2ld))
    def a_ld(b):
        r = AB + 8*b
        return "buffer_load_dwordx4 v[%d:%d], v8, s[%d:%d], s%d offen%s\nbuffer_load_dwordx4 v[%d:%d], v8, s[%d:%d], s%d offen%s\ns_add_u32 s%d, s%d, 4096\n" % (r, r+3, SA0, SA0+3, sAOF, a2ld, r+4, r+7, SA1, SA1+3, sAOF, a2ld, sAOF, sAOF)
    for b in range(8): txt += ""
    txt += render(finalize(S.ins))
    for b in range(8): txt += a_ld(b)
    if stamp: txt += "s_memrealtime s[64+30:65+30]\n" if False else ""
    def tr(buf, slot):
        w = WB + 8*buf
        o = slot*2048
        return ("ds_read_b64_tr_b16 v[%d:%d], v9 offset:%d\nds_read_b64_tr_b16 v[%d:%d], v9 offset:%d\nds_read_b64_tr_b16 v[%d:%d], v10 offset:%d\nds_read_b64_tr_b16 v[%d:%d], v10 offset:%d\n"
                % (w, w+1, o, w+2, w+3, o+1024, w+4, w+5, o, w+6, w+7, o+1024))
    def mf(buf, b):
        w = WB + 8*buf; r = AB + 8*b; t = ""
        for a in range(2):
            for bb in range(2):
                acc = ACC + (a*2+bb)*16
                t += "v_mfma_f32_32x32x16_bf16 v[%d:%d], v[%d:%d], v[%d:%d], v[%d:%d]\n" % (acc, acc+15, w+4*a, w+4*a+3, r+4*bb, r+4*bb+3, acc, acc+15)
        return t
    txt += "s_waitcnt vmcnt(16)\n" + tr(0, 0)
    def kstep(b, vm):
        nb = (b+1) & 7
        t = "s_waitcnt vmcnt(%d)\n" % vm
        t += tr((b+1) & 1, nb)
        t += "s_waitcnt lgkmcnt(4)\n"
        t += mf(b & 1, b)
        t += "s_add_u32 m0, s%d, %d\n" % (sLB, b*2048)
        t += "buffer_load_dwordx4 v%d, s[%d:%d], s%d offen lds\nbuffer_load_dwordx4 v%d, s[%d:%d], s%d offen offset:1024 lds\ns_add_u32 s%d, s%d, 65536\n" % (vP0, SWD, SWD+3, sWOF, vP1, SWD, SWD+3, sWOF, sWOF, sWOF)
        t += a_ld(b)
        return t
    for b in range(8): txt += kstep(b, 14 + 2*b)
    txt += "s_mov_b32 s%d, 2\n%s_ffn:\n" % (sIT, lab)
    for b in range(8): txt += kstep(b, 24)
    txt += "s_sub_u32 s%d, s%d, 1\ns_cmp_lg_u32 s%d, 0\ns_cbranch_scc1 %s_ffn\n" % (sIT, sIT, sIT, lab)
    txt += "s_waitcnt vmcnt(0) lgkmcnt(0)\n"
    if stamp and lab == "L_f": txt += "s_memrealtime s[30:31]\n"
    S = Stream()
    S("s_bitcmp1_b32 %s, 0\ns_cselect_b32 s%d, s%d, s%d\ns_cselect_b32 s%d, s%d, s%d\ns_mov_b32 s%d, %d\ns_mov_b32 s%d, 0x20000" % (sW, SC, P['cim'], P['cre'], SC+1, P['cim']+1, P['cre']+1, SC+2, 512*1024, SC+3))
    S("v_and_b32 v5, 7, v1\nv_lshrrev_b32 v4, 4, v1\nv_xor_b32 v5, v5, v4\nv_lshlrev_b32 v5, 4, v5\nv_lshrrev_b32 v4, 3, v1\nv_lshl_add_u32 v36, v4, 10, v5")
    S("v_xor_b32 v37, 64, v36\nv_add_u32 v38, 14336, v36\nv_add_u32 v39, %d, v37\nv_add_u32 v37, 7168, v37" % (14336+7168))
    S("s_lshl_b32 s%d, s%d, 16\ns_lshr_b32 s%d, %s, 1\ns_lshl_b32 s%d, s%d, 7\ns_add_u32 s%d, s%d, s%d" % (sWOF, sNT, sT0, sW, sT0, sT0, sWOF, sWOF, sT0))
    def c_dma(buf):
        t = ""
        for h in range(2):
            t += "s_add_u32 m0, s%d, %d\n" % (sLB, buf*8192 + h*4096)
            if h == 1: t += "s_add_u32 s%d, s%d, 32768\n" % (sT1, sWOF)
            so = sWOF if h == 0 else sT1
            for i in range(4):
                t += "buffer_load_dwordx4 v%d, s[%d:%d], s%d offen offset:%d lds\n" % (36+i, SC, SC+3, so, 1024*i)
        t += "s_add_u32 s%d, s%d, 256\n" % (sWOF, sWOF)
        return t
    S("s_mul_i32 s%d, s%d, %d\ns_add_u32 s%d, s%d, %d" % (sT0, sMT, 2*RG_BYTES, sT0, sT0, 86*1024))
    srd(S, SA0, P['ws'], 64*1024, "s%d" % sT0)
    S("s_add_u32 s%d, s%d, %d" % (sT0, sT0, RG_BYTES))
    srd(S, SA1, P['ws'], 64*1024, "s%d" % sT0)
    S("s_lshr_b32 s%d, %s, 1\ns_lshl_b32 s%d, s%d, 13\ns_and_b32 s%d, %s, 1\ns_lshl_b32 s%d, s%d, 11\ns_add_u32 s%d, s%d, s%d" % (sAOF, sW, sAOF, sAOF, sT0, sW, sT0, sT0, sAOF, sAOF, sT0))
    S("v_and_b32 v4, 31, v1\nv_lshrrev_b32 v5, 5, v1\nv_bfe_u32 v6, v4, 1, 3\nv_lshlrev_b32 v4, 7, v4\nv_add_u32 v4, s%d, v4" % sLB)
    for k in range(4):
        S("v_or_b32 v40, %d, v5\nv_xor_b32 v40, v40, v6\nv_lshl_add_u32 v%d, v40, 4, v4" % (2*k, 41+k))
    txt += render(finalize(S.ins))
    def ga_ld(buf):
        t = ""
        for k in range(4):
            jj, s = k >> 1, k & 1
            r = AB + 32*buf + 8*k
            o = jj*4096 + s*1024
            so = sAOF
            t += "buffer_load_dwordx4 v[%d:%d], v8, s[%d:%d], s%d offen offset:%d%s\n" % (r, r+3, SA0, SA0+3, so, s*1024, a2ld) if jj == 0 else "buffer_load_dwordx4 v[%d:%d], v8, s[%d:%d], s%d offen offset:%d%s\n" % (r, r+3, SA0, SA0+3, sT0, s*1024, a2ld)
            t += "buffer_load_dwordx4 v[%d:%d], v8, s[%d:%d], s%d offen offset:%d%s\n" % (r+4, r+7, SA1, SA1+3, so if jj == 0 else sT0, s*1024, a2ld)
        return "s_add_u32 s%d, s%d, 4096\n" % (sT0, sAOF) + t + "s_add_u32 s%d, s%d, 16384\n" % (sAOF, sAOF)
    txt += c_dma(0) + ga_ld(0) + c_dma(1) + ga_ld(1)
    for g in range(4):
        buf = g & 1
        txt += "s_waitcnt vmcnt(%d)\n" % (16 if g < 3 else 0)
        for k in range(4):
            w = WB + 8*(k & 1)
            for a in range(2):
                txt += "ds_read_b128 v[%d:%d], v%d offset:%d\n" % (w+4*a, w+4*a+3, 41+k, buf*8192 + a*4096)
            txt += "s_waitcnt lgkmcnt(0)\n"
            r = AB + 32*buf + 8*k
            for a in range(2):
                for bb in range(2):
                    acc = ACC + (a*2+bb)*16
                    txt += "v_mfma_f32_32x32x16_bf16 v[%d:%d], v[%d:%d], v[%d:%d], v[%d:%d]\n" % (acc, acc+15, w+4*a, w+4*a+3, r+4*bb, r+4*bb+3, acc, acc+15)
        if g + 2 < 4: txt += c_dma(buf) + ga_ld(buf)
    E = Stream()
    BUF = AB
    E("v_and_b32 v44, 31, v1\nv_lshrrev_b32 v45, 5, v1\nv_and_b32 v46, 15, v1\nv_xor_b32 v46, v46, v45\nv_lshlrev_b32 v46, 4, v46\nv_lshlrev_b32 v47, 8, v44")
    E("s_add_u32 s%d, s%d, %d\nv_add_u32 v47, s%d, v47" % (sT0, sLB, RED, sT0))
    for a in range(2):
        for g in range(4):
            E("v_xor_b32 v48, %d, v46\nv_add_u32 v%d, v47, v48" % ((8*a+2*g) << 4, 50 + a*4 + g))
    E("s_nop 7")
    for a in range(2):
        for bb in range(2):
            acc = ACC + (a*2+bb)*16
            for g in range(4):
                E("ds_write_b128 v%d, v[%d:%d] offset:%d" % (50+a*4+g, acc+4*g, acc+4*g+3, bb*8192))
    E.add(Wait(lgkm_all=True))
    E("s_barrier")
    for i in range(4):
        E("v_add_u32 v44, %d, v11\nv_and_b32 v45, 15, v44\nv_xor_b32 v45, v45, v12\nv_lshlrev_b32 v45, 4, v45\nv_lshl_add_u32 v%d, v44, 8, v45\nv_add_u32 v%d, %d, v%d" % (4*i, 58+i, 58+i, RED, 58+i))
    for i in range(4):
        for pw in range(4):
            r = BUF + (i*4+pw)*4
            E("ds_read_b128 v[%d:%d], v%d offset:%d" % (r, r+3, 58+i, pw*16384))
    E("s_lshl_b32 s%d, s%d, 8\nv_lshlrev_b32 v48, 11, v13\nv_lshl_add_u32 v48, v12, 4, v48\nv_add_u32 v48, s%d, v48" % (sT0, sNT, sT0))
    E("s_mov_b32 s84, 0\ns_movk_i32 s85, 8192\ns_movk_i32 s86, 16384\ns_movk_i32 s87, 24576\ns_mov_b32 s88, 0xffff0000")
    E("v_lshlrev_b32 v50, 16, v%d\nv_and_b32 v51, s88, v%d\nv_lshlrev_b32 v52, 16, v%d\nv_and_b32 v53, s88, v%d" % (DR, DR, DR+1, DR+1))
    blocks = []
    for i in range(4):
        B = []
        r = BUF + i*16
        x0 = XR+2*i; mean = SR+2*i; inv = SR+2*i+1
        T = 64 + i*16
        B += IL("v_lshlrev_b32 v%d, 16, v%d\nv_and_b32 v%d, s88, v%d\nv_lshlrev_b32 v%d, 16, v%d\nv_and_b32 v%d, s88, v%d" % (T, x0, T+1, x0, T+2, x0+1, T+3, x0+1))
        for e in range(4): B += IL("v_sub_f32 v%d, v%d, v%d" % (T+4+e, T+e, mean))
        def rnd(a, b, tmp):
            return IL("v_cvt_pk_bf16_f32 v%d, v%d, v%d\nv_lshlrev_b32 v%d, 16, v%d\nv_and_b32 v%d, s88, v%d" % (tmp, a, b, a, tmp, b, tmp))
        B += rnd(T+4, T+5, T+8) + rnd(T+6, T+7, T+9)
        for e in range(4): B += IL("v_mul_f32 v%d, v%d, v%d" % (T+4+e, T+4+e, inv))
        B += rnd(T+4, T+5, T+8) + rnd(T+6, T+7, T+9)
        for e in range(4): B += IL("v_mul_f32 v%d, v%d, v%d" % (T+4+e, T+4+e, 50+e))
        B += rnd(T+4, T+5, T+8) + rnd(T+6, T+7, T+9)
        B += IL("v_pk_add_f32 v[%d:%d], v[%d:%d], v[%d:%d]\nv_pk_add_f32 v[%d:%d], v[%d:%d], v[%d:%d]" % (T, T+1, T, T+1, T+4, T+5, T+2, T+3, T+2, T+3, T+6, T+7))
        B2 = []
        for h in range(2):
            B2 += IL("v_pk_add_f32 v[%d:%d], v[%d:%d], v[%d:%d]\nv_pk_add_f32 v[%d:%d], v[%d:%d], v[%d:%d]" % (r+2*h, r+2*h+1, r+2*h, r+2*h+1, r+4+2*h, r+5+2*h, r+8+2*h, r+9+2*h, r+8+2*h, r+9+2*h, r+12+2*h, r+13+2*h))
        for h in range(2):
            B2 += IL("v_pk_add_f32 v[%d:%d], v[%d:%d], v[%d:%d]\nv_pk_add_f32 v[%d:%d], v[%d:%d], v[%d:%d]" % (r+2*h, r+2*h+1, r+2*h, r+2*h+1, r+8+2*h, r+9+2*h, r+2*h, r+2*h+1, r+2*h, r+2*h+1, T+2*h, T+2*h+1))
        B2 += IL("buffer_store_dwordx4 v[%d:%d], v48, s[%d:%d], s%d offen" % (r, r+3, SO, SO+3, 84+i))
        blocks.append((B, B2))
    for k in range(len(blocks[0][0])):
        for i in range(4): E.add(blocks[i][0][k])
    for i in range(4): E.extend(blocks[i][1])
    txt += render(finalize(E.ins))
    return txt
```

```python
from common import *
WS_FL = 0x60000
def I(text, tag=None): return Ins(text, tag)
def IL(text, tag=None): return [Ins(l.strip(), tag) for l in text.strip().split("\n") if l.strip()]
ACC = 64; AB = 128; WB = 224
RED = 65536
vP0, vP1, vR0, vR1 = 5, 6, 9, 10
vC = [11, 12, 13, 14]; vD = [15, 16, 24, 25]
SWD, SC = 44, 48
sWOF, sLB, sCOF, sTa, sTb = 77, 78, 79, 76, 99
def AW(item, a):
    return 8*item + 4*a

def w2_setup(sJ, sW, P):
    L = []
    a, b, c = 26, 4, 7+0
    a, b = 26, 4
    L += IL("s_lshl_b32 s%d, %s, 15" % (sLB, sW))
    L += IL("v_lshrrev_b32 v%d, 3, v1\nv_bfe_u32 v%d, v1, 4, 1\nv_lshlrev_b32 v%d, 2, v%d\nv_and_b32 v%d, 7, v1\nv_xor_b32 v%d, v%d, v%d\nv_lshlrev_b32 v%d, 4, v%d\nv_lshl_add_u32 v%d, v%d, 10, v%d" % (a, b, b, b, vP1, b, b, vP1, b, b, vP0, a, b))
    L += IL("v_add_u32 v%d, %d, v%d" % (vP1, 8192 - 1024, vP0))
    L += IL("s_mov_b32 s%d, s%d\ns_mov_b32 s%d, s%d\ns_mov_b32 s%d, %d\ns_mov_b32 s%d, 0x20000" % (SWD, P['wd'], SWD+1, P['wd']+1, SWD+2, 1376*1024, SWD+3))
    L += IL("s_and_b32 s%d, %s, 7\ns_lshl_b32 s%d, s%d, 7\ns_lshl_b32 s%d, %s, 14\ns_add_u32 s%d, s%d, s%d" % (sTa, sJ, sWOF, sTa, sTb, sW, sWOF, sWOF, sTb))
    return L
def w2_setup2(sJ, sW, P):
    L = []
    a, b = 26, 4
    L += IL("v_bfe_u32 v%d, v1, 2, 2\nv_bfe_u32 v%d, v1, 5, 1\nv_lshl_add_u32 v%d, v%d, 2, v%d\nv_lshlrev_b32 v%d, 7, v%d" % (a, b, a, b, a, a, a))
    L += IL("v_bfe_u32 v%d, v1, 4, 1\nv_lshlrev_b32 v%d, 1, v%d\nv_bfe_u32 v%d, v1, 1, 1\nv_add_u32 v%d, v%d, v%d\nv_bfe_u32 v%d, v1, 3, 1\nv_lshlrev_b32 v%d, 2, v%d\nv_xor_b32 v%d, v%d, v%d" % (b, b, b, vR1, b, b, vR1, vR1, vR1, vR1, b, b, vR1))
    L += IL("v_lshl_add_u32 v%d, v%d, 4, v%d\nv_and_b32 v%d, 1, v1\nv_lshl_add_u32 v%d, v%d, 3, v%d\nv_add_u32 v%d, s%d, v%d\nv_xor_b32 v%d, 64, v%d" % (a, b, a, b, a, b, a, vR0, sLB, a, vR1, vR0))
    L.append(IL("s_bitcmp1_b32 %s, 0\ns_cselect_b32 s%d, s%d, s%d\ns_cselect_b32 s%d, s%d, s%d" % (sW, SC, P['cim'], P['cre'], SC+1, P['cim']+1, P['cre']+1)))
    L += IL("s_mov_b32 s%d, %d\ns_mov_b32 s%d, 0x20000" % (SC+2, 512*1024, SC+3))
    L += IL("v_and_b32 v%d, 7, v1\nv_lshrrev_b32 v%d, 4, v1\nv_xor_b32 v%d, v%d, v%d\nv_lshlrev_b32 v%d, 4, v%d\nv_lshrrev_b32 v%d, 3, v1\nv_lshl_add_u32 v%d, v%d, 10, v%d" % (b, a, b, b, a, b, b, a, vC[0], a, b))
    L += IL("v_xor_b32 v%d, 64, v%d\nv_add_u32 v%d, 14336, v%d\nv_add_u32 v%d, %d, v%d\nv_add_u32 v%d, 7168, v%d" % (vC[1], vC[0], vC[2], vC[0], vC[3], 14336+7168, vC[1], vC[1], vC[1]))
    L += IL("s_and_b32 s%d, %s, 7\ns_lshl_b32 s%d, s%d, 16\ns_lshr_b32 s%d, %s, 1\ns_lshl_b32 s%d, s%d, 7\ns_add_u32 s%d, s%d, s%d" % (sTa, sJ, sCOF, sTa, sTb, sW, sTb, sTb, sCOF, sCOF, sTb))
    L += IL("v_and_b32 v%d, 31, v1\nv_lshrrev_b32 v%d, 5, v1\nv_bfe_u32 v%d, v%d, 1, 3\nv_lshlrev_b32 v%d, 7, v%d" % (a, b, vD[3], a, a, a))
    for k in range(4):
        t = vD[k] if k < 3 else b
        if k < 3:
            L += IL("v_or_b32 v%d, %d, v%d\nv_xor_b32 v%d, v%d, v%d\nv_lshl_add_u32 v%d, v%d, 4, v%d" % (vD[k], 2*k, b, vD[k], vD[k], vD[3], vD[k], vD[k], a))
        else:
            L += IL("v_or_b32 v%d, 6, v%d\nv_xor_b32 v%d, v%d, v%d\nv_lshl_add_u32 v%d, v%d, 4, v%d" % (b, b, vD[3], b, vD[3], vD[3], vD[3], a))
    for k in range(4): L += IL("v_add_u32 v%d, s%d, v%d" % (vD[k], sLB, vD[k]))
    return L
def dma_ffn(slot_off, tag):
    g = IL("s_add_u32 m0, s%d, %d" % (sLB, slot_off)) + [I("buffer_load_dwordx4 v%d, s[%d:%d], s%d offen lds" % (vP0, SWD, SWD+3, sWOF), tag)]
    g2 = [I("buffer_load_dwordx4 v%d, s[%d:%d], s%d offen offset:1024 lds" % (vP1, SWD, SWD+3, sWOF), tag)] + IL("s_add_u32 s%d, s%d, 65536" % (sWOF, sWOF))
    return [g, g2]
def dma_ssm(off, tag, base=None):
    G = []
    base = sLB if base is None else base
    for h in range(2):
        pre = IL("s_add_u32 m0, s%d, %d" % (base, off + h*4096))
        if h == 1: pre += IL("s_add_u32 s%d, s%d, 32768" % (sTb, sCOF))
        so = sCOF if h == 0 else sTb
        for i in range(4):
            ins = I("buffer_load_dwordx4 v%d, s[%d:%d], s%d offen offset:%d lds" % (vC[i], SC, SC+3, so, 1024*i), tag)
            G.append((pre if i == 0 else []) + [ins] + (IL("s_add_u32 s%d, s%d, 256" % (sCOF, sCOF)) if (h == 1 and i == 3) else []))
    return G
def rd_ffn(item, off):
    L = []
    for a, v in ((0, vR0), (1, vR1)):
        r = AW(item, a)
        L.append(I("ds_read_b64_tr_b16 a[%d:%d], v%d offset:%d" % (r, r+1, v, off)))
        L.append(I("ds_read_b64_tr_b16 a[%d:%d], v%d offset:%d" % (r+2, r+3, v, off+1024)))
    return L
def rd_ssm(g, off):
    L = []
    for k in range(4):
        for a in range(2):
            r = AW(22 + 4*g + k, a)
            L.append(I("ds_read_b128 a[%d:%d], v%d offset:%d" % (r, r+3, vD[k], off + a*4096)))
    return L
def rounds():
    d1 = []
    for i in range(16): d1 += dma_ffn(i*2048, 'w1')
    r1 = [Wait(vm_tag='w1')]
    for i in range(16): r1 += rd_ffn(i, i*2048)
    d2 = [Wait(lgkm_all=True)]
    for i in range(16, 22): d2 += dma_ffn((i-16)*2048, 'w2')
    d2 += dma_ssm(12288, 'w2') + dma_ssm(20480, 'w2')
    r2 = [Wait(vm_tag='w2')]
    for i in range(16, 22): r2 += rd_ffn(i, (i-16)*2048)
    r2 += rd_ssm(0, 12288) + rd_ssm(1, 20480)
    return d1, r1, d2, r2

def p2_main(sM, sJ, sW, P, poll, a2ld=" sc1", stampfn=None, D=12):
    SA0, SA1, SXo, SDS, SO, SST = 52, 56, 64, 68, 72, 40
    sMT, sNT, sAOF, sT0, sT1, sL3 = 88, 89, 90, 92, 93, 91
    S = Stream()
    S("s_lshl_b32 s%d, %s, 14" % (sL3, sW))
    S.extend(flat(dma_ssm(0, 'w3', base=sL3) + dma_ssm(8192, 'w3', base=sL3)))
    for k in range(4): S("v_subrev_u32 v%d, s%d, v%d" % (vD[k], sL3, vD[k]))
    S("s_lshr_b32 s%d, %s, 3\ns_lshl_b32 s%d, %s, 1\ns_add_u32 s%d, s%d, s%d\ns_and_b32 s%d, %s, 7" % (sT0, sJ, sMT, sM, sMT, sMT, sT0, sNT, sJ))
    S("s_mul_i32 s%d, s%d, %d" % (sT0, sMT, 2*RG_BYTES))
    srd(S, SA0, P['ws'], 86*1024, "s%d" % sT0)
    S("s_add_u32 s%d, s%d, %d" % (sT0, sT0, RG_BYTES))
    srd(S, SA1, P['ws'], 86*1024, "s%d" % sT0)
    S("v_lshlrev_b32 v8, 4, v1\ns_lshl_b32 s%d, %s, 10" % (sAOF, sW))
    S("v_lshrrev_b32 v11, 4, v1\ns_lshl_b32 s%d, %s, 4\nv_add_u32 v11, s%d, v11" % (sT0, sW, sT0))
    S("v_and_b32 v12, 15, v1\ns_lshl_b32 s%d, s%d, 6\nv_add_u32 v13, s%d, v11" % (sT0, sMT, sT0))
    S("s_lshl_b32 s%d, s%d, 7\nv_lshlrev_b32 v14, 10, v13\nv_lshl_add_u32 v14, v12, 3, v14\nv_add_u32 v14, s%d, v14" % (sT0, sNT, sT0))
    S("v_lshlrev_b32 v17, 4, v13\nv_lshlrev_b32 v26, 3, v12\nv_add_u32 v26, s%d, v26" % sT0)
    srd(S, SXo, P['x'], 2048*1024); srd(S, SDS, P['dsk'], 1024); srd(S, SO, P['out'], 2048*2048); srd(S, SST, P['ws'], 2048*16, WS_ST)
    XR, SR, DR = 28, 36, 44
    S("s_mov_b32 s84, 0\ns_movk_i32 s85, 4096\ns_movk_i32 s86, 8192\ns_movk_i32 s87, 12288")
    for i in range(4): S("buffer_load_dwordx2 v[%d:%d], v14, s[%d:%d], s%d offen" % (XR+2*i, XR+2*i+1, SXo, SXo+3, 84+i))
    S("buffer_load_dwordx2 v[%d:%d], v26, s[%d:%d], 0 offen" % (DR, DR+1, SDS, SDS+3))
    for i in range(4):
        S("buffer_load_dword v%d, v17, s[%d:%d], 0 offen offset:%d sc1\nbuffer_load_dword v%d, v17, s[%d:%d], 0 offen offset:%d sc1" % (SR+2*i, SST, SST+3, 64*i, SR+2*i+1, SST, SST+3, 64*i+8))
    txt = render(finalize(S.ins))
    txt += poll
    M = Stream()
    items = []
    for i in range(22): items.append(('f', i))
    for g in range(4):
        for k in range(4): items.append(('s', g, k))
    def a_loads(n):
        it = items[n]; r = AB + 8*(n % D)
        L = []
        if it[0] == 'f':
            L += IL("buffer_load_dwordx4 v[%d:%d], v8, s[%d:%d], s%d offen%s\nbuffer_load_dwordx4 v[%d:%d], v8, s[%d:%d], s%d offen%s\ns_add_u32 s%d, s%d, 4096" % (r, r+3, SA0, SA0+3, sAOF, a2ld, r+4, r+7, SA1, SA1+3, sAOF, a2ld, sAOF, sAOF), ('A', n))
        else:
            g, k = it[1], it[2]
            if g == 0 and k == 0:
                L += IL("s_add_u32 s%d, s%d, %d\ns_addc_u32 s%d, s%d, 0\ns_mov_b32 s%d, %d" % (SA0, SA0, 86*1024, SA0+1, SA0+1, SA0+2, 64*1024))
                L += IL("s_add_u32 s%d, s%d, %d\ns_addc_u32 s%d, s%d, 0\ns_mov_b32 s%d, %d" % (SA1, SA1, 86*1024, SA1+1, SA1+1, SA1+2, 64*1024))
                L += IL("s_lshr_b32 s%d, %s, 1\ns_lshl_b32 s%d, s%d, 13\ns_and_b32 s%d, %s, 1\ns_lshl_b32 s%d, s%d, 11\ns_add_u32 s%d, s%d, s%d" % (sAOF, sW, sAOF, sAOF, sT0, sW, sT0, sT0, sAOF, sAOF, sT0))
            jj, s = k >> 1, k & 1
            if k == 2: L += IL("s_add_u32 s%d, s%d, 4096" % (sAOF, sAOF))
            L += IL("buffer_load_dwordx4 v[%d:%d], v8, s[%d:%d], s%d offen offset:%d%s\nbuffer_load_dwordx4 v[%d:%d], v8, s[%d:%d], s%d offen offset:%d%s" % (r, r+3, SA0, SA0+3, sAOF, s*1024, a2ld, r+4, r+7, SA1, SA1+3, sAOF, s*1024, a2ld), ('A', n))
            if k == 3: L += IL("s_add_u32 s%d, s%d, 12288" % (sAOF, sAOF))
        return L
    for n in range(D): M.extend(a_loads(n))
    N = len(items)
    def wsrc(n):
        it = items[n]
        if it[0] == 'f': return [("a[%d:%d]" % (AW(n, a), AW(n, a)+3)) for a in range(2)]
        g, k = it[1], it[2]
        if g < 2: return [("a[%d:%d]" % (AW(22+4*g+k, a), AW(22+4*g+k, a)+3)) for a in range(2)]
        w = WB + 8*(k & 1)
        return [("v[%d:%d]" % (w+4*a, w+4*a+3)) for a in range(2)]
    def lds_w(n):
        it = items[n]
        if it[0] == 's' and it[1] >= 2:
            g, k = it[1], it[2]; w = WB + 8*(k & 1)
            return [I("ds_read_b128 v[%d:%d], v%d offset:%d" % (w+4*a, w+4*a+3, vD[k], (g-2)*8192 + a*4096)) for a in range(2)]
        return []
    for n in range(N):
        if n == 28: M.add(Wait(vm_tag='w3x'))
        if n + 1 < N:
            nx = lds_w(n+1)
        r = AB + 8*(n % D)
        ws_ = wsrc(n)
        first = (n == 0)
        for a in range(2):
            for bb in range(2):
                acc = ACC + (a*2+bb)*16
                c = "0" if first else "v[%d:%d]" % (acc, acc+15)
                M("v_mfma_f32_32x32x16_bf16 v[%d:%d], %s, v[%d:%d], %s" % (acc, acc+15, ws_[a], r+4*bb, r+4*bb+3, c))
                if a == 0 and bb == 0 and n + 1 < N: M.extend(lds_w(n+1))
        if n + D < N: M.extend(a_loads(n + D))
    E = M
    BUF = AB
    E("v_and_b32 v46, 31, v1\nv_lshrrev_b32 v47, 5, v1\nv_and_b32 v48, 15, v1\nv_xor_b32 v48, v48, v47\nv_lshlrev_b32 v48, 4, v48\nv_lshlrev_b32 v49, 8, v46")
    E("s_lshl_b32 s%d, %s, 14\ns_add_u32 s%d, s%d, %d\nv_add_u32 v49, s%d, v49" % (sT0, sW, sT0, sT0, RED, sT0))
    for a in range(2):
        for g in range(4):
            E("v_xor_b32 v50, %d, v48\nv_add_u32 v%d, v49, v50" % ((8*a+2*g) << 4, 52 + a*4 + g))
    for a in range(2):
        for bb in range(2):
            acc = ACC + (a*2+bb)*16
            for g in range(4):
                E("ds_write_b128 v%d, v[%d:%d] offset:%d" % (52+a*4+g, acc+4*g, acc+4*g+3, bb*8192))
    E("s_mov_b32 s88, 0xffff0000")
    E("v_lshlrev_b32 v2, 16, v%d\nv_and_b32 v3, s88, v%d\nv_lshlrev_b32 v4, 16, v%d\nv_and_b32 v5, s88, v%d" % (DR, DR, DR+1, DR+1))
    blocks = []
    for i in range(4):
        B = []
        r = BUF + i*16
        x0 = XR+2*i; mean = SR+2*i; inv = SR+2*i+1
        T = 192 + i*12
        B += IL("v_lshlrev_b32 v%d, 16, v%d\nv_and_b32 v%d, s88, v%d\nv_lshlrev_b32 v%d, 16, v%d\nv_and_b32 v%d, s88, v%d" % (T, x0, T+1, x0, T+2, x0+1, T+3, x0+1))
        for e in range(4): B += IL("v_sub_f32 v%d, v%d, v%d" % (T+4+e, T+e, mean))
        def rnd(a, b, tmp):
            return IL("v_cvt_pk_bf16_f32 v%d, v%d, v%d\nv_lshlrev_b32 v%d, 16, v%d\nv_and_b32 v%d, s88, v%d" % (tmp, a, b, a, tmp, b, tmp))
        B += rnd(T+4, T+5, T+8) + rnd(T+6, T+7, T+9)
        for e in range(4): B += IL("v_mul_f32 v%d, v%d, v%d" % (T+4+e, T+4+e, inv))
        B += rnd(T+4, T+5, T+8) + rnd(T+6, T+7, T+9)
        for e in range(4): B += IL("v_mul_f32 v%d, v%d, v%d" % (T+4+e, T+4+e, 2+e))
        B += rnd(T+4, T+5, T+8) + rnd(T+6, T+7, T+9)
        B += IL("v_pk_add_f32 v[%d:%d], v[%d:%d], v[%d:%d]\nv_pk_add_f32 v[%d:%d], v[%d:%d], v[%d:%d]" % (T, T+1, T, T+1, T+4, T+5, T+2, T+3, T+2, T+3, T+6, T+7))
        B2 = []
        for h in range(2):
            B2 += IL("v_pk_add_f32 v[%d:%d], v[%d:%d], v[%d:%d]\nv_pk_add_f32 v[%d:%d], v[%d:%d], v[%d:%d]" % (r+2*h, r+2*h+1, r+2*h, r+2*h+1, r+4+2*h, r+5+2*h, r+8+2*h, r+9+2*h, r+8+2*h, r+9+2*h, r+12+2*h, r+13+2*h))
        for h in range(2):
            B2 += IL("v_pk_add_f32 v[%d:%d], v[%d:%d], v[%d:%d]\nv_pk_add_f32 v[%d:%d], v[%d:%d], v[%d:%d]" % (r+2*h, r+2*h+1, r+2*h, r+2*h+1, r+8+2*h, r+9+2*h, r+2*h, r+2*h+1, r+2*h, r+2*h+1, T+2*h, T+2*h+1))
        B2 += IL("buffer_store_dwordx4 v[%d:%d], v50, s[%d:%d], s%d offen" % (r, r+3, SO, SO+3, 84+i))
        blocks.append((B, B2))
    for k in range(len(blocks[0][0])):
        for i in range(4): E.add(blocks[i][0][k])
    E.add(Wait(lgkm_all=True))
    E("s_barrier")
    for i in range(4):
        E("v_add_u32 v46, %d, v11\nv_and_b32 v47, 15, v46\nv_xor_b32 v47, v47, v12\nv_lshlrev_b32 v47, 4, v47\nv_lshl_add_u32 v%d, v46, 8, v47\nv_add_u32 v%d, %d, v%d" % (4*i, 60+i, 60+i, RED, 60+i))
    for i in range(4):
        for pw in range(4):
            r = BUF + (i*4+pw)*4
            E("ds_read_b128 v[%d:%d], v%d offset:%d" % (r, r+3, 60+i, pw*16384))
    E("s_lshl_b32 s%d, s%d, 8\nv_lshlrev_b32 v50, 11, v13\nv_lshl_add_u32 v50, v12, 4, v50\nv_add_u32 v50, s%d, v50" % (sT0, sNT, sT0))
    E("s_mov_b32 s84, 0\ns_movk_i32 s85, 8192\ns_movk_i32 s86, 16384\ns_movk_i32 s87, 24576")
    for i in range(4): E.extend(blocks[i][1])
    txt += render(finalize(M.ins))
    return txt
```

```python
from common import *
from p1e import gen_p1
import sys
acq = len(sys.argv) > 2
st = int(sys.argv[1]) if len(sys.argv) > 1 else 0
o = header_comments()
o.append("; @launch grid=(256,1,1) block=(256,1,1) lds=163840")
o += ['.amdgcn_target "amdgcn-amd-amdhsa--gfx950"', ".text"]
t = "\n".join(o) + "\n" + gen_p1(KBASE + "_kernel", fused=2, a2mod=" sc1", stamp=st, acq=acq)
open("f2k%s.s" % ((("s%d" % st) if st else "") + ("a" if acq else "")), "w").write(t)
```

```python
from common import *
import p2c, p2d
import struct
def f2u(x): return struct.unpack('<I', struct.pack('<f', x))[0]
LOG2E = 1.4426950408889634
GC0 = -2.0 * LOG2E * 0.7978845608028654
GC1 = GC0 * 0.044715

M0 = 131072
CSL = M0; INVL = M0 + 16384; SEG = M0 + 16896; CSR = M0 + 18944; NONL = M0 + 19456
LDS_BYTES = 163840
WS_AGR = 0x10000; WS_CS = 0x30000; WS_ZR = 0x40000; WS_FL = 0x60000; WSM_BYTES = 0x70000
vNK = [5, 6, 7, 8]; vKN = [9, 10, 11, 12]; vK2 = vKN; vW = [13, 14, 15, 16]
vT0, vT1 = 17, 18
vXA = [19, 20, 21, 22]; vBA = [23, 24, 25, 26]
vAO = 27
vK0 = [28, 29]; vK1 = [30, 31]; vS2 = [32, 33]
vT2a, vT2b = 34, 35
XAUG = [36, 40]; WAUG = [44, 48]
vLr, vLi, vL16r, vL16i, vL128r, vL128i, vcr, vci = range(52, 60)
vF = [(60, 61), (62, 63)]
vnLi, vnL16i, vnci = 13, 14, 15
U0 = 64
WF = 96
ACCA = 128; ACCB = 192
def acca(r, acc): return ACCA + 32*r + 16*acc
def accb(r, acc): return ACCB + 32*r + 16*acc
def XF(r, ks): return 128*r + 4*ks
sM, sJ, sW, sRGP, sCG = 3, 4, 5, 6, 7
P_X, P_LRE, P_LIM, P_BRE, P_BIM, P_CRE, P_CIM, P_LDT = 8, 10, 12, 14, 16, 18, 20, 22
P_DSK, P_BX, P_WG, P_WU, P_WD, P_OUT, P_DBG, P_WS = 24, 26, 28, 30, 32, 34, 36, 38
SX, SW1, SW2, SA0, SA1, SWS, SDBG, SC0, SP = 40, 44, 48, 52, 56, 60, 64, 68, 72
sXOFF, sWOFF, sWSTR, sW2OFF, sLDSW, sUOFF1, sUOFF2, sT0, sT1, sNON, sHIM, sRGPF = range(76, 88)
sHH = 88; sAGM = 90; sM0, sM1, sSPIN = 92, 93, 94
sUA, sUB, sUC = 95, 96, 97
sXK, sXK2, sDO = 101, 100, 99

def I(text, tag=None): return Ins(text, tag)
def IL(text, tag=None): return [Ins(l.strip(), tag) for l in text.strip().split("\n") if l.strip()]
def bf16r(lst, x, t):
    lst.append(I("v_cvt_pk_bf16_f32 v%d, v%d, v%d" % (t, x, x)))
    lst.append(I("v_lshlrev_b32 v%d, 16, v%d" % (x, t)))
def cmul_into(lst, dr, di, ar, ai, br, bi):
    lst.append(I("v_mul_f32 v%d, v%d, v%d" % (dr, ar, br)))
    lst.append(I("v_mul_f32 v%d, v%d, v%d" % (di, ar, bi)))
    lst.append(I("v_fma_f32 v%d, -v%d, v%d, v%d" % (dr, ai, bi, dr)))
    lst.append(I("v_fmac_f32 v%d, v%d, v%d" % (di, ai, br)))
def csq(lst, r, i, t):
    lst.append(I("v_mul_f32 v%d, v%d, v%d" % (t, i, i)))
    lst.append(I("v_mul_f32 v%d, v%d, v%d" % (i, r, i)))
    lst.append(I("v_fma_f32 v%d, v%d, v%d, -v%d" % (r, r, r, t)))
    lst.append(I("v_add_f32 v%d, v%d, v%d" % (i, i, i)))
def cacc(lst, sr, si, lr, li, nli, pr, pi):
    lst.append(I("v_fmac_f32 v%d, v%d, v%d" % (sr, lr, pr)))
    lst.append(I("v_fmac_f32 v%d, v%d, v%d" % (si, lr, pi)))
    lst.append(I("v_fmac_f32 v%d, v%d, v%d" % (sr, nli, pi)))
    lst.append(I("v_fmac_f32 v%d, v%d, v%d" % (si, li, pr)))

A2MOD = ""
def ffn_epilogue(r, G, U, suoff, tt, SA):
    L = []
    for g in range(4):
        R = [4*g + jj for jj in range(4)]
        for jj, x in enumerate(R): L.append(I("v_mul_f32 v%d, v%d, v%d" % (tt[jj], G+x, G+x)))
        for jj, x in enumerate(R): L.append(I("v_fma_f32 v%d, v%d, v%d, v%d" % (tt[jj], tt[jj], vK1[r], vK0[r])))
        for jj, x in enumerate(R): L.append(I("v_mul_f32 v%d, v%d, v%d" % (tt[jj], tt[jj], G+x)))
        for jj, x in enumerate(R): L.append(I("v_exp_f32 v%d, v%d" % (tt[jj], tt[jj])))
        for jj, x in enumerate(R): L.append(I("v_mul_f32 v%d, v%d, v%d" % (U+x, U+x, G+x)))
        for jj, x in enumerate(R): L.append(I("v_fma_f32 v%d, v%d, v%d, v%d" % (tt[jj], tt[jj], vS2[r], vS2[r])))
        for jj, x in enumerate(R): L.append(I("v_rcp_f32 v%d, v%d" % (tt[jj], tt[jj])))
        for jj, x in enumerate(R): L.append(I("v_mul_f32 v%d, v%d, v%d" % (U+x, U+x, tt[jj])))
        base = G + 8*(g >> 1) + 2*(g & 1)
        L.append(I("v_cvt_pk_bf16_f32 v%d, v%d, v%d" % (base, U+4*g, U+4*g+1)))
        L.append(I("v_cvt_pk_bf16_f32 v%d, v%d, v%d" % (base+1, U+4*g+2, U+4*g+3)))
        if g & 1:
            q = G + 8*(g >> 1)
            L.append(I("buffer_store_dwordx4 v[%d:%d], v%d, s[%d:%d], s%d offen offset:%d%s" % (q, q+3, vAO, SA, SA+3, suoff, 1024*(g >> 1), A2MOD), 'a2'))
    return L
def ffn_epilogue_pk(r, G, U, suoff, tt, SA, KP):
    L = []
    k01, s2 = KP
    for g in range(4):
        P2 = [(4*g, tt[0]), (4*g+2, tt[2])]
        for x, t in P2: L.append(I("v_pk_mul_f32 v[%d:%d], v[%d:%d], v[%d:%d]" % (t, t+1, G+x, G+x+1, G+x, G+x+1)))
        for x, t in P2: L.append(I("v_pk_fma_f32 v[%d:%d], v[%d:%d], v[%d:%d], v[%d:%d] op_sel:[0,1,0] op_sel_hi:[1,1,0]" % (t, t+1, t, t+1, k01, k01+1, k01, k01+1)))
        for x, t in P2: L.append(I("v_pk_mul_f32 v[%d:%d], v[%d:%d], v[%d:%d]" % (t, t+1, t, t+1, G+x, G+x+1)))
        for x, t in P2:
            L.append(I("v_exp_f32 v%d, v%d" % (t, t))); L.append(I("v_exp_f32 v%d, v%d" % (t+1, t+1)))
        for x, t in P2: L.append(I("v_pk_mul_f32 v[%d:%d], v[%d:%d], v[%d:%d]" % (U+x, U+x+1, U+x, U+x+1, G+x, G+x+1)))
        for x, t in P2: L.append(I("v_pk_fma_f32 v[%d:%d], v[%d:%d], v[%d:%d], v[%d:%d] op_sel_hi:[1,0,0]" % (t, t+1, t, t+1, s2, s2+1, s2, s2+1)))
        for x, t in P2:
            L.append(I("v_rcp_f32 v%d, v%d" % (t, t))); L.append(I("v_rcp_f32 v%d, v%d" % (t+1, t+1)))
        for x, t in P2: L.append(I("v_pk_mul_f32 v[%d:%d], v[%d:%d], v[%d:%d]" % (U+x, U+x+1, U+x, U+x+1, t, t+1)))
        base = G + 8*(g >> 1) + 2*(g & 1)
        L.append(I("v_cvt_pk_bf16_f32 v%d, v%d, v%d" % (base, U+4*g, U+4*g+1)))
        L.append(I("v_cvt_pk_bf16_f32 v%d, v%d, v%d" % (base+1, U+4*g+2, U+4*g+3)))
        if g & 1:
            q = G + 8*(g >> 1)
            L.append(I("buffer_store_dwordx4 v[%d:%d], v%d, s[%d:%d], s%d offen offset:%d%s" % (q, q+3, vAO, SA, SA+3, suoff, 1024*(g >> 1), A2MOD), 'a2'))
    return L
def tail_ffn(suoff, SA0, SA1):
    L = []
    for r in range(2):
        b = XAUG[r]
        L.append(I("v_mov_b32 v%d, v%d" % (b, vK0[r]))); L.append(I("v_mov_b32 v%d, v%d" % (b+1, vK1[r])))
        L.append(I("v_mov_b32 v%d, v%d" % (b+2, vS2[r])))
    A = ffn_epilogue_pk(0, accb(0, 0), accb(0, 1), suoff, [44, 45, 46, 47], SA0, (XAUG[0], XAUG[0]+2))
    B = ffn_epilogue_pk(1, accb(1, 0), accb(1, 1), suoff, [48, 49, 50, 51], SA1, (XAUG[1], XAUG[1]+2))
    for a_, b_ in zip(A, B): L.append(a_); L.append(b_)
    return L

def gen_p1(name, stamp=0, dens0=(5, 6), dens1=(5, 4), a2mod="", rotmask=7, w2sched=(5, 6, 7, 8, 9, 10, 11, 12), fused=None, acq=False, codepf=0):
    global A2MOD
    A2MOD = a2mod
    SLOW = []
    RT = {0: 10, 2: 12, 4: 14}
    def ST(k):
        if stamp == 1: return [I("s_memtime s[%d:%d]" % (8+2*k, 9+2*k))]
        if stamp == 3 and k in RT: return [I("s_memrealtime s[%d:%d]" % (RT[k], RT[k]+1))]
        return []
    P = Stream()
    P("s_cmp_ge_u32 s2, 256\ns_cbranch_scc1 L_p1_end")
    P("s_load_dwordx16 s[8:23], s[0:1], 0\ns_load_dwordx16 s[24:39], s[0:1], 64")
    if stamp == 1: P("s_memrealtime s[0:1]\ns_memtime s[98:99]")
    if stamp == 3: P("s_memrealtime s[0:1]")
    P("v_lshrrev_b32 v1, 6, v0\nv_and_b32 v2, 31, v0\nv_readfirstlane_b32 s%d, v1\nv_and_b32 v1, 63, v0\nv_bfe_u32 v3, v0, 5, 1" % sW)
    if codepf:
        P("s_getpc_b64 s[%d:%d]" % (SC0, SC0+1))
        P("L_p1_pc:")
        P("s_bfe_u32 s%d, s2, 0x10003\ns_lshl_b32 s%d, s%d, 2\ns_add_u32 s%d, s%d, s%d\ns_lshl_b32 s%d, s%d, 13" % (sT0, sT0, sT0, sT0, sT0, sW, sT0, sT0))
        P("v_lshlrev_b32 v44, 7, v1\nv_add_u32 v44, s%d, v44\nv_min_u32 v44, %d, v44" % (sT0, codepf))
        P("v_mov_b32 v47, s%d\nv_add_co_u32 v46, vcc, s%d, v44\nv_addc_co_u32 v47, vcc, 0, v47, vcc" % (SC0+1, SC0))
        P("global_load_dword v255, v[46:47], off", 'cpf')
    P("s_and_b32 s3, s2, 1\ns_lshl_b32 s3, s3, 3\ns_bfe_u32 s%d, s2, 0x30003\ns_add_u32 s3, s3, s%d" % (sT0, sT0))
    P("s_bfe_u32 s4, s2, 0x20001\ns_lshl_b32 s4, s4, 2\ns_lshr_b32 s%d, s2, 6\ns_add_u32 s4, s4, s%d" % (sT0, sT0))
    P("v_and_b32 v46, 7, v1\nv_lshrrev_b32 v45, 4, v1\nv_xor_b32 v46, v46, v45\nv_lshlrev_b32 v46, 4, v46")
    P("v_lshrrev_b32 v45, 3, v1\nv_lshl_add_u32 v%d, v45, 10, v46" % vNK[0])
    P("v_xor_b32 v%d, 64, v%d" % (vNK[1], vNK[0]))
    P("v_add_u32 v%d, %d, v%d\nv_add_u32 v%d, %d, v%d" % (vNK[2], 14336, vNK[0], vNK[3], 14336+7168, vNK[1]))
    P("v_add_u32 v%d, 7168, v%d" % (vNK[1], vNK[1]))
    P("s_lshl_b32 s%d, s%d, 12" % (sLDSW, sW))
    P("s_lshl_b32 s%d, s3, 17\ns_lshl_b32 s%d, s%d, 15\ns_add_u32 s%d, s%d, s%d" % (sXOFF, sT0, sW, sXOFF, sXOFF, sT0))
    P("s_mov_b32 s%d, %d\ns_mov_b32 s%d, 0x20000" % (SX+2, 2048*1024, SX+3))
    P("v_lshrrev_b32 v45, 2, v1\ns_movk_i32 s%d, 2752\nv_mul_lo_u32 v45, v45, s%d\nv_and_b32 v46, 3, v1\nv_lshl_add_u32 v%d, v46, 4, v45" % (sT0, sT0, vKN[0]))
    for i in range(1, 4): P("v_add_u32 v%d, %d, v%d" % (vKN[i], 43008*i, vKN[0]))
    P("s_and_b32 s%d, s%d, 1\ns_lshr_b32 s%d, s%d, 1" % (sRGP, sW, sCG, sW))
    P("s_mul_i32 s%d, s4, 3\ns_add_u32 s%d, s%d, 1\ns_add_u32 s%d, s%d, 2" % (sUA, sUB, sUA, sUC, sUA))
    P("s_lshl_b32 s%d, s%d, 11" % (sUOFF2, sUB))
    P("s_cmp_lt_u32 s4, 11\ns_cbranch_scc1 L_p1_u")
    P("s_lshl_b32 s%d, s4, 1\ns_add_u32 s%d, s%d, 11\ns_add_u32 s%d, s%d, 1\ns_mov_b32 s%d, s%d\ns_mov_b32 s%d, 0x10000000" % (sUA, sUA, sUA, sUC, sUA, sUB, sUA, sUOFF2))
    P("L_p1_u:")
    P("s_and_b32 s%d, s3, %d\ns_lshl_b32 s%d, s%d, 7\ns_mov_b32 s%d, s%d" % (sXK, rotmask, sXK, sXK, sXK2, sXK))
    P("s_mov_b32 s%d, 0x20000" % (SW1+3))
    def dma(vo, S_, slot, tag, pre, post=[]):
        G = []
        g0 = [I(x) for x in pre] + [I("s_add_u32 m0, s%d, %d" % (sLDSW, slot*16384))]
        for i in range(4):
            ins = I("buffer_load_dwordx4 v%d, s[%d:%d], s%d offen offset:%d lds" % (vo[i], S_, S_+3, sDO, 1024*i), tag)
            if i == 0: G.append(g0 + [ins])
            elif i == 3: G.append([ins] + [I(x) for x in post])
            else: G.append([ins])
        return G
    def dma_x(slot, tag): return dma(vNK, SX, slot, tag, ["s_add_u32 s%d, s%d, s%d" % (sDO, sXOFF, sXK)])
    def dma_w(slot, tag): return dma(vW, SW1, slot, tag, ["s_mul_i32 s%d, s%d, s%d" % (sDO, sXK, sWSTR), "s_add_u32 s%d, s%d, s%d" % (sDO, sDO, sWOFF)],
                                     ["s_add_u32 s%d, s%d, 128" % (sXK, sXK), "s_and_b32 s%d, s%d, 1023" % (sXK, sXK)])
    def dma_w2(slot, tag): return dma(vK2, SW2, slot, tag, ["s_mul_i32 s%d, s%d, 1376" % (sDO, sXK2), "s_add_u32 s%d, s%d, s%d" % (sDO, sDO, sW2OFF)],
                                      ["s_add_u32 s%d, s%d, 128" % (sXK2, sXK2), "s_and_b32 s%d, s%d, 1023" % (sXK2, sXK2)])
    def w2slot(q): return q//2 if q % 2 == 0 else 4 + (q-1)//2
    P("s_waitcnt lgkmcnt(0)")
    P("s_mov_b32 s%d, s%d\ns_mov_b32 s%d, s%d" % (SX, P_X, SX+1, P_X+1))
    P.extend(flat(dma_x(0, ('C', 0))))
    P("s_cmp_lt_u32 s%d, 2\ns_cbranch_scc0 L_p1_wffn" % sW)
    P("s_cmp_eq_u32 s%d, 0\ns_cselect_b32 s%d, s%d, s%d\ns_cselect_b32 s%d, s%d, s%d" % (sW, SW1, P_BRE, P_BIM, SW1+1, P_BRE+1, P_BIM+1))
    P("s_mov_b32 s%d, %d\ns_movk_i32 s%d, 1\ns_lshl_b32 s%d, s4, 15" % (SW1+2, 512*1024, sWSTR, sWOFF))
    for i in range(4): P("v_mov_b32 v%d, v%d" % (vW[i], vNK[i]))
    P("s_branch L_p1_wdone\nL_p1_wffn:")
    P("s_cmp_eq_u32 s%d, 2\ns_cselect_b32 s%d, s%d, s%d\ns_cselect_b32 s%d, s%d, s%d" % (sW, SW1, P_WG, P_WU, SW1+1, P_WG+1, P_WU+1))
    P("s_mov_b32 s%d, %d\ns_movk_i32 s%d, %d\ns_lshl_b32 s%d, s%d, 6" % (SW1+2, 512*2752, sWSTR, 1376, sWOFF, sUA))
    for i in range(4): P("v_mov_b32 v%d, v%d" % (vW[i], vKN[i]))
    P("L_p1_wdone:")
    P.extend(flat(dma_w(4, ('C', 0))))
    srd(P, SDBG, P_DBG, 256)
    P("s_or_b32 s%d, s2, s%d\ns_cmp_lg_u32 s%d, 0\ns_cbranch_scc1 L_p1_nn" % (sT0, sW, sT0))
    P("s_memrealtime s[90:91]\ns_waitcnt lgkmcnt(0)\ns_or_b32 s90, s90, 1\nv_mov_b32 v44, s90")
    P("buffer_store_dword v44, off, s[%d:%d], 0 sc1\nL_p1_nn:" % (SDBG, SDBG+3))
    P.extend(flat(dma_x(1, ('C', 1)) + dma_w(5, ('C', 1))))
    P("v_lshlrev_b32 v47, 4, v1")
    P("s_lshl_b32 s%d, s3, 17\ns_lshl_b32 s%d, s4, 13\ns_add_u32 s%d, s%d, s%d\ns_lshl_b32 s%d, s%d, 11\ns_add_u32 s%d, s%d, s%d" % (sM0, sT0, sM0, sM0, sT0, sT0, sW, sM0, sM0, sT0))
    P("buffer_load_dwordx4 v[64:67], v47, s[%d:%d], s%d offen" % (SX, SX+3, sM0), 'p0s')
    P("buffer_load_dwordx4 v[68:71], v47, s[%d:%d], s%d offen offset:1024" % (SX, SX+3, sM0), 'p0s')
    P("s_lshr_b32 s%d, s3, 1" % sM0)
    P("s_and_b32 s%d, s3, 1\ns_lshl_b32 s%d, s%d, 2\ns_add_u32 s%d, s%d, s%d" % (sSPIN, sSPIN, sSPIN, sSPIN, sSPIN, sW))
    P("s_add_u32 m0, s%d, %d" % (sLDSW, CSL))
    P("s_cmp_lt_u32 s%d, 2\ns_cbranch_scc0 L_p1_c0ffn" % sM0)
    P("s_cmp_eq_u32 s%d, 0\ns_cselect_b32 s%d, s%d, s%d\ns_cselect_b32 s%d, s%d, s%d" % (sM0, SC0, P_BRE, P_BIM, SC0+1, P_BRE+1, P_BIM+1))
    P("s_mov_b32 s%d, %d\ns_mov_b32 s%d, 0x20000" % (SC0+2, 512*1024, SC0+3))
    P("s_lshl_b32 s%d, s4, 15\ns_lshl_b32 s%d, s%d, 7\ns_add_u32 s%d, s%d, s%d" % (sT0, sT1, sSPIN, sT0, sT0, sT1))
    for i in range(4): P("buffer_load_dwordx4 v%d, s[%d:%d], s%d offen offset:%d lds" % (vNK[i], SC0, SC0+3, sT0, 1024*i), 'p0c')
    P("s_branch L_p1_c0done\nL_p1_c0ffn:")
    P("s_bitcmp1_b32 s%d, 0\ns_cselect_b32 s%d, s%d, s%d\ns_cselect_b32 s%d, s%d, s%d" % (sM0, SC0, P_WU, P_WG, SC0+1, P_WU+1, P_WG+1))
    P("s_mov_b32 s%d, %d\ns_mov_b32 s%d, 0x20000" % (SC0+2, 512*2752, SC0+3))
    P("s_lshr_b32 s%d, s%d, 1" % (sT1, sM0))
    P("s_cmp_eq_u32 s%d, 1\ns_cselect_b32 s%d, s%d, s%d\ns_cmp_eq_u32 s%d, 2\ns_cselect_b32 s%d, s%d, s%d" % (sT1, sT0, sUA, sUC, sT1, sT0, sUB, sT0))
    P("s_lshl_b32 s%d, s%d, 6\ns_mul_i32 s%d, s%d, %d\ns_add_u32 s%d, s%d, s%d" % (sT0, sT0, sT1, sSPIN, 64*2752, sT0, sT0, sT1))
    for i in range(4): P("buffer_load_dwordx4 v%d, s[%d:%d], s%d offen offset:%d lds" % (vKN[i], SC0, SC0+3, sT0, 1024*i), 'p0c2')
    P("L_p1_c0done:")
    model_pre = [x for x in P.ins if getattr(x, 'tag', None) != 'p0c2' and not (x.op == 'buffer_store_dword')]

    Q = Stream()
    Q("s_lshl_b32 s%d, s4, 6\nv_lshl_add_u32 v44, v2, 1, s%d" % (sT0, sT0))
    Q("s_movk_i32 s%d, 1024\ns_mov_b32 s%d, 0x20000" % (SP+2, SP+3))
    for k, p in enumerate((P_LRE, P_LIM, P_LDT)):
        Q("s_mov_b32 s%d, s%d\ns_mov_b32 s%d, s%d\nbuffer_load_ushort v%d, v44, s[%d:%d], 0 offen" % (SP, p, SP+1, p+1, 88+k, SP, SP+3))
    Q("buffer_load_dword v91, off, s[%d:%d], 0 sc1" % (SDBG, SDBG+3), 'non')
    Q("v_bfe_u32 v4, v2, 2, 1\nv_lshlrev_b32 v4, 4, v4\nv_lshrrev_b32 v46, 3, v2\nv_lshl_add_u32 v4, v46, 2, v4\nv_and_b32 v46, 3, v2\nv_add_u32 v4, v4, v46")
    Q("v_bfe_u32 v46, v4, 1, 3\ns_lshl_b32 s%d, s%d, 13\nv_lshlrev_b32 v45, 7, v4\nv_add_u32 v45, s%d, v45" % (sT0, sRGP, sT0))
    for s in range(4):
        Q("v_or_b32 v44, %d, v3\nv_xor_b32 v44, v44, v46\nv_lshl_add_u32 v%d, v44, 4, v45" % (2*s, vXA[s]))
    Q("v_bfe_u32 v46, v2, 1, 3\nv_lshlrev_b32 v45, 7, v2")
    for s in range(4):
        Q("v_or_b32 v44, %d, v3\nv_xor_b32 v44, v44, v46\nv_lshl_add_u32 v%d, v44, 4, v45" % (2*s, 84+s))
        Q("v_add_u32 v%d, 65536, v%d" % (vBA[s], 84+s))
    Q("v_bfe_u32 v44, v1, 2, 2\nv_lshl_add_u32 v44, v3, 3, v44\nv_lshlrev_b32 v44, 6, v44")
    Q("v_bfe_u32 v45, v1, 4, 1\nv_lshl_add_u32 v44, v45, 5, v44\nv_and_b32 v45, 3, v1\nv_lshl_add_u32 v%d, v45, 3, v44" % vT0)
    Q("s_lshl_b32 s%d, s%d, 13\ns_add_u32 s%d, s%d, 65536\nv_add_u32 v%d, s%d, v%d" % (sT0, sCG, sT0, sT0, vT1, sT0, vT0))
    Q("s_mov_b32 s%d, 0\ns_mov_b32 s%d, -1\ns_mov_b32 s%d, 0xffff0000" % (sHH, sHH+1, sHIM))
    Q("s_cmp_eq_u32 s%d, 1\ns_cbranch_scc1 L_p1_role1" % sCG)

    def setup2():
        L = []
        L += IL("s_bitcmp1_b32 s%d, 1" % sW)
        g = IL("s_bitcmp1_b32 s%d, 1\ns_cselect_b32 s%d, s%d, s%d\ns_cselect_b32 s%d, s%d, s%d" % (sW, SW2, P_WU, P_WG, SW2+1, P_WU+1, P_WG+1))
        L = [g]
        L += IL("s_mov_b32 s%d, %d\ns_mov_b32 s%d, 0x20000" % (SW2+2, 512*2752, SW2+3))
        L += IL("s_lshl_b32 s%d, s%d, 6\ns_mul_i32 s%d, s%d, %d\ns_add_u32 s%d, s%d, s%d" % (sW2OFF, sUB, sT0, sRGP, 32*2752, sW2OFF, sW2OFF, sT0))
        L += IL("v_lshrrev_b32 v45, 3, v1\ns_movk_i32 s%d, 2752\nv_mul_lo_u32 v45, v45, s%d\nv_bfe_u32 v46, v1, 4, 1\nv_lshlrev_b32 v46, 2, v46\nv_and_b32 v44, 7, v1\nv_xor_b32 v46, v46, v44\nv_lshl_add_u32 v%d, v46, 4, v45" % (sT0, sT0, vK2[0]))
        for i in range(1, 4): L += IL("v_add_u32 v%d, %d, v%d" % (vK2[i], (8*2752-1024)*i, vK2[0]))
        L.append(IL("s_add_u32 s%d, s%d, %d\ns_addc_u32 s%d, s%d, 0" % (SWS, P_WS, WS_ST, SWS+1, P_WS+1)))
        L += IL("s_mov_b32 s%d, %d\ns_mov_b32 s%d, 0x20000" % (SWS+2, WSM_BYTES, SWS+3))
        L += IL("s_lshl_b32 s%d, s%d, 11" % (sUOFF1, sUA))
        L.append(IL("s_lshl_b32 s%d, s%d, 11\ns_cmp_eq_u32 s%d, 0\ns_cselect_b32 s%d, s%d, s%d" % (sT0, sUC, sCG, sUOFF2, sUOFF2, sT0)))
        L += IL("v_lshlrev_b32 v%d, 4, v4\nv_lshl_add_u32 v%d, v3, 9, v%d" % (vAO, vAO, vAO))
        L += IL("v_bfe_u32 v44, v1, 2, 2\nv_lshl_add_u32 v44, v3, 3, v44\nv_lshlrev_b32 v44, 7, v44")
        L += IL("v_bfe_u32 v45, v1, 4, 1\nv_lshlrev_b32 v45, 1, v45\nv_bfe_u32 v46, v1, 1, 1\nv_add_u32 v45, v45, v46\ns_lshl_b32 s%d, s%d, 2\nv_add_u32 v45, s%d, v45" % (sT0, sCG, sT0))
        L += IL("v_bfe_u32 v46, v1, 3, 1\nv_lshlrev_b32 v46, 2, v46\nv_xor_b32 v45, v45, v46\nv_lshl_add_u32 v44, v45, 4, v44\nv_and_b32 v45, 1, v1\nv_lshl_add_u32 v%d, v45, 3, v44\nv_add_u32 v%d, 65536, v%d" % (vT2a, vT2b, vT2a))
        L += IL("s_lshl_b32 s%d, s3, 2\ns_lshl_b32 s%d, s%d, 1\ns_add_u32 s%d, s%d, s%d\ns_mul_i32 s%d, s%d, %d" % (sT0, sT1, sRGP, sT0, sT0, sT1, sT0, sT0, RG_BYTES))
        L.append(IL("s_add_u32 s%d, s%d, s%d\ns_addc_u32 s%d, s%d, 0" % (SA0, P_WS, sT0, SA0+1, P_WS+1)))
        L.append(IL("s_add_u32 s%d, s%d, %d\ns_addc_u32 s%d, s%d, 0" % (SA1, SA0, RG_BYTES, SA1+1, SA0+1)))
        L += IL("s_mov_b32 s%d, %d\ns_mov_b32 s%d, 0x20000\ns_mov_b32 s%d, %d\ns_mov_b32 s%d, 0x20000" % (SA0+2, RG_BYTES, SA0+3, SA1+2, RG_BYTES, SA1+3))
        for b in XAUG + WAUG: L += IL("v_mov_b32 v%d, 0\nv_mov_b32 v%d, 0" % (b+2, b+3))
        return L
    def phase0_stats():
        L = []
        for r in range(4): L.append(I("v_mov_b32 v%d, 0" % (72+r)))
        for e in range(4):
            for row in range(2):
                x = 64 + 4*row + e; lo = 76 + 2*row; hi = 77 + 2*row
                L += IL("v_lshlrev_b32 v%d, 16, v%d\nv_and_b32 v%d, s%d, v%d" % (lo, x, hi, sHIM, x))
                L += IL("v_add_f32 v%d, v%d, v%d\nv_fmac_f32 v%d, v%d, v%d\nv_add_f32 v%d, v%d, v%d\nv_fmac_f32 v%d, v%d, v%d" % (72+2*row, 72+2*row, lo, 73+2*row, lo, lo, 72+2*row, 72+2*row, hi, 73+2*row, hi, hi))
        for mod in ("row_shr:1", "row_shr:2", "row_shr:4", "row_shr:8", "row_bcast:15 row_mask:0xa", "row_bcast:31 row_mask:0xc"):
            for r in range(4):
                if mod.startswith("row_shr"): L.append(I("v_add_f32_dpp v%d, v%d, v%d %s bound_ctrl:0" % (72+r, 72+r, 72+r, mod)))
                else: L.append(I("v_add_f32_dpp v%d, v%d, v%d %s" % (72+r, 72+r, 72+r, mod)))
        LL = [[], []]
        for row in range(2):
            mean, ex2, t = 72+2*row, 73+2*row, 76+row
            K = LL[row]
            K.append(I("v_mul_f32 v%d, 0x%x, v%d" % (mean, f2u(1/512.), mean)))
            K.append(I("v_mul_f32 v%d, 0x%x, v%d" % (ex2, f2u(1/512.), ex2)))
            K.append(I("v_fma_f32 v%d, -v%d, v%d, v%d" % (ex2, mean, mean, ex2)))
            K.append(I("v_max_f32 v%d, 0, v%d" % (ex2, ex2)))
            bf16r(K, mean, t); bf16r(K, ex2, t)
            K.append(I("v_add_f32 v%d, 0x%x, v%d" % (ex2, f2u(1e-5), ex2)))
            bf16r(K, ex2, t)
            K.append(I("v_sqrt_f32 v%d, v%d" % (ex2, ex2)))
            bf16r(K, ex2, t)
            K.append(I("v_rcp_f32 v%d, v%d" % (ex2, ex2)))
        for a_, b_ in zip(*LL): L.append(a_); L.append(b_)
        L += IL("v_mov_b32 v78, v75\nv_mov_b32 v76, v74\nv_mov_b32 v74, v73")
        return L
    def phase0_colsum(role):
        L = []
        L.append(Wait(vm_tag='p0c'))
        L += IL("v_mov_b32 v80, 0x3f803f80\nv_mov_b32 v81, v80\nv_mov_b32 v82, v80\nv_mov_b32 v83, v80")
        L += IL("s_add_u32 s%d, s%d, %d" % (sM0, sLDSW, CSL))
        L += IL("s_cmp_lt_u32 s3, 4\ns_cbranch_scc0 L_p1_c1ffn%d" % role)
        for s in range(4):
            L += IL("v_add_u32 v%d, s%d, v%d\nds_read_b128 v[%d:%d], v%d" % (84+s, sM0, 84+s, 192+4*s, 195+4*s, 84+s))
        L += IL("s_branch L_p1_c1done%d\nL_p1_c1ffn%d:" % (role, role))
        L += IL("v_add_u32 v84, s%d, v%d" % (sM0, vT0))
        for s in range(4):
            L += IL("ds_read_b64_tr_b16 v[%d:%d], v84 offset:%d\nds_read_b64_tr_b16 v[%d:%d], v84 offset:%d" % (192+4*s, 193+4*s, 1024*s, 194+4*s, 195+4*s, 1024*s+256))
        L += IL("L_p1_c1done%d:" % role)
        L += IL("s_waitcnt lgkmcnt(0)")
        for s in range(4):
            L += IL("v_mfma_f32_32x32x16_bf16 v[224:239], v[80:83], v[%d:%d], %s" % (192+4*s, 195+4*s, "0" if s == 0 else "v[224:239]"))
        return L
    def phase0_colsum_write():
        return IL("s_lshl_b32 s%d, s%d, 7\nv_lshlrev_b32 v84, 2, v2\nv_add_u32 v84, s%d, v84\nv_add_u32 v84, %d, v84\nds_write_b32 v84, v224" % (sM0, sW, sM0, CSR))

    def reads(lst, cg, g):
        p, ks = g // 32, g % 32
        t = g // 4; s = g % 4
        b = WF + 8*(g & 3)
        if p == 0:
            xs = t % 4; wsl = 4 + t % 4
            for r in range(2):
                lst.append(I("ds_read_b128 a[%d:%d], v%d offset:%d" % (XF(r, ks), XF(r, ks)+3, vXA[s], xs*16384 + r*4096)))
        else:
            wsl = w2slot(t-8)
        if p == 0 and cg == 0:
            for acc in range(2):
                lst.append(I("ds_read_b128 v[%d:%d], v%d offset:%d" % (b+4*acc, b+4*acc+3, vBA[s], (wsl-4)*16384 + acc*4096)))
        elif p == 0:
            for acc in range(2):
                o = (wsl & 3)*16384 + acc*4096 + s*1024
                lst.append(I("ds_read_b64_tr_b16 v[%d:%d], v%d offset:%d" % (b+4*acc, b+4*acc+1, vT1, o)))
                lst.append(I("ds_read_b64_tr_b16 v[%d:%d], v%d offset:%d" % (b+4*acc+2, b+4*acc+3, vT1, o+256)))
        else:
            vt = vT2b if wsl >= 4 else vT2a
            for acc in range(2):
                o = (wsl & 3)*16384 + acc*8192 + s*2048
                lst.append(I("ds_read_b64_tr_b16 v[%d:%d], v%d offset:%d" % (b+4*acc, b+4*acc+1, vt, o)))
                lst.append(I("ds_read_b64_tr_b16 v[%d:%d], v%d offset:%d" % (b+4*acc+2, b+4*acc+3, vt, o+512)))
    def mfma(cg, p, x, w, r, acc, first):
        A = (acca if p == 0 else accb)(r, acc)
        c = "0" if first else "v[%d:%d]" % (A, A+15)
        if p == 0 and cg == 0: return I("v_mfma_f32_32x32x16_bf16 v[%d:%d], %s, %s, %s" % (A, A+15, x, w, c))
        return I("v_mfma_f32_32x32x16_bf16 v[%d:%d], %s, %s, %s" % (A, A+15, w, x, c))

    def nonce_pre(role):
        L = []
        if role == 0:
            L += IL("s_cmp_lg_u32 s%d, 0\ns_cbranch_scc1 L_p1_n0skip\nv_readfirstlane_b32 s%d, v91\ns_cmp_eq_u32 s%d, 0\ns_cbranch_scc1 L_p1_nslow\nL_p1_nok:\nv_mov_b32 v92, %d\nds_write_b32 v92, v91\nL_p1_n0skip:" % (sW, sM0, sM0, NONL))
            SLOW.extend(["L_p1_nslow:", "s_mov_b32 s%d, 400000" % sSPIN, "L_p1_nspin:", "s_sleep 1",
                         "buffer_load_dword v91, off, s[%d:%d], 0 sc1" % (SDBG, SDBG+3), "s_waitcnt vmcnt(0)",
                         "v_readfirstlane_b32 s%d, v91" % sM0, "s_sub_u32 s%d, s%d, 1" % (sSPIN, sSPIN), "s_cmp_eq_u32 s%d, 0" % sSPIN, "s_cbranch_scc1 L_p1_nok",
                         "s_cmp_eq_u32 s%d, 0" % sM0, "s_cbranch_scc1 L_p1_nspin", "s_branch L_p1_nok"])
        return L
    def nonce_post(role):
        L = []
        L += IL("v_mov_b32 v92, %d\nds_read_b32 v91, v92" % NONL)
        L += IL("v_lshlrev_b32 v93, 2, v2\nv_add_u32 v93, %d, v93" % CSR)
        L += IL("ds_read2_b32 v[84:85], v93 offset0:0 offset1:32\nds_read2_b32 v[86:87], v93 offset0:64 offset1:96")
        L += IL("v_readfirstlane_b32 s%d, v91" % sNON)
        L += IL("v_mov_b32 v73, v91\nv_mov_b32 v75, v91\nv_mov_b32 v77, v91\nv_mov_b32 v79, v91")
        L += IL("s_lshl_b32 s%d, s3, 11\ns_lshl_b32 s%d, s4, 7\ns_add_u32 s%d, s%d, s%d\ns_lshl_b32 s%d, s%d, 5\ns_add_u32 s%d, s%d, s%d" % (sM0, sM1, sM0, sM0, sM1, sM1, sW, sM0, sM0, sM1))
        L.append(IL("s_mov_b32 exec_lo, 0\ns_mov_b32 exec_hi, 0x80000000") +
                 [I("buffer_store_dwordx4 v[72:75], off, s[%d:%d], s%d sc1" % (SWS, SWS+3, sM0), 'pub'), I("buffer_store_dwordx4 v[76:79], off, s[%d:%d], s%d offset:16 sc1" % (SWS, SWS+3, sM0), 'pub')] +
                 IL("s_mov_b64 exec, -1"))
        L += IL("v_add_f32 v84, v84, v85\nv_add_f32 v86, v86, v87\nv_add_f32 v84, v84, v86\nv_mov_b32 v85, v91")
        L += IL("s_lshl_b32 s%d, s4, 3\ns_lshr_b32 s%d, s3, 1\ns_add_u32 s%d, s%d, s%d\ns_lshl_b32 s%d, s%d, 9" % (sM0, sM1, sM0, sM0, sM1, sM0, sM0))
        L += IL("s_and_b32 s%d, s3, 1\ns_lshl_b32 s%d, s%d, 3\ns_add_u32 s%d, s%d, s%d\ns_add_u32 s%d, s%d, %d" % (sM1, sM1, sM1, sM0, sM0, sM1, sM0, sM0, WS_CS))
        L += IL("v_lshlrev_b32 v93, 4, v2")
        L.append(IL("s_cmp_eq_u32 s%d, 0\ns_cselect_b32 exec_lo, -1, 0\ns_mov_b32 exec_hi, 0" % sW) +
                 [I("buffer_store_dwordx2 v[84:85], v93, s[%d:%d], s%d offen sc1" % (SWS, SWS+3, sM0), 'pub')] + IL("s_mov_b64 exec, -1"))
        if role == 0:
            L += IL("v_mov_b32 v84, 0\nv_mov_b32 v85, v91\nv_mov_b32 v86, 0\nv_mov_b32 v87, v91")
            L += IL("s_lshl_b32 s%d, s2, 9\ns_add_u32 s%d, s%d, %d" % (sM0, sM0, sM0, WS_ZR))
            L.append(I("buffer_store_dwordx4 v[84:87], v93, s[%d:%d], s%d offen sc1" % (SWS, SWS+3, sM0), 'zr'))
        return L

    LNQ = ACCB
    sLA, sLB = sUOFF1, None
    def ln_addr(cg):
        B = []
        B += IL("s_lshl_b32 s%d, s3, 11\ns_lshl_b32 s%d, s%d, 10\ns_add_u32 s%d, s%d, s%d" % (SC0, SC0+1, sRGP, SC0, SC0, SC0+1))
        B += IL("v_lshlrev_b32 v64, 4, v4")
        B += IL("s_lshl_b32 s%d, s4, 12\ns_add_u32 s%d, s%d, %d" % (SC0+1, SC0+1, SC0+1, WS_CS + cg*1024))
        B += IL("v_lshlrev_b32 v65, 4, v2")
        return B
    def ln_issue(cg, tag='ln'):
        B = []
        B.append(I("buffer_load_dwordx4 v[%d:%d], v64, s[%d:%d], s%d offen sc1" % (LNQ+16, LNQ+19, SWS, SWS+3, SC0), tag))
        B.append(I("buffer_load_dwordx4 v[%d:%d], v64, s[%d:%d], s%d offen offset:512 sc1" % (LNQ+20, LNQ+23, SWS, SWS+3, SC0), tag))
        for k in range(2):
            for acc in range(2):
                q = LNQ + 8*k + 4*acc
                B.append(I("buffer_load_dwordx4 v[%d:%d], v65, s[%d:%d], s%d offen offset:%d sc1" % (q, q+3, SWS, SWS+3, SC0+1, k*2048 + acc*512), tag))
        return B
    def ln_check(cg):
        L = []
        lab = "L_p1_ln%d" % cg
        seq = ["v_mov_b32 v66, 0"]
        for q in range(LNQ, LNQ+24, 4):
            seq.append("v_bitop3_b32 v66, v66, v%d, s%d bitop3:0xf6" % (q+1, sNON))
            seq.append("v_bitop3_b32 v66, v66, v%d, s%d bitop3:0xf6" % (q+3, sNON))
        seq.append("v_cmp_ne_u32 vcc, 0, v66")
        L.append(Wait(vm_tag='ln'))
        for x in seq: L.append(I(x))
        L += IL("s_cbranch_vccnz %s_slow\n%s_ok:" % (lab, lab))
        S = ["%s_slow:" % lab, "s_mov_b32 s%d, 400000" % sSPIN, "%s_spin:" % lab, "s_sleep 1"]
        S += [x.text for x in ln_issue(cg)]
        S += ["s_waitcnt vmcnt(0)"] + seq + ["s_nop 4", "s_sub_u32 s%d, s%d, 1" % (sSPIN, sSPIN), "s_cmp_eq_u32 s%d, 0" % sSPIN, "s_cbranch_scc1 %s_ok" % lab,
              "s_cbranch_vccnz %s_spin" % lab, "s_branch %s_ok" % lab]
        SLOW.extend(S)
        return L
    def ln_build(cg, WA2):
        C = []
        for r in range(2):
            mean, inv = LNQ+16+4*r, LNQ+18+4*r
            C += IL("v_mul_f32 v70, v%d, v%d\nv_mul_f32 v%d, 0x%x, v%d\nv_mul_f32 v71, v70, v%d\nv_rcp_f32 v%d, v70\nv_mul_f32 v%d, 0x%x, v71" % (inv, inv, vK0[r], f2u(GC0), inv, inv, vS2[r], vK1[r], f2u(GC1)))
            C += IL("v_xor_b32 v70, 0x80000000, v%d\nv_cndmask_b32 v70, v70, 0, s[%d:%d]\nv_lshrrev_b32 v%d, 16, v70\nv_and_or_b32 v%d, v70, s%d, v%d" % (mean, sHH, sHH+1, XAUG[r]+1, XAUG[r], sHIM, XAUG[r]+1))
            if cg == 0:
                C += IL("s_lshl_b32 s%d, s%d, 8\nv_lshlrev_b32 v70, 2, v4\nv_add_u32 v70, s%d, v70\nv_add_u32 v70, %d, v70\nds_write_b32 v70, v%d" % (sT1, sRGP, sT1, INVL + 128*r, inv))
        for k in range(2):
            for acc in range(2):
                q = LNQ + 8*k + 4*acc
                d0, d1 = (WAUG[acc], WAUG[acc]+1) if k == 0 else (WA2[2*acc], WA2[2*acc+1])
                C += IL("v_add_f32 v%d, v%d, v%d\nv_and_b32 v%d, s%d, v%d\nv_sub_f32 v%d, v%d, v%d\nv_and_b32 v%d, s%d, v%d\nv_sub_f32 v%d, v%d, v%d" % (q, q, q+2, q+1, sHIM, q, q+2, q, q+1, q+3, sHIM, q+2, q+2, q+2, q+3))
                C += IL("v_lshrrev_b32 v%d, 16, v%d\nv_or_b32 v%d, v%d, v%d\nv_lshrrev_b32 v%d, 16, v%d" % (q+1, q+1, d0, q+1, q+3, d1, q+2))
        return C

    def role_main(cg, dens, go_steps, pre_bar, extra, WA2):
        M = []
        dq = []
        M.append(Wait(vm_tag=('C', 0)))
        M.append(I("s_barrier"))
        M += ST(0)
        reads(M, cg, 0); reads(M, cg, 1)
        dq += dma_x(2, ('C', 2)) + dma_w(6, ('C', 2)) + dma_x(3, ('C', 3)) + dma_w(7, ('C', 3))
        order = [(0, 0), (1, 0), (0, 1), (1, 1)]
        pace = [1, 0]
        for g in range(64):
            p, ks, t, s = g // 32, g % 32, g // 4, g % 4
            b = WF + 8*(g & 3)
            bar = (s == 2 and t < 15)
            if not bar and g + 2 < 64: reads(M, cg, g+2)
            for n, (r, acc) in enumerate(order):
                x = "a[%d:%d]" % (XF(r, ks), XF(r, ks)+3); w = "v[%d:%d]" % (b+4*acc, b+4*acc+3)
                if bar and n == 0: M.append(Wait(lgkm_all=True))
                M.append(mfma(cg, p, x, w, r, acc, ks == 0))
                if bar and n == 0:
                    if (t+1) in go_steps: M.append(('GO',))
                    M += flat(pre_bar.get(t+1, []))
                    need = ('C', t+1)
                    while any(getattr(x_, 'tag', None) == need for gq in dq for x_ in gq):
                        M += dq.pop(0)
                    M.append(Wait(lgkm_all=True))
                    M.append(Wait(vm_tag=need))
                    M.append(I("s_barrier"))
                    if t+1 in (4, 8, 12): M += ST((t+1)//4)
                    if t < 4:
                        dq += dma_x(t, ('C', t+4)) + dma_w(4+t, ('C', t+4))
                    if (t+1) in w2sched:
                        for q, tq in enumerate(w2sched):
                            if tq == t+1: dq += dma_w2(w2slot(q), ('C', 8+q))
                    reads(M, cg, g+2)
                    M += flat(extra.get(t+1, []))
                    pace[0] = max(1, 15 // max(1, len(dq))); pace[1] = 0
                if dq and pace[1] % pace[0] == 0: M += dq.pop(0)
                pace[1] += 1
                M.append(('SLOT', dens(t)))
            if ks == 31:
                if p == 1:
                    for acc in range(2):
                        M += IL("v_mov_b32 v%d, v%d\nv_mov_b32 v%d, v%d" % (WAUG[acc], WA2[2*acc], WAUG[acc]+1, WA2[2*acc+1]))
                M.append(('GO',) if ('aug%d' % p) in go_steps else ('SLOT', 0))
                for n, (r, acc) in enumerate(order):
                    x = "v[%d:%d]" % (XAUG[r], XAUG[r]+3); w = "v[%d:%d]" % (WAUG[acc], WAUG[acc]+3)
                    M.append(mfma(cg, p, x, w, r, acc, False))
        assert not dq
        return M
    for q, tq in enumerate(w2sched):
        assert tq >= 5 + q//2, (q, tq)
        assert tq <= 8 + q - 1, (q, tq)

    R0 = []
    R0 += IL("v_lshlrev_b32 v88, 16, v88\nv_lshlrev_b32 v89, 16, v89\nv_lshlrev_b32 v90, 16, v90")
    R0 += IL("v_mul_f32 v92, 0x%x, v90\nv_exp_f32 v92, v92" % f2u(LOG2E))
    bf16r(R0, 92, 93)
    R0 += IL("v_mul_f32 v93, v92, v88\nv_mul_f32 v94, v92, v89")
    R0 += IL("v_mul_f32 v93, 0x%x, v93\nv_exp_f32 v93, v93" % f2u(LOG2E))
    R0 += IL("v_mul_f32 v94, 0.15915494, v94\nv_fract_f32 v94, v94\nv_cos_f32 v95, v94\nv_sin_f32 v94, v94")
    R0 += IL("v_mul_f32 v%d, v93, v95\nv_mul_f32 v%d, v93, v94" % (vLr, vLi))
    R0 += IL("v_add_f32 v92, -1.0, v%d" % vLr)
    R0 += IL("v_mul_f32 v93, v88, v88\nv_fmac_f32 v93, v89, v89\nv_rcp_f32 v93, v93\nv_add_f32 v93, v93, v93")
    R0 += IL("v_mul_f32 v94, v92, v88\nv_fmac_f32 v94, v%d, v89\nv_mul_f32 v%d, v94, v93" % (vLi, vcr))
    R0 += IL("v_mul_f32 v94, v%d, v88\nv_fma_f32 v94, -v92, v89, v94\nv_mul_f32 v%d, v94, v93" % (vLi, vci))
    R0 += IL("v_mov_b32 v%d, v%d\nv_mov_b32 v%d, v%d" % (vL16r, vLr, vL16i, vLi))
    for _ in range(4): csq(R0, vL16r, vL16i, 92)
    R0 += IL("v_mov_b32 v88, v%d\nv_mov_b32 v89, v%d" % (vL16r, vL16i)); csq(R0, 88, 89, 92)
    R0 += IL("v_mov_b32 v94, v88\nv_mov_b32 v95, v89"); csq(R0, 94, 95, 92)
    R0 += IL("v_mov_b32 v%d, v94\nv_mov_b32 v%d, v95" % (vL128r, vL128i)); csq(R0, vL128r, vL128i, 92)
    R0.append(IL("s_cmp_eq_u32 s%d, 1\ns_cselect_b32 s%d, 1.0, 0\ns_cselect_b32 s%d, -1, 0\ns_cselect_b32 s%d, 0, 1.0" % (sRGP, sRGPF, sAGM, sT1)))
    R0 += IL("s_mov_b32 s%d, 0" % (sAGM+1))
    R0 += IL("v_mul_f32 v94, s%d, v94\nv_mul_f32 v95, s%d, v95\nv_add_f32 v94, s%d, v94" % (sRGPF, sRGPF, sT1))
    cmul_into(R0, 92, 93, 94, 95, vL16r, vL16i)
    R0 += IL("v_cndmask_b32 v%d, v94, v92, s[%d:%d]\nv_cndmask_b32 v%d, v95, v93, s[%d:%d]" % (vF[0][0], sHH, sHH+1, vF[0][1], sHH, sHH+1))
    cmul_into(R0, vF[1][0], vF[1][1], vF[0][0], vF[0][1], 88, 89)
    WA2_0 = [0, 16, 18, 5]
    F0 = []
    F0 += setup2()
    F0 += phase0_stats()
    F0.append('STOP')
    F0 += phase0_colsum_write()
    F0 += R0
    F0.append('STOP')
    F0 += nonce_post(0)
    F0 += ln_addr(0)
    F0.append('STOP')
    F0 += ln_issue(0)
    F0.append('STOP')
    F0 += ln_build(0, WA2_0)
    F0 += IL("v_sub_f32 v%d, 0, v%d\nv_sub_f32 v%d, 0, v%d\nv_sub_f32 v%d, 0, v%d" % (vnLi, vLi, vnL16i, vL16i, vnci, vci))
    F0.append('STOP')
    T = [7, 8, 19, 20, 21]
    Ublk = [U0, acca(0, 0)]
    F0 += IL("s_lshl_b32 s%d, s%d, 8\nv_lshlrev_b32 v%d, 6, v3\nv_add_u32 v%d, s%d, v%d\nv_add_u32 v%d, %d, v%d" % (sT0, sRGP, T[0], T[0], sT0, T[0], T[0], INVL, T[0]))
    SO = [(22, 23), (24, 25)]
    for r in range(2):
        ar0, ai0 = acca(r, 0), acca(r, 1)
        D = Ublk[r]
        for q4 in range(4):
            qd = WAUG[q4 & 1]
            if r == 0 and q4 == 0: F0.append(I("ds_read_b128 v[%d:%d], v%d offset:%d" % (qd, qd+3, T[0], 0)))
            nq = r*4 + q4 + 1
            if nq < 8: F0.append(I("ds_read_b128 v[%d:%d], v%d offset:%d" % (WAUG[nq & 1], WAUG[nq & 1]+3, T[0], nq*16 if nq < 4 else 128 + (nq-4)*16)))
            for jj in range(4):
                q = 4*q4 + jj
                ar, ai = ar0+q, ai0+q; d0, d1 = D+2*q, D+2*q+1
                F0 += IL("v_mul_f32 v%d, v%d, v%d\nv_mul_f32 v%d, v%d, v%d\nv_mul_f32 v%d, v%d, v%d\nv_mul_f32 v%d, v%d, v%d\nv_fmac_f32 v%d, v%d, v%d\nv_fmac_f32 v%d, v%d, v%d" % (ar, qd+jj, ar, ai, qd+jj, ai, d0, vcr, ar, d1, vcr, ai, d0, vnci, ai, d1, vci, ar))
                if q == 0: pr, pi = d0, d1
                else:
                    nr, ni = ((T[1], T[2]), (T[3], T[4]))[q & 1]
                    if q == 15: nr, ni = SO[r]
                    F0 += IL("v_fma_f32 v%d, v%d, v%d, v%d\nv_fma_f32 v%d, v%d, v%d, v%d\nv_fmac_f32 v%d, v%d, v%d\nv_fmac_f32 v%d, v%d, v%d" % (nr, vLr, pr, d0, ni, vLr, pi, d1, nr, vnLi, pi, ni, vLi, pr))
                    pr, pi = nr, ni
        F0 += IL("s_lshl_b32 s%d, s%d, 10\nv_lshlrev_b32 v%d, 3, v2\nv_lshl_add_u32 v%d, v3, 8, v%d\nv_add_u32 v%d, s%d, v%d\nv_add_u32 v%d, %d, v%d\nds_write_b64 v%d, v[%d:%d]" % (sT0, sRGP, T[1], T[1], T[1], T[1], sT0, T[1], T[1], SEG + 512*r, T[1], T[1], SO[r][0], SO[r][1]))
    F0.append('STOP')
    X = acca(1, 0)
    vPP = [(X+24, X+25), (X+26, X+27)]
    F0 += IL("v_lshlrev_b32 v%d, 3, v2\nv_add_u32 v%d, %d, v%d" % (T[0], T[0], SEG, T[0]))
    F0 += IL("ds_read2_b64 v[%d:%d], v%d offset0:0 offset1:32\nds_read2_b64 v[%d:%d], v%d offset0:64 offset1:96" % (X, X+3, T[0], X+4, X+7, T[0]))
    F0 += IL("s_lshl_b32 s%d, s%d, 10\nv_add_u32 v%d, s%d, v%d" % (sT0, sRGP, T[0], sT0, T[0]))
    F0 += IL("ds_read2_b64 v[%d:%d], v%d offset0:0 offset1:32\nds_read2_b64 v[%d:%d], v%d offset0:64 offset1:96" % (X+8, X+11, T[0], X+12, X+15, T[0]))
    cacc(F0, X+2, X+3, vL16r, vL16i, vnL16i, X, X+1)
    cacc(F0, X+4, X+5, vL16r, vL16i, vnL16i, X+2, X+3)
    cacc(F0, X+6, X+7, vL16r, vL16i, vnL16i, X+4, X+5)
    F0 += IL("v_mul_f32 v%d, s%d, v%d\nv_mul_f32 v%d, s%d, v%d" % (X+6, sRGPF, X+6, X+7, sRGPF, X+7))
    cacc(F0, X+8, X+9, vL16r, vL16i, vnL16i, X+6, X+7)
    cacc(F0, X+10, X+11, vL16r, vL16i, vnL16i, X+8, X+9)
    cacc(F0, X+12, X+13, vL16r, vL16i, vnL16i, X+10, X+11)
    cacc(F0, X+14, X+15, vL16r, vL16i, vnL16i, X+12, X+13)
    F0 += IL("v_mov_b32 v%d, v%d\nv_mov_b32 v%d, s%d\nv_mov_b32 v%d, v%d\nv_mov_b32 v%d, s%d" % (X+16, X+14, X+17, sNON, X+18, X+15, X+19, sNON))
    F0 += IL("s_lshl_b32 s%d, s4, 13\ns_lshl_b32 s%d, s3, 9\ns_add_u32 s%d, s%d, s%d\ns_add_u32 s%d, s%d, %d\nv_lshlrev_b32 v%d, 4, v2" % (sT0, sT1, sT0, sT0, sT1, sT0, sT0, WS_AGR, T[0]))
    F0.append([I("s_mov_b64 exec, s[%d:%d]" % (sAGM, sAGM+1)),
               I("buffer_store_dwordx4 v[%d:%d], v%d, s[%d:%d], s%d offen sc1" % (X+16, X+19, T[0], SWS, SWS+3, sT0), 'agg'),
               I("s_mov_b64 exec, -1")])
    for c in range(2):
        F0.append(I("v_cndmask_b32 v%d, v%d, v%d, s[%d:%d]" % (vPP[0][c], X+6+c, X+8+c, sHH, sHH+1)))
        F0.append(I("v_cndmask_b32 v%d, v%d, v%d, s[%d:%d]" % (vPP[1][c], X+10+c, X+12+c, sHH, sHH+1)))
    GOB = 12
    main0 = role_main(0, lambda t: dens0[0] if t < 8 else dens0[1], {2, 3, 5, 8, 'aug0', GOB},
                      {2: phase0_colsum(0), 3: nonce_pre(0), 8: ln_check(0)}, {}, WA2_0)
    body0, left0 = interleave2(main0, F0)
    assert not left0, len(left0)
    PD = dict(x=P_X, cre=P_CRE, cim=P_CIM, dsk=P_DSK, wd=P_WD, out=P_OUT, ws=P_WS)
    def fpre():
        if not fused: return []
        if fused == 2: return [Wait(lgkm_all=True), I("s_barrier")]
        return [Wait(lgkm_all=True), I("s_barrier")] + p2c.p2_pre("s4", "s5", PD, SW1, sWOFF, sWSTR, 5, 6, (24, 25, 26))
    def merge(tail, side, start=0):
        if not side: return tail
        out = []; n = len(tail) - start; k = 0
        step = max(1.0, n / float(len(side)))
        nxt = start
        for idx, x in enumerate(tail):
            out.append(x)
            while k < len(side) and idx >= nxt and x.cls not in ('label',) and not (x.op.startswith('s_cmp') or x.op.startswith('s_cbranch') or 'exec' in x.wr or x.op == 's_add_u32' or x.op.startswith('v_cmp')):
                out.extend(flat([side[k]])); k += 1; nxt += step
                if step >= 1: break
        while k < len(side): out.extend(flat([side[k]])); k += 1
        return out
    def w2side():
        d1, r1, d2, r2 = p2d.rounds()
        return p2d.w2_setup("s4", "s5", PD), d1, p2d.w2_setup2("s4", "s5", PD), r1, d2, r2
    TL = Stream()
    TL.extend(ST(4))
    TL.extend(fpre())
    AGR = [WF + 4*k for k in range(8)] + [X + 4*k for k in range(6)] + [20]
    TL("v_lshlrev_b32 v7, 4, v2")
    TL("s_lshl_b32 s%d, s4, 13\ns_add_u32 s%d, s%d, %d" % (sT0, sT0, sT0, WS_AGR))
    TL("s_lshl_b32 s%d, s2, 9\ns_add_u32 s%d, s%d, %d" % (sT1, sT1, sT1, WS_ZR))
    TL("s_sub_u32 s%d, s3, 15\ns_lshl_b32 s%d, s%d, 9\ns_add_u32 s%d, s%d, s%d" % (sM0, sM0, sM0, sM0, sM0, sT0))
    def agg_loads():
        L = []
        for k in range(15):
            L.append("s_add_u32 s%d, s%d, %d" % (sM1, sM0, 512*k))
            L.append("s_cmp_ge_u32 s3, %d" % (15-k))
            L.append("s_cselect_b32 s%d, s%d, s%d" % (sM1, sM1, sT1))
            L.append("buffer_load_dwordx4 v[%d:%d], v7, s[%d:%d], s%d offen sc1" % (AGR[k], AGR[k]+3, SWS, SWS+3, sM1))
        return L
    def agg_chk():
        seq = ["v_mov_b32 v8, 0"]
        for k in range(15):
            seq.append("v_bitop3_b32 v8, v8, v%d, s%d bitop3:0xf6" % (AGR[k]+1, sNON))
            seq.append("v_bitop3_b32 v8, v8, v%d, s%d bitop3:0xf6" % (AGR[k]+3, sNON))
        seq.append("v_cmp_ne_u32 vcc, 0, v8")
        return seq
    for x in agg_loads(): TL(x)
    if fused == 2:
        su, d1, su2, r1, d2, r2 = w2side()
        TL.extend(flat(su))
        TL.extend(merge(tail_ffn(sUOFF2, SA0, SA1), d1 + su2))
    else:
        TL.extend(tail_ffn(sUOFF2, SA0, SA1))
    TL.extend(ST(5))
    markB = len(TL.ins)
    for x in agg_chk(): TL(x)
    TL("s_cbranch_vccnz L_p1_agslow\nL_p1_agok:")
    SLOW.extend(["L_p1_agslow:", "s_mov_b32 s%d, 400000" % sSPIN, "L_p1_agspin:", "s_sleep 1"] + agg_loads() + ["s_waitcnt vmcnt(0)"] + agg_chk() +
                ["s_nop 4", "s_sub_u32 s%d, s%d, 1" % (sSPIN, sSPIN), "s_cmp_eq_u32 s%d, 0" % sSPIN, "s_cbranch_scc1 L_p1_agok", "s_cbranch_vccnz L_p1_agspin", "s_branch L_p1_agok"])
    TL.extend(ST(6))
    def pkstep(S, d, l, p, s):
        S("v_pk_fma_f32 v[%d:%d], v[%d:%d], v[%d:%d], v[%d:%d] op_sel_hi:[0,1,1]" % (d, d+1, l, l+1, p, p+1, s, s+1))
        S("v_pk_fma_f32 v[%d:%d], v[%d:%d], v[%d:%d], v[%d:%d] op_sel:[1,1,0] op_sel_hi:[1,0,1] neg_lo:[1,0,0]" % (d, d+1, l, l+1, p, p+1, d, d+1))
    for k in range(15): TL("v_mov_b32 v%d, v%d" % (AGR[k]+1, AGR[k]+2))
    for k in range(1, 15): pkstep(TL, AGR[k], vL128r, AGR[k-1], AGR[k])
    H = AGR[14]
    for r in range(2): pkstep(TL, vPP[r][0], vF[r][0], H, vPP[r][0])
    prev = [vPP[0][0], vPP[1][0]]
    for q in range(16):
        for r in range(2):
            d = Ublk[r] + 2*q
            pkstep(TL, d, vLr, prev[r], d)
            prev[r] = d
    TL("s_lshl_b32 s%d, s%d, 13\ns_add_u32 s%d, s%d, %d" % (sT0, sRGP, sT0, sT0, CSL))
    TL("v_lshlrev_b32 v7, 6, v2\nv_lshl_add_u32 v7, v3, 5, v7\nv_add_u32 v7, s%d, v7" % sT0)
    TL("v_add_u32 v8, s%d, v%d" % (sT0, vT0))
    TL("v_lshlrev_b32 v19, 4, v2\nv_lshl_add_u32 v19, v3, 9, v19")
    TL("s_lshl_b32 s%d, s4, 12\ns_add_u32 s%d, s%d, %d" % (sT1, sT1, sT1, 86*1024))
    for r in range(2):
        Z = accb(r, 1); D = Ublk[r]
        for q2 in range(8):
            TL("v_cvt_pk_bf16_f32 v%d, v%d, v%d" % (Z+q2, D+4*q2, D+4*q2+2))
            TL("v_cvt_pk_bf16_f32 v%d, -v%d, -v%d" % (Z+8+q2, D+4*q2+1, D+4*q2+3))
        o = r*4096
        TL("ds_write_b128 v7, v[%d:%d] offset:%d\nds_write_b128 v7, v[%d:%d] offset:%d\nds_write_b128 v7, v[%d:%d] offset:%d\nds_write_b128 v7, v[%d:%d] offset:%d" % (Z, Z+3, o, Z+4, Z+7, o+16, Z+8, Z+11, o+2048, Z+12, Z+15, o+2064))
    for r in range(2):
        Z = WF + 16*r; o = r*4096
        for part in range(2):
            for s in range(2):
                q = Z + 4*(2*part+s); oo = o + part*2048 + s*1024
                TL("ds_read_b64_tr_b16 v[%d:%d], v8 offset:%d\nds_read_b64_tr_b16 v[%d:%d], v8 offset:%d" % (q, q+1, oo, q+2, q+3, oo+256))
        for part in range(2):
            for s in range(2):
                q = Z + 4*(2*part+s)
                TL("buffer_store_dwordx4 v[%d:%d], v19, s[%d:%d], s%d offen offset:%d%s" % (q, q+3, (SA0, SA1)[r], (SA0, SA1)[r]+3, sT1, (2*part+s)*1024, A2MOD), 'a2')
    if fused == 2:
        segB = TL.ins[markB:]
        ia = [k for k, x in enumerate(segB) if x.text == "L_p1_agok:"][0]
        pass
    TL("s_branch L_p1_fin")
    full0 = finalize(model_pre + [I("L_MARK_Q:")] + Q.ins + body0 + TL.ins)
    idx = [k for k, o in enumerate(full0) if o.text == "L_MARK_Q:"][0]
    role0 = full0[idx+1:]
    pro = finalize(P.ins)

    WA2_1 = [52, 53, 54, 55]
    F1 = []
    F1 += setup2()
    F1 += phase0_stats()
    F1.append('STOP')
    F1 += phase0_colsum_write()
    F1.append('STOP')
    F1 += nonce_post(1)
    F1 += ln_addr(1)
    F1.append('STOP')
    F1 += ln_issue(1)
    F1.append('STOP')
    F1 += ln_build(1, WA2_1)
    F1.append('STOP')
    tt = [19, 20, 21, 22]
    for r in range(2):
        F1 += ffn_epilogue(r, acca(r, 0), acca(r, 1), sUOFF1, tt, (SA0, SA1)[r])
    if fused == 2:
        F1 += IL("s_and_b32 s%d, s3, 7\ns_lshl_b32 s%d, s%d, 2\ns_and_b32 s%d, s4, 3\ns_add_u32 s%d, s%d, s%d" % (sT0, sT0, sT0, sT1, sT0, sT0, sT1))
        F1 += IL("s_mov_b32 s%d, s%d\ns_mov_b32 s%d, s%d\ns_mov_b32 s%d, %d\ns_mov_b32 s%d, 0x20000" % (SC0, P_WD, SC0+1, P_WD+1, SC0+2, 1376*1024, SC0+3))
        F1 += IL("v_lshrrev_b32 v56, 2, v1\nv_lshlrev_b32 v56, 10, v56\nv_and_b32 v57, 3, v1\nv_lshl_add_u32 v56, v57, 7, v56")
        F1 += IL("s_mul_i32 s%d, s%d, %d\ns_bfe_u32 s%d, s4, 0x10002\ns_lshl_b32 s%d, s%d, 9\ns_add_u32 s%d, s%d, s%d\ns_lshl_b32 s%d, s%d, 15\ns_add_u32 s%d, s%d, s%d" % (sT1, sT0, 43*1024, sM0, sM0, sM0, sT1, sT1, sM0, sM0, sRGP, sT1, sT1, sM0))
        F1.append(I("buffer_load_dword v58, v56, s[%d:%d], s%d offen" % (SC0, SC0+3, sT1), 'touch'))
        F1 += IL("s_add_u32 s%d, s%d, 16384" % (sT1, sT1))
        F1.append(I("buffer_load_dword v59, v56, s[%d:%d], s%d offen" % (SC0, SC0+3, sT1), 'touch'))
        F1.append(IL("s_cmp_eq_u32 s%d, 0\ns_cselect_b32 s%d, s%d, s%d\ns_cselect_b32 s%d, s%d, s%d" % (sRGP, SC0, P_CRE, P_CIM, SC0+1, P_CRE+1, P_CIM+1)))
        F1 += IL("s_mov_b32 s%d, %d" % (SC0+2, 512*1024))
        F1 += IL("v_lshlrev_b32 v56, 7, v1")
        F1 += IL("s_bfe_u32 s%d, s4, 0x10002\ns_lshl_b32 s%d, s%d, 18\ns_lshl_b32 s%d, s%d, 13\ns_add_u32 s%d, s%d, s%d" % (sM0, sM0, sM0, sT1, sT0, sT1, sT1, sM0))
        F1.append(I("buffer_load_dword v60, v56, s[%d:%d], s%d offen" % (SC0, SC0+3, sT1), 'touch'))
    main1 = role_main(1, lambda t: dens1[0] if t < 8 else dens1[1], {2, 3, 5, 8, 'aug0'}, {2: phase0_colsum(1), 8: ln_check(1)}, {}, WA2_1)
    body1, left1 = interleave2(main1, F1)
    assert not left1, len(left1)
    T1 = Stream()
    T1.extend(ST(4))
    T1.extend(fpre())
    if fused == 2:
        su, d1, su2, r1, d2, r2 = w2side()
        T1.extend(flat(su))
        T1.extend(merge(tail_ffn(sUOFF2, SA0, SA1), d1 + su2))
        pass
    else:
        T1.extend(tail_ffn(sUOFF2, SA0, SA1))
    T1.extend(ST(5)); T1.extend(ST(6))
    r1full = finalize(model_pre + Q.ins + [I("L_p1_role1:")] + body1 + T1.ins)
    idx = [k for k, o in enumerate(r1full) if o.text == "L_p1_role1:"][0]
    role1 = r1full[idx:]
    F = Stream()
    F("L_p1_fin:")
    if stamp == 1:
        F("s_waitcnt vmcnt(0)\ns_memtime s[22:23]\ns_memrealtime s[24:25]\ns_waitcnt lgkmcnt(0)")
        srd(F, 52, P_WS, 1 << 20, 0x2000000)
        F("v_mov_b32 v8, s0\nv_mov_b32 v9, s98")
        for k in range(8): F("v_mov_b32 v%d, s%d" % (10+k, 8+2*k))
        F("v_mov_b32 v18, s24\nv_mov_b32 v19, 0")
        F("s_lshl_b32 s26, s2, 3\ns_add_u32 s26, s26, s%d\ns_lshl_b32 s26, s26, 6\nv_mov_b32 v20, s26" % sW)
        F("v_cmp_eq_u32 vcc, 0, v1\ns_and_saveexec_b64 s[28:29], vcc")
        F("buffer_store_dwordx4 v[8:11], v20, s[52:55], 0 offen\nbuffer_store_dwordx4 v[12:15], v20, s[52:55], 0 offen offset:16\nbuffer_store_dwordx4 v[16:19], v20, s[52:55], 0 offen offset:32")
    fin = finalize(F.ins)
    ftxt = ""
    if fused:
        if stamp == 3: ftxt += "s_memrealtime s[26:27]\n"
        ftxt += "s_waitcnt vmcnt(0)\ns_barrier\n"
        if stamp == 3: ftxt += "s_memrealtime s[16:17]\n"
        ftxt += "s_mov_b32 s98, s%d\n" % sNON
        ftxt += "s_cmp_lg_u32 s5, 0\ns_cbranch_scc1 L_f_fskip\n"
        ftxt += "v_mov_b32 v36, s98\nv_mov_b32 v37, s98\ns_lshl_b32 s95, s3, 4\ns_add_u32 s95, s95, s4\ns_lshl_b32 s95, s95, 3\ns_add_u32 s95, s95, %d\ns_mov_b64 exec, 1\n" % WS_FL
        ftxt += "buffer_store_dwordx2 v[36:37], off, s[%d:%d], s95 sc1\ns_mov_b64 exec, -1\nL_f_fskip:\n" % (SWS, SWS+3)
        poll = "s_cmp_lg_u32 s5, 0\ns_cbranch_scc1 L_f_pskip\nv_lshlrev_b32 v46, 3, v1\ns_lshl_b32 s95, s3, 7\ns_add_u32 s95, s95, %d\ns_mov_b32 s94, 400000\ns_mov_b64 exec, 0xffff\n" % WS_FL
        poll += "L_f_poll:\nbuffer_load_dwordx2 v[48:49], v46, s[%d:%d], s95 offen sc1\ns_waitcnt vmcnt(0)\nv_xor_b32 v48, s98, v48\nv_xor_b32 v49, s98, v49\nv_or_b32 v48, v48, v49\nv_cmp_ne_u32 vcc, 0, v48\ns_nop 4\ns_cbranch_vccz L_f_pok\n" % (SWS, SWS+3)
        poll += "s_sleep 1\ns_sub_u32 s94, s94, 1\ns_cmp_lg_u32 s94, 0\ns_cbranch_scc1 L_f_poll\nL_f_pok:\ns_mov_b64 exec, -1\n" + ("buffer_inv sc1\ns_waitcnt vmcnt(0)\n" if acq else "") + "L_f_pskip:\ns_barrier\n"
        if stamp == 3: poll += "s_memrealtime s[22:23]\n"
        if fused == 2:
            d1, r1, d2, r2 = p2d.rounds()
            ftxt += render(finalize(flat(r1[1:] + d2 + r2 + [Wait(lgkm_all=True), I("s_barrier")])))
            ftxt += p2d.p2_main("s3", "s4", "s5", PD, poll)
        else: ftxt += p2c.p2_phase("s3", "s4", "s5", PD, a2ld=("" if acq else " sc1"), poll=poll, lab="L_f", stamp=(stamp == 3), pre=dict(SWD=SW1, sWOF=sWOFF, sLB=sWSTR, vP0=5, vP1=6, done=True))
    if fused and stamp == 3:
        ftxt += "s_waitcnt vmcnt(0)\ns_memrealtime s[28:29]\ns_waitcnt lgkmcnt(0)\n"
        for k, r in enumerate((0, 10, 12, 14, 26, 16, 22, 30, 28)): ftxt += "v_mov_b32 v%d, s%d\n" % (64+k, r)
        ftxt += "s_lshl_b32 s94, s2, 2\ns_add_u32 s94, s94, s5\ns_lshl_b32 s94, s94, 6\ns_add_u32 s94, s94, 0x2000000\nv_mov_b32 v76, s94\n"
        ftxt += "global_store_dwordx4 v76, v[64:67], s[38:39]\nglobal_store_dwordx4 v76, v[68:71], s[38:39] offset:16\nglobal_store_dwordx4 v76, v[72:75], s[38:39] offset:32\n"
    ftxt += "L_p1_end:\ns_endpgm\n"
    slow = "\n".join(SLOW) + "\n"
    return kernel_text(name, render(pro) + render(role0) + render(role1) + render(fin) + ftxt + slow, 512, 102, accum=256)
```

```python
from common import *
from p1e import gen_p1
import sys
acq = False
cpf = int(sys.argv[2]) if len(sys.argv) > 2 else 0
st = int(sys.argv[1]) if len(sys.argv) > 1 else 0
o = header_comments()
o.append("; @launch grid=(256,1,1) block=(256,1,1) lds=163840")
o += ['.amdgcn_target "amdgcn-amd-amdhsa--gfx950"', ".text"]
t = "\n".join(o) + "\n" + gen_p1(KBASE + "_kernel", fused=2, a2mod=" sc1", stamp=st, acq=acq, codepf=cpf)
open("f2k%s.s" % ((("s%d" % st) if st else "") + ("c" if cpf else "")), "w").write(t)
```

```python
from common import *
import p2c, p2d, p2e
import struct
def f2u(x): return struct.unpack('<I', struct.pack('<f', x))[0]
LOG2E = 1.4426950408889634
GC0 = -2.0 * LOG2E * 0.7978845608028654
GC1 = GC0 * 0.044715

M0 = 131072
CSL = M0; INVL = M0 + 16384; SEG = M0 + 16896; CSR = M0 + 18944; NONL = M0 + 19456
LDS_BYTES = 163840
WS_AGR = 0x10000; WS_CS = 0x30000; WS_ZR = 0x40000; WS_FL = 0x60000; WSM_BYTES = 0x70000
vNK = [5, 6, 7, 8]; vKN = [9, 10, 11, 12]; vK2 = vKN; vW = [13, 14, 15, 16]
vT0, vT1 = 17, 18
vXA = [19, 20, 21, 22]; vBA = [23, 24, 25, 26]
vAO = 27
vK0 = [28, 29]; vK1 = [30, 31]; vS2 = [32, 33]
vT2a, vT2b = 34, 35
XAUG = [36, 40]; WAUG = [44, 48]
vLr, vLi, vL16r, vL16i, vL128r, vL128i, vcr, vci = range(52, 60)
vF = [(60, 61), (62, 63)]
vnLi, vnL16i, vnci = 13, 14, 15
U0 = 64
WF = 96
ACCA = 128; ACCB = 192
def acca(r, acc): return ACCA + 32*r + 16*acc
def accb(r, acc): return ACCB + 32*r + 16*acc
def XF(r, ks): return 128*r + 4*ks
sM, sJ, sW, sRGP, sCG = 3, 4, 5, 6, 7
P_X, P_LRE, P_LIM, P_BRE, P_BIM, P_CRE, P_CIM, P_LDT = 8, 10, 12, 14, 16, 18, 20, 22
P_DSK, P_BX, P_WG, P_WU, P_WD, P_OUT, P_DBG, P_WS = 24, 26, 28, 30, 32, 34, 36, 38
SX, SW1, SW2, SA0, SA1, SWS, SDBG, SC0, SP = 40, 44, 48, 52, 56, 60, 64, 68, 72
sXOFF, sWOFF, sWSTR, sW2OFF, sLDSW, sUOFF1, sUOFF2, sT0, sT1, sNON, sHIM, sRGPF = range(76, 88)
sHH = 88; sAGM = 90; sM0, sM1, sSPIN = 92, 93, 94
sUA, sUB, sUC = 95, 96, 97
sXK, sXK2, sDO = 101, 100, 99

def I(text, tag=None): return Ins(text, tag)
def IL(text, tag=None): return [Ins(l.strip(), tag) for l in text.strip().split("\n") if l.strip()]
def bf16r(lst, x, t):
    lst.append(I("v_cvt_pk_bf16_f32 v%d, v%d, v%d" % (t, x, x)))
    lst.append(I("v_lshlrev_b32 v%d, 16, v%d" % (x, t)))
def cmul_into(lst, dr, di, ar, ai, br, bi):
    lst.append(I("v_mul_f32 v%d, v%d, v%d" % (dr, ar, br)))
    lst.append(I("v_mul_f32 v%d, v%d, v%d" % (di, ar, bi)))
    lst.append(I("v_fma_f32 v%d, -v%d, v%d, v%d" % (dr, ai, bi, dr)))
    lst.append(I("v_fmac_f32 v%d, v%d, v%d" % (di, ai, br)))
def csq(lst, r, i, t):
    lst.append(I("v_mul_f32 v%d, v%d, v%d" % (t, i, i)))
    lst.append(I("v_mul_f32 v%d, v%d, v%d" % (i, r, i)))
    lst.append(I("v_fma_f32 v%d, v%d, v%d, -v%d" % (r, r, r, t)))
    lst.append(I("v_add_f32 v%d, v%d, v%d" % (i, i, i)))
def cacc(lst, sr, si, lr, li, nli, pr, pi):
    lst.append(I("v_fmac_f32 v%d, v%d, v%d" % (sr, lr, pr)))
    lst.append(I("v_fmac_f32 v%d, v%d, v%d" % (si, lr, pi)))
    lst.append(I("v_fmac_f32 v%d, v%d, v%d" % (sr, nli, pi)))
    lst.append(I("v_fmac_f32 v%d, v%d, v%d" % (si, li, pr)))

A2MOD = ""
def ffn_epilogue(r, G, U, suoff, tt, SA):
    L = []
    for g in range(4):
        R = [4*g + jj for jj in range(4)]
        for jj, x in enumerate(R): L.append(I("v_mul_f32 v%d, v%d, v%d" % (tt[jj], G+x, G+x)))
        for jj, x in enumerate(R): L.append(I("v_fma_f32 v%d, v%d, v%d, v%d" % (tt[jj], tt[jj], vK1[r], vK0[r])))
        for jj, x in enumerate(R): L.append(I("v_mul_f32 v%d, v%d, v%d" % (tt[jj], tt[jj], G+x)))
        for jj, x in enumerate(R): L.append(I("v_exp_f32 v%d, v%d" % (tt[jj], tt[jj])))
        for jj, x in enumerate(R): L.append(I("v_mul_f32 v%d, v%d, v%d" % (U+x, U+x, G+x)))
        for jj, x in enumerate(R): L.append(I("v_fma_f32 v%d, v%d, v%d, v%d" % (tt[jj], tt[jj], vS2[r], vS2[r])))
        for jj, x in enumerate(R): L.append(I("v_rcp_f32 v%d, v%d" % (tt[jj], tt[jj])))
        for jj, x in enumerate(R): L.append(I("v_mul_f32 v%d, v%d, v%d" % (U+x, U+x, tt[jj])))
        base = G + 8*(g >> 1) + 2*(g & 1)
        L.append(I("v_cvt_pk_bf16_f32 v%d, v%d, v%d" % (base, U+4*g, U+4*g+1)))
        L.append(I("v_cvt_pk_bf16_f32 v%d, v%d, v%d" % (base+1, U+4*g+2, U+4*g+3)))
        if g & 1:
            q = G + 8*(g >> 1)
            L.append(I("buffer_store_dwordx4 v[%d:%d], v%d, s[%d:%d], s%d offen offset:%d%s" % (q, q+3, vAO, SA, SA+3, suoff, 1024*(g >> 1), A2MOD), 'a2'))
    return L
def ffn_epilogue_pk(r, G, U, suoff, tt, SA, KP):
    L = []
    k01, s2 = KP
    for g in range(4):
        P2 = [(4*g, tt[0]), (4*g+2, tt[2])]
        for x, t in P2: L.append(I("v_pk_mul_f32 v[%d:%d], v[%d:%d], v[%d:%d]" % (t, t+1, G+x, G+x+1, G+x, G+x+1)))
        for x, t in P2: L.append(I("v_pk_fma_f32 v[%d:%d], v[%d:%d], v[%d:%d], v[%d:%d] op_sel:[0,1,0] op_sel_hi:[1,1,0]" % (t, t+1, t, t+1, k01, k01+1, k01, k01+1)))
        for x, t in P2: L.append(I("v_pk_mul_f32 v[%d:%d], v[%d:%d], v[%d:%d]" % (t, t+1, t, t+1, G+x, G+x+1)))
        for x, t in P2:
            L.append(I("v_exp_f32 v%d, v%d" % (t, t))); L.append(I("v_exp_f32 v%d, v%d" % (t+1, t+1)))
        for x, t in P2: L.append(I("v_pk_mul_f32 v[%d:%d], v[%d:%d], v[%d:%d]" % (U+x, U+x+1, U+x, U+x+1, G+x, G+x+1)))
        for x, t in P2: L.append(I("v_pk_fma_f32 v[%d:%d], v[%d:%d], v[%d:%d], v[%d:%d] op_sel_hi:[1,0,0]" % (t, t+1, t, t+1, s2, s2+1, s2, s2+1)))
        for x, t in P2:
            L.append(I("v_rcp_f32 v%d, v%d" % (t, t))); L.append(I("v_rcp_f32 v%d, v%d" % (t+1, t+1)))
        for x, t in P2: L.append(I("v_pk_mul_f32 v[%d:%d], v[%d:%d], v[%d:%d]" % (U+x, U+x+1, U+x, U+x+1, t, t+1)))
        base = G + 8*(g >> 1) + 2*(g & 1)
        L.append(I("v_cvt_pk_bf16_f32 v%d, v%d, v%d" % (base, U+4*g, U+4*g+1)))
        L.append(I("v_cvt_pk_bf16_f32 v%d, v%d, v%d" % (base+1, U+4*g+2, U+4*g+3)))
        if g & 1:
            q = G + 8*(g >> 1)
            L.append(I("buffer_store_dwordx4 v[%d:%d], v%d, s[%d:%d], s%d offen offset:%d%s" % (q, q+3, vAO, SA, SA+3, suoff, 1024*(g >> 1), A2MOD), 'a2'))
    return L
def tail_ffn(suoff, SA0, SA1):
    L = []
    for r in range(2):
        b = XAUG[r]
        L.append(I("v_mov_b32 v%d, v%d" % (b, vK0[r]))); L.append(I("v_mov_b32 v%d, v%d" % (b+1, vK1[r])))
        L.append(I("v_mov_b32 v%d, v%d" % (b+2, vS2[r])))
    A = ffn_epilogue_pk(0, accb(0, 0), accb(0, 1), suoff, [44, 45, 46, 47], SA0, (XAUG[0], XAUG[0]+2))
    B = ffn_epilogue_pk(1, accb(1, 0), accb(1, 1), suoff, [48, 49, 50, 51], SA1, (XAUG[1], XAUG[1]+2))
    for a_, b_ in zip(A, B): L.append(a_); L.append(b_)
    return L

def gen_p1(name, stamp=0, dens0=(5, 6), dens1=(5, 4), a2mod="", rotmask=7, w2sched=(5, 6, 7, 8, 9, 10, 11, 12), fused=None, acq=False, codepf=0, a2ld2=" sc1"):
    global A2MOD
    A2MOD = a2mod
    SLOW = []
    RT = {0: 10, 2: 12, 4: 14}
    def ST(k):
        if stamp == 1: return [I("s_memtime s[%d:%d]" % (8+2*k, 9+2*k))]
        if stamp == 3 and k in RT: return [I("s_memrealtime s[%d:%d]" % (RT[k], RT[k]+1))]
        return []
    P = Stream()
    P("s_cmp_ge_u32 s2, 256\ns_cbranch_scc1 L_p1_end")
    P("s_load_dwordx16 s[8:23], s[0:1], 0\ns_load_dwordx16 s[24:39], s[0:1], 64")
    if stamp == 1: P("s_memrealtime s[0:1]\ns_memtime s[98:99]")
    if stamp == 3: P("s_memrealtime s[0:1]")
    P("v_lshrrev_b32 v1, 6, v0\nv_and_b32 v2, 31, v0\nv_readfirstlane_b32 s%d, v1\nv_and_b32 v1, 63, v0\nv_bfe_u32 v3, v0, 5, 1" % sW)
    if codepf:
        P("s_getpc_b64 s[%d:%d]" % (SC0, SC0+1))
        P("L_p1_pc:")
        P("s_bfe_u32 s%d, s2, 0x10003\ns_lshl_b32 s%d, s%d, 2\ns_add_u32 s%d, s%d, s%d\ns_lshl_b32 s%d, s%d, 13" % (sT0, sT0, sT0, sT0, sT0, sW, sT0, sT0))
        P("v_lshlrev_b32 v44, 7, v1\nv_add_u32 v44, s%d, v44\nv_min_u32 v44, %d, v44" % (sT0, codepf))
        P("v_mov_b32 v47, s%d\nv_add_co_u32 v46, vcc, s%d, v44\nv_addc_co_u32 v47, vcc, 0, v47, vcc" % (SC0+1, SC0))
        P("global_load_dword v255, v[46:47], off", 'cpf')
    P("s_and_b32 s3, s2, 1\ns_lshl_b32 s3, s3, 3\ns_bfe_u32 s%d, s2, 0x30003\ns_add_u32 s3, s3, s%d" % (sT0, sT0))
    P("s_bfe_u32 s4, s2, 0x20001\ns_lshl_b32 s4, s4, 2\ns_lshr_b32 s%d, s2, 6\ns_add_u32 s4, s4, s%d" % (sT0, sT0))
    P("v_and_b32 v46, 7, v1\nv_lshrrev_b32 v45, 4, v1\nv_xor_b32 v46, v46, v45\nv_lshlrev_b32 v46, 4, v46")
    P("v_lshrrev_b32 v45, 3, v1\nv_lshl_add_u32 v%d, v45, 10, v46" % vNK[0])
    P("v_xor_b32 v%d, 64, v%d" % (vNK[1], vNK[0]))
    P("v_add_u32 v%d, %d, v%d\nv_add_u32 v%d, %d, v%d" % (vNK[2], 14336, vNK[0], vNK[3], 14336+7168, vNK[1]))
    P("v_add_u32 v%d, 7168, v%d" % (vNK[1], vNK[1]))
    P("s_lshl_b32 s%d, s%d, 12" % (sLDSW, sW))
    P("s_lshl_b32 s%d, s3, 17\ns_lshl_b32 s%d, s%d, 15\ns_add_u32 s%d, s%d, s%d" % (sXOFF, sT0, sW, sXOFF, sXOFF, sT0))
    P("s_mov_b32 s%d, %d\ns_mov_b32 s%d, 0x20000" % (SX+2, 2048*1024, SX+3))
    P("v_lshrrev_b32 v45, 2, v1\ns_movk_i32 s%d, 2752\nv_mul_lo_u32 v45, v45, s%d\nv_and_b32 v46, 3, v1\nv_lshl_add_u32 v%d, v46, 4, v45" % (sT0, sT0, vKN[0]))
    for i in range(1, 4): P("v_add_u32 v%d, %d, v%d" % (vKN[i], 43008*i, vKN[0]))
    P("s_and_b32 s%d, s%d, 1\ns_lshr_b32 s%d, s%d, 1" % (sRGP, sW, sCG, sW))
    P("s_mul_i32 s%d, s4, 3\ns_add_u32 s%d, s%d, 1\ns_add_u32 s%d, s%d, 2" % (sUA, sUB, sUA, sUC, sUA))
    P("s_lshl_b32 s%d, s%d, 11" % (sUOFF2, sUB))
    P("s_cmp_lt_u32 s4, 11\ns_cbranch_scc1 L_p1_u")
    P("s_lshl_b32 s%d, s4, 1\ns_add_u32 s%d, s%d, 11\ns_add_u32 s%d, s%d, 1\ns_mov_b32 s%d, s%d\ns_mov_b32 s%d, 0x10000000" % (sUA, sUA, sUA, sUC, sUA, sUB, sUA, sUOFF2))
    P("L_p1_u:")
    P("s_and_b32 s%d, s3, %d\ns_lshl_b32 s%d, s%d, 7\ns_mov_b32 s%d, s%d" % (sXK, rotmask, sXK, sXK, sXK2, sXK))
    P("s_mov_b32 s%d, 0x20000" % (SW1+3))
    def dma(vo, S_, slot, tag, pre, post=[]):
        G = []
        g0 = [I(x) for x in pre] + [I("s_add_u32 m0, s%d, %d" % (sLDSW, slot*16384))]
        for i in range(4):
            ins = I("buffer_load_dwordx4 v%d, s[%d:%d], s%d offen offset:%d lds" % (vo[i], S_, S_+3, sDO, 1024*i), tag)
            if i == 0: G.append(g0 + [ins])
            elif i == 3: G.append([ins] + [I(x) for x in post])
            else: G.append([ins])
        return G
    def dma_x(slot, tag): return dma(vNK, SX, slot, tag, ["s_add_u32 s%d, s%d, s%d" % (sDO, sXOFF, sXK)])
    def dma_w(slot, tag): return dma(vW, SW1, slot, tag, ["s_mul_i32 s%d, s%d, s%d" % (sDO, sXK, sWSTR), "s_add_u32 s%d, s%d, s%d" % (sDO, sDO, sWOFF)],
                                     ["s_add_u32 s%d, s%d, 128" % (sXK, sXK), "s_and_b32 s%d, s%d, 1023" % (sXK, sXK)])
    def dma_w2(slot, tag): return dma(vK2, SW2, slot, tag, ["s_mul_i32 s%d, s%d, 1376" % (sDO, sXK2), "s_add_u32 s%d, s%d, s%d" % (sDO, sDO, sW2OFF)],
                                      ["s_add_u32 s%d, s%d, 128" % (sXK2, sXK2), "s_and_b32 s%d, s%d, 1023" % (sXK2, sXK2)])
    def w2slot(q): return q//2 if q % 2 == 0 else 4 + (q-1)//2
    P("s_waitcnt lgkmcnt(0)")
    P("s_mov_b32 s%d, s%d\ns_mov_b32 s%d, s%d" % (SX, P_X, SX+1, P_X+1))
    P.extend(flat(dma_x(0, ('C', 0))))
    P("s_cmp_lt_u32 s%d, 2\ns_cbranch_scc0 L_p1_wffn" % sW)
    P("s_cmp_eq_u32 s%d, 0\ns_cselect_b32 s%d, s%d, s%d\ns_cselect_b32 s%d, s%d, s%d" % (sW, SW1, P_BRE, P_BIM, SW1+1, P_BRE+1, P_BIM+1))
    P("s_mov_b32 s%d, %d\ns_movk_i32 s%d, 1\ns_lshl_b32 s%d, s4, 15" % (SW1+2, 512*1024, sWSTR, sWOFF))
    for i in range(4): P("v_mov_b32 v%d, v%d" % (vW[i], vNK[i]))
    P("s_branch L_p1_wdone\nL_p1_wffn:")
    P("s_cmp_eq_u32 s%d, 2\ns_cselect_b32 s%d, s%d, s%d\ns_cselect_b32 s%d, s%d, s%d" % (sW, SW1, P_WG, P_WU, SW1+1, P_WG+1, P_WU+1))
    P("s_mov_b32 s%d, %d\ns_movk_i32 s%d, %d\ns_lshl_b32 s%d, s%d, 6" % (SW1+2, 512*2752, sWSTR, 1376, sWOFF, sUA))
    for i in range(4): P("v_mov_b32 v%d, v%d" % (vW[i], vKN[i]))
    P("L_p1_wdone:")
    P.extend(flat(dma_w(4, ('C', 0))))
    srd(P, SDBG, P_DBG, 256)
    P("s_or_b32 s%d, s2, s%d\ns_cmp_lg_u32 s%d, 0\ns_cbranch_scc1 L_p1_nn" % (sT0, sW, sT0))
    P("s_memrealtime s[90:91]\ns_waitcnt lgkmcnt(0)\ns_or_b32 s90, s90, 1\nv_mov_b32 v44, s90")
    P("buffer_store_dword v44, off, s[%d:%d], 0 sc1\nL_p1_nn:" % (SDBG, SDBG+3))
    P.extend(flat(dma_x(1, ('C', 1)) + dma_w(5, ('C', 1))))
    P("v_lshlrev_b32 v47, 4, v1")
    P("s_lshl_b32 s%d, s3, 17\ns_lshl_b32 s%d, s4, 13\ns_add_u32 s%d, s%d, s%d\ns_lshl_b32 s%d, s%d, 11\ns_add_u32 s%d, s%d, s%d" % (sM0, sT0, sM0, sM0, sT0, sT0, sW, sM0, sM0, sT0))
    P("buffer_load_dwordx4 v[64:67], v47, s[%d:%d], s%d offen" % (SX, SX+3, sM0), 'p0s')
    P("buffer_load_dwordx4 v[68:71], v47, s[%d:%d], s%d offen offset:1024" % (SX, SX+3, sM0), 'p0s')
    P("s_lshr_b32 s%d, s3, 1" % sM0)
    P("s_and_b32 s%d, s3, 1\ns_lshl_b32 s%d, s%d, 2\ns_add_u32 s%d, s%d, s%d" % (sSPIN, sSPIN, sSPIN, sSPIN, sSPIN, sW))
    P("s_add_u32 m0, s%d, %d" % (sLDSW, CSL))
    P("s_cmp_lt_u32 s%d, 2\ns_cbranch_scc0 L_p1_c0ffn" % sM0)
    P("s_cmp_eq_u32 s%d, 0\ns_cselect_b32 s%d, s%d, s%d\ns_cselect_b32 s%d, s%d, s%d" % (sM0, SC0, P_BRE, P_BIM, SC0+1, P_BRE+1, P_BIM+1))
    P("s_mov_b32 s%d, %d\ns_mov_b32 s%d, 0x20000" % (SC0+2, 512*1024, SC0+3))
    P("s_lshl_b32 s%d, s4, 15\ns_lshl_b32 s%d, s%d, 7\ns_add_u32 s%d, s%d, s%d" % (sT0, sT1, sSPIN, sT0, sT0, sT1))
    for i in range(4): P("buffer_load_dwordx4 v%d, s[%d:%d], s%d offen offset:%d lds" % (vNK[i], SC0, SC0+3, sT0, 1024*i), 'p0c')
    P("s_branch L_p1_c0done\nL_p1_c0ffn:")
    P("s_bitcmp1_b32 s%d, 0\ns_cselect_b32 s%d, s%d, s%d\ns_cselect_b32 s%d, s%d, s%d" % (sM0, SC0, P_WU, P_WG, SC0+1, P_WU+1, P_WG+1))
    P("s_mov_b32 s%d, %d\ns_mov_b32 s%d, 0x20000" % (SC0+2, 512*2752, SC0+3))
    P("s_lshr_b32 s%d, s%d, 1" % (sT1, sM0))
    P("s_cmp_eq_u32 s%d, 1\ns_cselect_b32 s%d, s%d, s%d\ns_cmp_eq_u32 s%d, 2\ns_cselect_b32 s%d, s%d, s%d" % (sT1, sT0, sUA, sUC, sT1, sT0, sUB, sT0))
    P("s_lshl_b32 s%d, s%d, 6\ns_mul_i32 s%d, s%d, %d\ns_add_u32 s%d, s%d, s%d" % (sT0, sT0, sT1, sSPIN, 64*2752, sT0, sT0, sT1))
    for i in range(4): P("buffer_load_dwordx4 v%d, s[%d:%d], s%d offen offset:%d lds" % (vKN[i], SC0, SC0+3, sT0, 1024*i), 'p0c2')
    P("L_p1_c0done:")
    model_pre = [x for x in P.ins if getattr(x, 'tag', None) != 'p0c2' and not (x.op == 'buffer_store_dword')]

    Q = Stream()
    Q("s_lshl_b32 s%d, s4, 6\nv_lshl_add_u32 v44, v2, 1, s%d" % (sT0, sT0))
    Q("s_movk_i32 s%d, 1024\ns_mov_b32 s%d, 0x20000" % (SP+2, SP+3))
    for k, p in enumerate((P_LRE, P_LIM, P_LDT)):
        Q("s_mov_b32 s%d, s%d\ns_mov_b32 s%d, s%d\nbuffer_load_ushort v%d, v44, s[%d:%d], 0 offen" % (SP, p, SP+1, p+1, 88+k, SP, SP+3))
    Q("buffer_load_dword v91, off, s[%d:%d], 0 sc1" % (SDBG, SDBG+3), 'non')
    Q("v_bfe_u32 v4, v2, 2, 1\nv_lshlrev_b32 v4, 4, v4\nv_lshrrev_b32 v46, 3, v2\nv_lshl_add_u32 v4, v46, 2, v4\nv_and_b32 v46, 3, v2\nv_add_u32 v4, v4, v46")
    Q("v_bfe_u32 v46, v4, 1, 3\ns_lshl_b32 s%d, s%d, 13\nv_lshlrev_b32 v45, 7, v4\nv_add_u32 v45, s%d, v45" % (sT0, sRGP, sT0))
    for s in range(4):
        Q("v_or_b32 v44, %d, v3\nv_xor_b32 v44, v44, v46\nv_lshl_add_u32 v%d, v44, 4, v45" % (2*s, vXA[s]))
    Q("v_bfe_u32 v46, v2, 1, 3\nv_lshlrev_b32 v45, 7, v2")
    for s in range(4):
        Q("v_or_b32 v44, %d, v3\nv_xor_b32 v44, v44, v46\nv_lshl_add_u32 v%d, v44, 4, v45" % (2*s, 84+s))
        Q("v_add_u32 v%d, 65536, v%d" % (vBA[s], 84+s))
    Q("v_bfe_u32 v44, v1, 2, 2\nv_lshl_add_u32 v44, v3, 3, v44\nv_lshlrev_b32 v44, 6, v44")
    Q("v_bfe_u32 v45, v1, 4, 1\nv_lshl_add_u32 v44, v45, 5, v44\nv_and_b32 v45, 3, v1\nv_lshl_add_u32 v%d, v45, 3, v44" % vT0)
    Q("s_lshl_b32 s%d, s%d, 13\ns_add_u32 s%d, s%d, 65536\nv_add_u32 v%d, s%d, v%d" % (sT0, sCG, sT0, sT0, vT1, sT0, vT0))
    Q("s_mov_b32 s%d, 0\ns_mov_b32 s%d, -1\ns_mov_b32 s%d, 0xffff0000" % (sHH, sHH+1, sHIM))
    Q("s_cmp_eq_u32 s%d, 1\ns_cbranch_scc1 L_p1_role1" % sCG)

    def setup2():
        L = []
        L += IL("s_bitcmp1_b32 s%d, 1" % sW)
        g = IL("s_bitcmp1_b32 s%d, 1\ns_cselect_b32 s%d, s%d, s%d\ns_cselect_b32 s%d, s%d, s%d" % (sW, SW2, P_WU, P_WG, SW2+1, P_WU+1, P_WG+1))
        L = [g]
        L += IL("s_mov_b32 s%d, %d\ns_mov_b32 s%d, 0x20000" % (SW2+2, 512*2752, SW2+3))
        L += IL("s_lshl_b32 s%d, s%d, 6\ns_mul_i32 s%d, s%d, %d\ns_add_u32 s%d, s%d, s%d" % (sW2OFF, sUB, sT0, sRGP, 32*2752, sW2OFF, sW2OFF, sT0))
        L += IL("v_lshrrev_b32 v45, 3, v1\ns_movk_i32 s%d, 2752\nv_mul_lo_u32 v45, v45, s%d\nv_bfe_u32 v46, v1, 4, 1\nv_lshlrev_b32 v46, 2, v46\nv_and_b32 v44, 7, v1\nv_xor_b32 v46, v46, v44\nv_lshl_add_u32 v%d, v46, 4, v45" % (sT0, sT0, vK2[0]))
        for i in range(1, 4): L += IL("v_add_u32 v%d, %d, v%d" % (vK2[i], (8*2752-1024)*i, vK2[0]))
        L.append(IL("s_add_u32 s%d, s%d, %d\ns_addc_u32 s%d, s%d, 0" % (SWS, P_WS, WS_ST, SWS+1, P_WS+1)))
        L += IL("s_mov_b32 s%d, %d\ns_mov_b32 s%d, 0x20000" % (SWS+2, WSM_BYTES, SWS+3))
        L += IL("s_lshl_b32 s%d, s%d, 11" % (sUOFF1, sUA))
        L.append(IL("s_lshl_b32 s%d, s%d, 11\ns_cmp_eq_u32 s%d, 0\ns_cselect_b32 s%d, s%d, s%d" % (sT0, sUC, sCG, sUOFF2, sUOFF2, sT0)))
        L += IL("v_lshlrev_b32 v%d, 4, v4\nv_lshl_add_u32 v%d, v3, 9, v%d" % (vAO, vAO, vAO))
        L += IL("v_bfe_u32 v44, v1, 2, 2\nv_lshl_add_u32 v44, v3, 3, v44\nv_lshlrev_b32 v44, 7, v44")
        L += IL("v_bfe_u32 v45, v1, 4, 1\nv_lshlrev_b32 v45, 1, v45\nv_bfe_u32 v46, v1, 1, 1\nv_add_u32 v45, v45, v46\ns_lshl_b32 s%d, s%d, 2\nv_add_u32 v45, s%d, v45" % (sT0, sCG, sT0))
        L += IL("v_bfe_u32 v46, v1, 3, 1\nv_lshlrev_b32 v46, 2, v46\nv_xor_b32 v45, v45, v46\nv_lshl_add_u32 v44, v45, 4, v44\nv_and_b32 v45, 1, v1\nv_lshl_add_u32 v%d, v45, 3, v44\nv_add_u32 v%d, 65536, v%d" % (vT2a, vT2b, vT2a))
        L += IL("s_lshl_b32 s%d, s3, 2\ns_lshl_b32 s%d, s%d, 1\ns_add_u32 s%d, s%d, s%d\ns_mul_i32 s%d, s%d, %d" % (sT0, sT1, sRGP, sT0, sT0, sT1, sT0, sT0, RG_BYTES))
        L.append(IL("s_add_u32 s%d, s%d, s%d\ns_addc_u32 s%d, s%d, 0" % (SA0, P_WS, sT0, SA0+1, P_WS+1)))
        L.append(IL("s_add_u32 s%d, s%d, %d\ns_addc_u32 s%d, s%d, 0" % (SA1, SA0, RG_BYTES, SA1+1, SA0+1)))
        L += IL("s_mov_b32 s%d, %d\ns_mov_b32 s%d, 0x20000\ns_mov_b32 s%d, %d\ns_mov_b32 s%d, 0x20000" % (SA0+2, RG_BYTES, SA0+3, SA1+2, RG_BYTES, SA1+3))
        for b in XAUG + WAUG: L += IL("v_mov_b32 v%d, 0\nv_mov_b32 v%d, 0" % (b+2, b+3))
        return L
    def phase0_stats():
        L = []
        for r in range(4): L.append(I("v_mov_b32 v%d, 0" % (72+r)))
        for e in range(4):
            for row in range(2):
                x = 64 + 4*row + e; lo = 76 + 2*row; hi = 77 + 2*row
                L += IL("v_lshlrev_b32 v%d, 16, v%d\nv_and_b32 v%d, s%d, v%d" % (lo, x, hi, sHIM, x))
                L += IL("v_add_f32 v%d, v%d, v%d\nv_fmac_f32 v%d, v%d, v%d\nv_add_f32 v%d, v%d, v%d\nv_fmac_f32 v%d, v%d, v%d" % (72+2*row, 72+2*row, lo, 73+2*row, lo, lo, 72+2*row, 72+2*row, hi, 73+2*row, hi, hi))
        for mod in ("row_shr:1", "row_shr:2", "row_shr:4", "row_shr:8", "row_bcast:15 row_mask:0xa", "row_bcast:31 row_mask:0xc"):
            for r in range(4):
                if mod.startswith("row_shr"): L.append(I("v_add_f32_dpp v%d, v%d, v%d %s bound_ctrl:0" % (72+r, 72+r, 72+r, mod)))
                else: L.append(I("v_add_f32_dpp v%d, v%d, v%d %s" % (72+r, 72+r, 72+r, mod)))
        LL = [[], []]
        for row in range(2):
            mean, ex2, t = 72+2*row, 73+2*row, 76+row
            K = LL[row]
            K.append(I("v_mul_f32 v%d, 0x%x, v%d" % (mean, f2u(1/512.), mean)))
            K.append(I("v_mul_f32 v%d, 0x%x, v%d" % (ex2, f2u(1/512.), ex2)))
            K.append(I("v_fma_f32 v%d, -v%d, v%d, v%d" % (ex2, mean, mean, ex2)))
            K.append(I("v_max_f32 v%d, 0, v%d" % (ex2, ex2)))
            bf16r(K, mean, t); bf16r(K, ex2, t)
            K.append(I("v_add_f32 v%d, 0x%x, v%d" % (ex2, f2u(1e-5), ex2)))
            bf16r(K, ex2, t)
            K.append(I("v_sqrt_f32 v%d, v%d" % (ex2, ex2)))
            bf16r(K, ex2, t)
            K.append(I("v_rcp_f32 v%d, v%d" % (ex2, ex2)))
        for a_, b_ in zip(*LL): L.append(a_); L.append(b_)
        L += IL("v_mov_b32 v78, v75\nv_mov_b32 v76, v74\nv_mov_b32 v74, v73")
        return L
    def phase0_colsum(role):
        L = []
        L.append(Wait(vm_tag='p0c'))
        L += IL("v_mov_b32 v80, 0x3f803f80\nv_mov_b32 v81, v80\nv_mov_b32 v82, v80\nv_mov_b32 v83, v80")
        L += IL("s_add_u32 s%d, s%d, %d" % (sM0, sLDSW, CSL))
        L += IL("s_cmp_lt_u32 s3, 4\ns_cbranch_scc0 L_p1_c1ffn%d" % role)
        for s in range(4):
            L += IL("v_add_u32 v%d, s%d, v%d\nds_read_b128 v[%d:%d], v%d" % (84+s, sM0, 84+s, 192+4*s, 195+4*s, 84+s))
        L += IL("s_branch L_p1_c1done%d\nL_p1_c1ffn%d:" % (role, role))
        L += IL("v_add_u32 v84, s%d, v%d" % (sM0, vT0))
        for s in range(4):
            L += IL("ds_read_b64_tr_b16 v[%d:%d], v84 offset:%d\nds_read_b64_tr_b16 v[%d:%d], v84 offset:%d" % (192+4*s, 193+4*s, 1024*s, 194+4*s, 195+4*s, 1024*s+256))
        L += IL("L_p1_c1done%d:" % role)
        L += IL("s_waitcnt lgkmcnt(0)")
        for s in range(4):
            L += IL("v_mfma_f32_32x32x16_bf16 v[224:239], v[80:83], v[%d:%d], %s" % (192+4*s, 195+4*s, "0" if s == 0 else "v[224:239]"))
        return L
    def phase0_colsum_write():
        return IL("s_lshl_b32 s%d, s%d, 7\nv_lshlrev_b32 v84, 2, v2\nv_add_u32 v84, s%d, v84\nv_add_u32 v84, %d, v84\nds_write_b32 v84, v224" % (sM0, sW, sM0, CSR))

    def reads(lst, cg, g):
        p, ks = g // 32, g % 32
        t = g // 4; s = g % 4
        b = WF + 8*(g & 3)
        if p == 0:
            xs = t % 4; wsl = 4 + t % 4
            for r in range(2):
                lst.append(I("ds_read_b128 a[%d:%d], v%d offset:%d" % (XF(r, ks), XF(r, ks)+3, vXA[s], xs*16384 + r*4096)))
        else:
            wsl = w2slot(t-8)
        if p == 0 and cg == 0:
            for acc in range(2):
                lst.append(I("ds_read_b128 v[%d:%d], v%d offset:%d" % (b+4*acc, b+4*acc+3, vBA[s], (wsl-4)*16384 + acc*4096)))
        elif p == 0:
            for acc in range(2):
                o = (wsl & 3)*16384 + acc*4096 + s*1024
                lst.append(I("ds_read_b64_tr_b16 v[%d:%d], v%d offset:%d" % (b+4*acc, b+4*acc+1, vT1, o)))
                lst.append(I("ds_read_b64_tr_b16 v[%d:%d], v%d offset:%d" % (b+4*acc+2, b+4*acc+3, vT1, o+256)))
        else:
            vt = vT2b if wsl >= 4 else vT2a
            for acc in range(2):
                o = (wsl & 3)*16384 + acc*8192 + s*2048
                lst.append(I("ds_read_b64_tr_b16 v[%d:%d], v%d offset:%d" % (b+4*acc, b+4*acc+1, vt, o)))
                lst.append(I("ds_read_b64_tr_b16 v[%d:%d], v%d offset:%d" % (b+4*acc+2, b+4*acc+3, vt, o+512)))
    def mfma(cg, p, x, w, r, acc, first):
        A = (acca if p == 0 else accb)(r, acc)
        c = "0" if first else "v[%d:%d]" % (A, A+15)
        if p == 0 and cg == 0: return I("v_mfma_f32_32x32x16_bf16 v[%d:%d], %s, %s, %s" % (A, A+15, x, w, c))
        return I("v_mfma_f32_32x32x16_bf16 v[%d:%d], %s, %s, %s" % (A, A+15, w, x, c))

    def nonce_pre(role):
        L = []
        if role == 0:
            L += IL("s_cmp_lg_u32 s%d, 0\ns_cbranch_scc1 L_p1_n0skip\nv_readfirstlane_b32 s%d, v91\ns_cmp_eq_u32 s%d, 0\ns_cbranch_scc1 L_p1_nslow\nL_p1_nok:\nv_mov_b32 v92, %d\nds_write_b32 v92, v91\nL_p1_n0skip:" % (sW, sM0, sM0, NONL))
            SLOW.extend(["L_p1_nslow:", "s_mov_b32 s%d, 400000" % sSPIN, "L_p1_nspin:", "s_sleep 1",
                         "buffer_load_dword v91, off, s[%d:%d], 0 sc1" % (SDBG, SDBG+3), "s_waitcnt vmcnt(0)",
                         "v_readfirstlane_b32 s%d, v91" % sM0, "s_sub_u32 s%d, s%d, 1" % (sSPIN, sSPIN), "s_cmp_eq_u32 s%d, 0" % sSPIN, "s_cbranch_scc1 L_p1_nok",
                         "s_cmp_eq_u32 s%d, 0" % sM0, "s_cbranch_scc1 L_p1_nspin", "s_branch L_p1_nok"])
        return L
    def nonce_post(role):
        L = []
        L += IL("v_mov_b32 v92, %d\nds_read_b32 v91, v92" % NONL)
        L += IL("v_lshlrev_b32 v93, 2, v2\nv_add_u32 v93, %d, v93" % CSR)
        L += IL("ds_read2_b32 v[84:85], v93 offset0:0 offset1:32\nds_read2_b32 v[86:87], v93 offset0:64 offset1:96")
        L += IL("v_readfirstlane_b32 s%d, v91" % sNON)
        L += IL("v_mov_b32 v73, v91\nv_mov_b32 v75, v91\nv_mov_b32 v77, v91\nv_mov_b32 v79, v91")
        L += IL("s_lshl_b32 s%d, s3, 11\ns_lshl_b32 s%d, s4, 7\ns_add_u32 s%d, s%d, s%d\ns_lshl_b32 s%d, s%d, 5\ns_add_u32 s%d, s%d, s%d" % (sM0, sM1, sM0, sM0, sM1, sM1, sW, sM0, sM0, sM1))
        L.append(IL("s_mov_b32 exec_lo, 0\ns_mov_b32 exec_hi, 0x80000000") +
                 [I("buffer_store_dwordx4 v[72:75], off, s[%d:%d], s%d sc1" % (SWS, SWS+3, sM0), 'pub'), I("buffer_store_dwordx4 v[76:79], off, s[%d:%d], s%d offset:16 sc1" % (SWS, SWS+3, sM0), 'pub')] +
                 IL("s_mov_b64 exec, -1"))
        L += IL("v_add_f32 v84, v84, v85\nv_add_f32 v86, v86, v87\nv_add_f32 v84, v84, v86\nv_mov_b32 v85, v91")
        L += IL("s_lshl_b32 s%d, s4, 3\ns_lshr_b32 s%d, s3, 1\ns_add_u32 s%d, s%d, s%d\ns_lshl_b32 s%d, s%d, 9" % (sM0, sM1, sM0, sM0, sM1, sM0, sM0))
        L += IL("s_and_b32 s%d, s3, 1\ns_lshl_b32 s%d, s%d, 3\ns_add_u32 s%d, s%d, s%d\ns_add_u32 s%d, s%d, %d" % (sM1, sM1, sM1, sM0, sM0, sM1, sM0, sM0, WS_CS))
        L += IL("v_lshlrev_b32 v93, 4, v2")
        L.append(IL("s_cmp_eq_u32 s%d, 0\ns_cselect_b32 exec_lo, -1, 0\ns_mov_b32 exec_hi, 0" % sW) +
                 [I("buffer_store_dwordx2 v[84:85], v93, s[%d:%d], s%d offen sc1" % (SWS, SWS+3, sM0), 'pub')] + IL("s_mov_b64 exec, -1"))
        if role == 0:
            L += IL("v_mov_b32 v84, 0\nv_mov_b32 v85, v91\nv_mov_b32 v86, 0\nv_mov_b32 v87, v91")
            L += IL("s_lshl_b32 s%d, s2, 9\ns_add_u32 s%d, s%d, %d" % (sM0, sM0, sM0, WS_ZR))
            L.append(I("buffer_store_dwordx4 v[84:87], v93, s[%d:%d], s%d offen sc1" % (SWS, SWS+3, sM0), 'zr'))
        return L

    LNQ = ACCB
    sLA, sLB = sUOFF1, None
    def ln_addr(cg):
        B = []
        B += IL("s_lshl_b32 s%d, s3, 11\ns_lshl_b32 s%d, s%d, 10\ns_add_u32 s%d, s%d, s%d" % (SC0, SC0+1, sRGP, SC0, SC0, SC0+1))
        B += IL("v_lshlrev_b32 v64, 4, v4")
        B += IL("s_lshl_b32 s%d, s4, 12\ns_add_u32 s%d, s%d, %d" % (SC0+1, SC0+1, SC0+1, WS_CS + cg*1024))
        B += IL("v_lshlrev_b32 v65, 4, v2")
        return B
    def ln_issue(cg, tag='ln'):
        B = []
        B.append(I("buffer_load_dwordx4 v[%d:%d], v64, s[%d:%d], s%d offen sc1" % (LNQ+16, LNQ+19, SWS, SWS+3, SC0), tag))
        B.append(I("buffer_load_dwordx4 v[%d:%d], v64, s[%d:%d], s%d offen offset:512 sc1" % (LNQ+20, LNQ+23, SWS, SWS+3, SC0), tag))
        for k in range(2):
            for acc in range(2):
                q = LNQ + 8*k + 4*acc
                B.append(I("buffer_load_dwordx4 v[%d:%d], v65, s[%d:%d], s%d offen offset:%d sc1" % (q, q+3, SWS, SWS+3, SC0+1, k*2048 + acc*512), tag))
        return B
    def ln_check(cg):
        L = []
        lab = "L_p1_ln%d" % cg
        seq = ["v_mov_b32 v66, 0"]
        for q in range(LNQ, LNQ+24, 4):
            seq.append("v_bitop3_b32 v66, v66, v%d, s%d bitop3:0xf6" % (q+1, sNON))
            seq.append("v_bitop3_b32 v66, v66, v%d, s%d bitop3:0xf6" % (q+3, sNON))
        seq.append("v_cmp_ne_u32 vcc, 0, v66")
        L.append(Wait(vm_tag='ln'))
        for x in seq: L.append(I(x))
        L += IL("s_cbranch_vccnz %s_slow\n%s_ok:" % (lab, lab))
        S = ["%s_slow:" % lab, "s_mov_b32 s%d, 400000" % sSPIN, "%s_spin:" % lab, "s_sleep 1"]
        S += [x.text for x in ln_issue(cg)]
        S += ["s_waitcnt vmcnt(0)"] + seq + ["s_nop 4", "s_sub_u32 s%d, s%d, 1" % (sSPIN, sSPIN), "s_cmp_eq_u32 s%d, 0" % sSPIN, "s_cbranch_scc1 %s_ok" % lab,
              "s_cbranch_vccnz %s_spin" % lab, "s_branch %s_ok" % lab]
        SLOW.extend(S)
        return L
    def ln_build(cg, WA2):
        C = []
        for r in range(2):
            mean, inv = LNQ+16+4*r, LNQ+18+4*r
            C += IL("v_mul_f32 v70, v%d, v%d\nv_mul_f32 v%d, 0x%x, v%d\nv_mul_f32 v71, v70, v%d\nv_rcp_f32 v%d, v70\nv_mul_f32 v%d, 0x%x, v71" % (inv, inv, vK0[r], f2u(GC0), inv, inv, vS2[r], vK1[r], f2u(GC1)))
            C += IL("v_xor_b32 v70, 0x80000000, v%d\nv_cndmask_b32 v70, v70, 0, s[%d:%d]\nv_lshrrev_b32 v%d, 16, v70\nv_and_or_b32 v%d, v70, s%d, v%d" % (mean, sHH, sHH+1, XAUG[r]+1, XAUG[r], sHIM, XAUG[r]+1))
            if cg == 0:
                C += IL("s_lshl_b32 s%d, s%d, 8\nv_lshlrev_b32 v70, 2, v4\nv_add_u32 v70, s%d, v70\nv_add_u32 v70, %d, v70\nds_write_b32 v70, v%d" % (sT1, sRGP, sT1, INVL + 128*r, inv))
        for k in range(2):
            for acc in range(2):
                q = LNQ + 8*k + 4*acc
                d0, d1 = (WAUG[acc], WAUG[acc]+1) if k == 0 else (WA2[2*acc], WA2[2*acc+1])
                C += IL("v_add_f32 v%d, v%d, v%d\nv_and_b32 v%d, s%d, v%d\nv_sub_f32 v%d, v%d, v%d\nv_and_b32 v%d, s%d, v%d\nv_sub_f32 v%d, v%d, v%d" % (q, q, q+2, q+1, sHIM, q, q+2, q, q+1, q+3, sHIM, q+2, q+2, q+2, q+3))
                C += IL("v_lshrrev_b32 v%d, 16, v%d\nv_or_b32 v%d, v%d, v%d\nv_lshrrev_b32 v%d, 16, v%d" % (q+1, q+1, d0, q+1, q+3, d1, q+2))
        return C

    def role_main(cg, dens, go_steps, pre_bar, extra, WA2):
        M = []
        dq = []
        M.append(Wait(vm_tag=('C', 0)))
        M.append(I("s_barrier"))
        M += ST(0)
        reads(M, cg, 0); reads(M, cg, 1)
        dq += dma_x(2, ('C', 2)) + dma_w(6, ('C', 2)) + dma_x(3, ('C', 3)) + dma_w(7, ('C', 3))
        order = [(0, 0), (1, 0), (0, 1), (1, 1)]
        pace = [1, 0]
        for g in range(64):
            p, ks, t, s = g // 32, g % 32, g // 4, g % 4
            b = WF + 8*(g & 3)
            bar = (s == 2 and t < 15)
            if not bar and g + 2 < 64: reads(M, cg, g+2)
            for n, (r, acc) in enumerate(order):
                x = "a[%d:%d]" % (XF(r, ks), XF(r, ks)+3); w = "v[%d:%d]" % (b+4*acc, b+4*acc+3)
                if bar and n == 0: M.append(Wait(lgkm_all=True))
                M.append(mfma(cg, p, x, w, r, acc, ks == 0))
                if bar and n == 0:
                    if (t+1) in go_steps: M.append(('GO',))
                    M += flat(pre_bar.get(t+1, []))
                    need = ('C', t+1)
                    while any(getattr(x_, 'tag', None) == need for gq in dq for x_ in gq):
                        M += dq.pop(0)
                    M.append(Wait(lgkm_all=True))
                    M.append(Wait(vm_tag=need))
                    M.append(I("s_barrier"))
                    if t+1 in (4, 8, 12): M += ST((t+1)//4)
                    if t < 4:
                        dq += dma_x(t, ('C', t+4)) + dma_w(4+t, ('C', t+4))
                    if (t+1) in w2sched:
                        for q, tq in enumerate(w2sched):
                            if tq == t+1: dq += dma_w2(w2slot(q), ('C', 8+q))
                    reads(M, cg, g+2)
                    M += flat(extra.get(t+1, []))
                    pace[0] = max(1, 15 // max(1, len(dq))); pace[1] = 0
                if dq and pace[1] % pace[0] == 0: M += dq.pop(0)
                pace[1] += 1
                M.append(('SLOT', dens(t)))
            if ks == 31:
                if p == 1:
                    for acc in range(2):
                        M += IL("v_mov_b32 v%d, v%d\nv_mov_b32 v%d, v%d" % (WAUG[acc], WA2[2*acc], WAUG[acc]+1, WA2[2*acc+1]))
                M.append(('GO',) if ('aug%d' % p) in go_steps else ('SLOT', 0))
                for n, (r, acc) in enumerate(order):
                    x = "v[%d:%d]" % (XAUG[r], XAUG[r]+3); w = "v[%d:%d]" % (WAUG[acc], WAUG[acc]+3)
                    M.append(mfma(cg, p, x, w, r, acc, False))
        assert not dq
        return M
    for q, tq in enumerate(w2sched):
        assert tq >= 5 + q//2, (q, tq)
        assert tq <= 8 + q - 1, (q, tq)

    R0 = []
    R0 += IL("v_lshlrev_b32 v88, 16, v88\nv_lshlrev_b32 v89, 16, v89\nv_lshlrev_b32 v90, 16, v90")
    R0 += IL("v_mul_f32 v92, 0x%x, v90\nv_exp_f32 v92, v92" % f2u(LOG2E))
    bf16r(R0, 92, 93)
    R0 += IL("v_mul_f32 v93, v92, v88\nv_mul_f32 v94, v92, v89")
    R0 += IL("v_mul_f32 v93, 0x%x, v93\nv_exp_f32 v93, v93" % f2u(LOG2E))
    R0 += IL("v_mul_f32 v94, 0.15915494, v94\nv_fract_f32 v94, v94\nv_cos_f32 v95, v94\nv_sin_f32 v94, v94")
    R0 += IL("v_mul_f32 v%d, v93, v95\nv_mul_f32 v%d, v93, v94" % (vLr, vLi))
    R0 += IL("v_add_f32 v92, -1.0, v%d" % vLr)
    R0 += IL("v_mul_f32 v93, v88, v88\nv_fmac_f32 v93, v89, v89\nv_rcp_f32 v93, v93\nv_add_f32 v93, v93, v93")
    R0 += IL("v_mul_f32 v94, v92, v88\nv_fmac_f32 v94, v%d, v89\nv_mul_f32 v%d, v94, v93" % (vLi, vcr))
    R0 += IL("v_mul_f32 v94, v%d, v88\nv_fma_f32 v94, -v92, v89, v94\nv_mul_f32 v%d, v94, v93" % (vLi, vci))
    R0 += IL("v_mov_b32 v%d, v%d\nv_mov_b32 v%d, v%d" % (vL16r, vLr, vL16i, vLi))
    for _ in range(4): csq(R0, vL16r, vL16i, 92)
    R0 += IL("v_mov_b32 v88, v%d\nv_mov_b32 v89, v%d" % (vL16r, vL16i)); csq(R0, 88, 89, 92)
    R0 += IL("v_mov_b32 v94, v88\nv_mov_b32 v95, v89"); csq(R0, 94, 95, 92)
    R0 += IL("v_mov_b32 v%d, v94\nv_mov_b32 v%d, v95" % (vL128r, vL128i)); csq(R0, vL128r, vL128i, 92)
    R0.append(IL("s_cmp_eq_u32 s%d, 1\ns_cselect_b32 s%d, 1.0, 0\ns_cselect_b32 s%d, -1, 0\ns_cselect_b32 s%d, 0, 1.0" % (sRGP, sRGPF, sAGM, sT1)))
    R0 += IL("s_mov_b32 s%d, 0" % (sAGM+1))
    R0 += IL("v_mul_f32 v94, s%d, v94\nv_mul_f32 v95, s%d, v95\nv_add_f32 v94, s%d, v94" % (sRGPF, sRGPF, sT1))
    cmul_into(R0, 92, 93, 94, 95, vL16r, vL16i)
    R0 += IL("v_cndmask_b32 v%d, v94, v92, s[%d:%d]\nv_cndmask_b32 v%d, v95, v93, s[%d:%d]" % (vF[0][0], sHH, sHH+1, vF[0][1], sHH, sHH+1))
    cmul_into(R0, vF[1][0], vF[1][1], vF[0][0], vF[0][1], 88, 89)
    WA2_0 = [0, 16, 18, 5]
    F0 = []
    F0 += setup2()
    F0 += phase0_stats()
    F0.append('STOP')
    F0 += phase0_colsum_write()
    F0 += R0
    F0.append('STOP')
    F0 += nonce_post(0)
    F0 += ln_addr(0)
    F0.append('STOP')
    F0 += ln_issue(0)
    F0.append('STOP')
    F0 += ln_build(0, WA2_0)
    F0 += IL("v_sub_f32 v%d, 0, v%d\nv_sub_f32 v%d, 0, v%d\nv_sub_f32 v%d, 0, v%d" % (vnLi, vLi, vnL16i, vL16i, vnci, vci))
    F0.append('STOP')
    T = [7, 8, 19, 20, 21]
    Ublk = [U0, acca(0, 0)]
    F0 += IL("s_lshl_b32 s%d, s%d, 8\nv_lshlrev_b32 v%d, 6, v3\nv_add_u32 v%d, s%d, v%d\nv_add_u32 v%d, %d, v%d" % (sT0, sRGP, T[0], T[0], sT0, T[0], T[0], INVL, T[0]))
    SO = [(22, 23), (24, 25)]
    for r in range(2):
        ar0, ai0 = acca(r, 0), acca(r, 1)
        D = Ublk[r]
        for q4 in range(4):
            qd = WAUG[q4 & 1]
            if r == 0 and q4 == 0: F0.append(I("ds_read_b128 v[%d:%d], v%d offset:%d" % (qd, qd+3, T[0], 0)))
            nq = r*4 + q4 + 1
            if nq < 8: F0.append(I("ds_read_b128 v[%d:%d], v%d offset:%d" % (WAUG[nq & 1], WAUG[nq & 1]+3, T[0], nq*16 if nq < 4 else 128 + (nq-4)*16)))
            for jj in range(4):
                q = 4*q4 + jj
                ar, ai = ar0+q, ai0+q; d0, d1 = D+2*q, D+2*q+1
                F0 += IL("v_mul_f32 v%d, v%d, v%d\nv_mul_f32 v%d, v%d, v%d\nv_mul_f32 v%d, v%d, v%d\nv_mul_f32 v%d, v%d, v%d\nv_fmac_f32 v%d, v%d, v%d\nv_fmac_f32 v%d, v%d, v%d" % (ar, qd+jj, ar, ai, qd+jj, ai, d0, vcr, ar, d1, vcr, ai, d0, vnci, ai, d1, vci, ar))
                if q == 0: pr, pi = d0, d1
                else:
                    nr, ni = ((T[1], T[2]), (T[3], T[4]))[q & 1]
                    if q == 15: nr, ni = SO[r]
                    F0 += IL("v_fma_f32 v%d, v%d, v%d, v%d\nv_fma_f32 v%d, v%d, v%d, v%d\nv_fmac_f32 v%d, v%d, v%d\nv_fmac_f32 v%d, v%d, v%d" % (nr, vLr, pr, d0, ni, vLr, pi, d1, nr, vnLi, pi, ni, vLi, pr))
                    pr, pi = nr, ni
        F0 += IL("s_lshl_b32 s%d, s%d, 10\nv_lshlrev_b32 v%d, 3, v2\nv_lshl_add_u32 v%d, v3, 8, v%d\nv_add_u32 v%d, s%d, v%d\nv_add_u32 v%d, %d, v%d\nds_write_b64 v%d, v[%d:%d]" % (sT0, sRGP, T[1], T[1], T[1], T[1], sT0, T[1], T[1], SEG + 512*r, T[1], T[1], SO[r][0], SO[r][1]))
    F0.append('STOP')
    X = acca(1, 0)
    vPP = [(X+24, X+25), (X+26, X+27)]
    F0 += IL("v_lshlrev_b32 v%d, 3, v2\nv_add_u32 v%d, %d, v%d" % (T[0], T[0], SEG, T[0]))
    F0 += IL("ds_read2_b64 v[%d:%d], v%d offset0:0 offset1:32\nds_read2_b64 v[%d:%d], v%d offset0:64 offset1:96" % (X, X+3, T[0], X+4, X+7, T[0]))
    F0 += IL("s_lshl_b32 s%d, s%d, 10\nv_add_u32 v%d, s%d, v%d" % (sT0, sRGP, T[0], sT0, T[0]))
    F0 += IL("ds_read2_b64 v[%d:%d], v%d offset0:0 offset1:32\nds_read2_b64 v[%d:%d], v%d offset0:64 offset1:96" % (X+8, X+11, T[0], X+12, X+15, T[0]))
    cacc(F0, X+2, X+3, vL16r, vL16i, vnL16i, X, X+1)
    cacc(F0, X+4, X+5, vL16r, vL16i, vnL16i, X+2, X+3)
    cacc(F0, X+6, X+7, vL16r, vL16i, vnL16i, X+4, X+5)
    F0 += IL("v_mul_f32 v%d, s%d, v%d\nv_mul_f32 v%d, s%d, v%d" % (X+6, sRGPF, X+6, X+7, sRGPF, X+7))
    cacc(F0, X+8, X+9, vL16r, vL16i, vnL16i, X+6, X+7)
    cacc(F0, X+10, X+11, vL16r, vL16i, vnL16i, X+8, X+9)
    cacc(F0, X+12, X+13, vL16r, vL16i, vnL16i, X+10, X+11)
    cacc(F0, X+14, X+15, vL16r, vL16i, vnL16i, X+12, X+13)
    F0 += IL("v_mov_b32 v%d, v%d\nv_mov_b32 v%d, s%d\nv_mov_b32 v%d, v%d\nv_mov_b32 v%d, s%d" % (X+16, X+14, X+17, sNON, X+18, X+15, X+19, sNON))
    F0 += IL("s_lshl_b32 s%d, s4, 13\ns_lshl_b32 s%d, s3, 9\ns_add_u32 s%d, s%d, s%d\ns_add_u32 s%d, s%d, %d\nv_lshlrev_b32 v%d, 4, v2" % (sT0, sT1, sT0, sT0, sT1, sT0, sT0, WS_AGR, T[0]))
    F0.append([I("s_mov_b64 exec, s[%d:%d]" % (sAGM, sAGM+1)),
               I("buffer_store_dwordx4 v[%d:%d], v%d, s[%d:%d], s%d offen sc1" % (X+16, X+19, T[0], SWS, SWS+3, sT0), 'agg'),
               I("s_mov_b64 exec, -1")])
    for c in range(2):
        F0.append(I("v_cndmask_b32 v%d, v%d, v%d, s[%d:%d]" % (vPP[0][c], X+6+c, X+8+c, sHH, sHH+1)))
        F0.append(I("v_cndmask_b32 v%d, v%d, v%d, s[%d:%d]" % (vPP[1][c], X+10+c, X+12+c, sHH, sHH+1)))
    GOB = 12
    main0 = role_main(0, lambda t: dens0[0] if t < 8 else dens0[1], {2, 3, 5, 8, 'aug0', GOB},
                      {2: phase0_colsum(0), 3: nonce_pre(0), 8: ln_check(0)}, {}, WA2_0)
    body0, left0 = interleave2(main0, F0)
    assert not left0, len(left0)
    PD = dict(x=P_X, cre=P_CRE, cim=P_CIM, dsk=P_DSK, wd=P_WD, out=P_OUT, ws=P_WS)
    def fpre():
        if not fused: return []
        if fused in (2, 3, 4, 5, 6): return [Wait(lgkm_all=True), I("s_barrier")]
        return [Wait(lgkm_all=True), I("s_barrier")] + p2c.p2_pre("s4", "s5", PD, SW1, sWOFF, sWSTR, 5, 6, (24, 25, 26))
    def merge(tail, side, start=0):
        if not side: return tail
        out = []; n = len(tail) - start; k = 0
        step = max(1.0, n / float(len(side)))
        nxt = start
        for idx, x in enumerate(tail):
            out.append(x)
            while k < len(side) and idx >= nxt and x.cls not in ('label',) and not (x.op.startswith('s_cmp') or x.op.startswith('s_cbranch') or 'exec' in x.wr or x.op == 's_add_u32' or x.op.startswith('v_cmp')):
                out.extend(flat([side[k]])); k += 1; nxt += step
                if step >= 1: break
        while k < len(side): out.extend(flat([side[k]])); k += 1
        return out
    def w2side(role=0):
        if fused == 5:
            return p2e.setup(role, "s4", "s6", PD), p2e.first_dma(role), p2e.setup2(role, "s4", "s6", PD), None, None, None
        if fused == 4:
            d1, r1, d2, r2 = p2d.rounds4()
            return p2d.w2_setup4("s4", "s5", PD), d1, p2d.w2_setup2("s4", "s5", PD), r1, d2, r2
        d1, r1, d2, r2 = p2d.rounds()
        return p2d.w2_setup("s4", "s5", PD), d1, p2d.w2_setup2("s4", "s5", PD), r1, d2, r2
    TL = Stream()
    TL.extend(ST(4))
    TL.extend(fpre())
    AGR = [WF + 4*k for k in range(8)] + [X + 4*k for k in range(6)] + [20]
    TL("v_lshlrev_b32 v7, 4, v2")
    TL("s_lshl_b32 s%d, s4, 13\ns_add_u32 s%d, s%d, %d" % (sT0, sT0, sT0, WS_AGR))
    TL("s_lshl_b32 s%d, s2, 9\ns_add_u32 s%d, s%d, %d" % (sT1, sT1, sT1, WS_ZR))
    TL("s_sub_u32 s%d, s3, 15\ns_lshl_b32 s%d, s%d, 9\ns_add_u32 s%d, s%d, s%d" % (sM0, sM0, sM0, sM0, sM0, sT0))
    def agg_loads():
        L = []
        for k in range(15):
            L.append("s_add_u32 s%d, s%d, %d" % (sM1, sM0, 512*k))
            L.append("s_cmp_ge_u32 s3, %d" % (15-k))
            L.append("s_cselect_b32 s%d, s%d, s%d" % (sM1, sM1, sT1))
            L.append("buffer_load_dwordx4 v[%d:%d], v7, s[%d:%d], s%d offen sc1" % (AGR[k], AGR[k]+3, SWS, SWS+3, sM1))
        return L
    def agg_chk():
        seq = ["v_mov_b32 v8, 0"]
        for k in range(15):
            seq.append("v_bitop3_b32 v8, v8, v%d, s%d bitop3:0xf6" % (AGR[k]+1, sNON))
            seq.append("v_bitop3_b32 v8, v8, v%d, s%d bitop3:0xf6" % (AGR[k]+3, sNON))
        seq.append("v_cmp_ne_u32 vcc, 0, v8")
        return seq
    for x in agg_loads(): TL(x)
    if fused in (2, 3, 4, 5, 6):
        su, d1, su2, r1, d2, r2 = w2side()
        TL.extend(flat(su))
        TL.extend(merge(tail_ffn(sUOFF2, SA0, SA1), d1 + su2))
    else:
        TL.extend(tail_ffn(sUOFF2, SA0, SA1))
    TL.extend(ST(5))
    markB = len(TL.ins)
    for x in agg_chk(): TL(x)
    TL("s_cbranch_vccnz L_p1_agslow\nL_p1_agok:")
    SLOW.extend(["L_p1_agslow:", "s_mov_b32 s%d, 400000" % sSPIN, "L_p1_agspin:", "s_sleep 1"] + agg_loads() + ["s_waitcnt vmcnt(0)"] + agg_chk() +
                ["s_nop 4", "s_sub_u32 s%d, s%d, 1" % (sSPIN, sSPIN), "s_cmp_eq_u32 s%d, 0" % sSPIN, "s_cbranch_scc1 L_p1_agok", "s_cbranch_vccnz L_p1_agspin", "s_branch L_p1_agok"])
    TL.extend(ST(6))
    def pkstep(S, d, l, p, s):
        S("v_pk_fma_f32 v[%d:%d], v[%d:%d], v[%d:%d], v[%d:%d] op_sel_hi:[0,1,1]" % (d, d+1, l, l+1, p, p+1, s, s+1))
        S("v_pk_fma_f32 v[%d:%d], v[%d:%d], v[%d:%d], v[%d:%d] op_sel:[1,1,0] op_sel_hi:[1,0,1] neg_lo:[1,0,0]" % (d, d+1, l, l+1, p, p+1, d, d+1))
    for k in range(15): TL("v_mov_b32 v%d, v%d" % (AGR[k]+1, AGR[k]+2))
    for k in range(1, 15): pkstep(TL, AGR[k], vL128r, AGR[k-1], AGR[k])
    H = AGR[14]
    for r in range(2): pkstep(TL, vPP[r][0], vF[r][0], H, vPP[r][0])
    FLF = "s_lshl_b32 s95, s3, 4\ns_add_u32 s95, s95, s4\ns_lshl_b32 s95, s95, 2\ns_add_u32 s95, s95, s5\ns_lshl_b32 s95, s95, 3\ns_add_u32 s95, s95, %d" % WS_FL
    FLS = "s_lshl_b32 s95, s3, 4\ns_add_u32 s95, s95, s4\ns_lshl_b32 s95, s95, 1\ns_add_u32 s95, s95, s%d\ns_lshl_b32 s95, s95, 3\ns_add_u32 s95, s95, %d" % (sRGP, WS_FL + 0x2000)
    if fused == 3:
        TL.add(Wait(vm_tag='a2')); TL.extend(flat(p2d.flag_store(SWS, sNON, FLF, 22)))
    prev = [vPP[0][0], vPP[1][0]]
    for q in range(16):
        for r in range(2):
            d = Ublk[r] + 2*q
            pkstep(TL, d, vLr, prev[r], d)
            prev[r] = d
    TL("s_lshl_b32 s%d, s%d, 13\ns_add_u32 s%d, s%d, %d" % (sT0, sRGP, sT0, sT0, CSL))
    TL("v_lshlrev_b32 v7, 6, v2\nv_lshl_add_u32 v7, v3, 5, v7\nv_add_u32 v7, s%d, v7" % sT0)
    TL("v_add_u32 v8, s%d, v%d" % (sT0, vT0))
    TL("v_lshlrev_b32 v19, 4, v2\nv_lshl_add_u32 v19, v3, 9, v19")
    TL("s_lshl_b32 s%d, s4, 12\ns_add_u32 s%d, s%d, %d" % (sT1, sT1, sT1, 86*1024))
    for r in range(2):
        Z = accb(r, 1); D = Ublk[r]
        for q2 in range(8):
            TL("v_cvt_pk_bf16_f32 v%d, v%d, v%d" % (Z+q2, D+4*q2, D+4*q2+2))
            TL("v_cvt_pk_bf16_f32 v%d, -v%d, -v%d" % (Z+8+q2, D+4*q2+1, D+4*q2+3))
        o = r*4096
        TL("ds_write_b128 v7, v[%d:%d] offset:%d\nds_write_b128 v7, v[%d:%d] offset:%d\nds_write_b128 v7, v[%d:%d] offset:%d\nds_write_b128 v7, v[%d:%d] offset:%d" % (Z, Z+3, o, Z+4, Z+7, o+16, Z+8, Z+11, o+2048, Z+12, Z+15, o+2064))
    for r in range(2):
        Z = WF + 16*r; o = r*4096
        for part in range(2):
            for s in range(2):
                q = Z + 4*(2*part+s); oo = o + part*2048 + s*1024
                TL("ds_read_b64_tr_b16 v[%d:%d], v8 offset:%d\nds_read_b64_tr_b16 v[%d:%d], v8 offset:%d" % (q, q+1, oo, q+2, q+3, oo+256))
        for part in range(2):
            for s in range(2):
                q = Z + 4*(2*part+s)
                TL("buffer_store_dwordx4 v[%d:%d], v19, s[%d:%d], s%d offen offset:%d%s" % (q, q+3, (SA0, SA1)[r], (SA0, SA1)[r]+3, sT1, (2*part+s)*1024, A2MOD), 'a2')
    if fused == 2:
        segB = TL.ins[markB:]
        ia = [k for k, x in enumerate(segB) if x.text == "L_p1_agok:"][0]
        pass
    if fused in (3, 4, 5):
        TL.add(Wait(vm_tag='a2')); TL.extend(flat(p2d.flag_store(SWS, sNON, FLS, 22)))
        TL("s_mov_b32 s98, s%d" % sNON)
    SL5 = []
    if fused == 5:
        if stamp == 3: TL("s_memrealtime s[26:27]\ns_memrealtime s[16:17]\ns_memrealtime s[30:31]")
        TL.extend(p2e.p2_role(0, "s3", "s4", "s6", "s5", PD, SWS, 98, SL5, a2ld=a2ld2, stamp=(stamp == 3)))
    TL("s_branch L_p1_fin")
    full0 = finalize(model_pre + [I("L_MARK_Q:")] + Q.ins + body0 + TL.ins)
    idx = [k for k, o in enumerate(full0) if o.text == "L_MARK_Q:"][0]
    role0 = full0[idx+1:]
    pro = finalize(P.ins)

    WA2_1 = [52, 53, 54, 55]
    F1 = []
    F1 += setup2()
    F1 += phase0_stats()
    F1.append('STOP')
    F1 += phase0_colsum_write()
    F1.append('STOP')
    F1 += nonce_post(1)
    F1 += ln_addr(1)
    F1.append('STOP')
    F1 += ln_issue(1)
    F1.append('STOP')
    F1 += ln_build(1, WA2_1)
    F1.append('STOP')
    tt = [19, 20, 21, 22]
    for r in range(2):
        F1 += ffn_epilogue(r, acca(r, 0), acca(r, 1), sUOFF1, tt, (SA0, SA1)[r])
    if fused in (2, 3, 4, 5, 6):
        F1 += IL("s_and_b32 s%d, s3, 7\ns_lshl_b32 s%d, s%d, 2\ns_and_b32 s%d, s4, 3\ns_add_u32 s%d, s%d, s%d" % (sT0, sT0, sT0, sT1, sT0, sT0, sT1))
        F1 += IL("s_mov_b32 s%d, s%d\ns_mov_b32 s%d, s%d\ns_mov_b32 s%d, %d\ns_mov_b32 s%d, 0x20000" % (SC0, P_WD, SC0+1, P_WD+1, SC0+2, 1376*1024, SC0+3))
        F1 += IL("v_lshrrev_b32 v56, 2, v1\nv_lshlrev_b32 v56, 10, v56\nv_and_b32 v57, 3, v1\nv_lshl_add_u32 v56, v57, 7, v56")
        F1 += IL("s_mul_i32 s%d, s%d, %d\ns_bfe_u32 s%d, s4, 0x10002\ns_lshl_b32 s%d, s%d, 9\ns_add_u32 s%d, s%d, s%d\ns_lshl_b32 s%d, s%d, 15\ns_add_u32 s%d, s%d, s%d" % (sT1, sT0, 43*1024, sM0, sM0, sM0, sT1, sT1, sM0, sM0, sRGP, sT1, sT1, sM0))
        F1.append(I("buffer_load_dword v58, v56, s[%d:%d], s%d offen" % (SC0, SC0+3, sT1), 'touch'))
        F1 += IL("s_add_u32 s%d, s%d, 16384" % (sT1, sT1))
        F1.append(I("buffer_load_dword v59, v56, s[%d:%d], s%d offen" % (SC0, SC0+3, sT1), 'touch'))
        F1.append(IL("s_cmp_eq_u32 s%d, 0\ns_cselect_b32 s%d, s%d, s%d\ns_cselect_b32 s%d, s%d, s%d" % (sRGP, SC0, P_CRE, P_CIM, SC0+1, P_CRE+1, P_CIM+1)))
        F1 += IL("s_mov_b32 s%d, %d" % (SC0+2, 512*1024))
        F1 += IL("v_lshlrev_b32 v56, 7, v1")
        F1 += IL("s_bfe_u32 s%d, s4, 0x10002\ns_lshl_b32 s%d, s%d, 18\ns_lshl_b32 s%d, s%d, 13\ns_add_u32 s%d, s%d, s%d" % (sM0, sM0, sM0, sT1, sT0, sT1, sT1, sM0))
        F1.append(I("buffer_load_dword v60, v56, s[%d:%d], s%d offen" % (SC0, SC0+3, sT1), 'touch'))
    main1 = role_main(1, lambda t: dens1[0] if t < 8 else dens1[1], {2, 3, 5, 8, 'aug0'}, {2: phase0_colsum(1), 8: ln_check(1)}, {}, WA2_1)
    body1, left1 = interleave2(main1, F1)
    assert not left1, len(left1)
    T1 = Stream()
    T1.extend(ST(4))
    T1.extend(fpre())
    if fused in (2, 3, 4, 5, 6):
        su, d1, su2, r1, d2, r2 = w2side(1)
        T1.extend(flat(su))
        T1.extend(merge(tail_ffn(sUOFF2, SA0, SA1), d1 + su2))
        pass
    else:
        T1.extend(tail_ffn(sUOFF2, SA0, SA1))
    FL1 = "s_lshl_b32 s95, s3, 4\ns_add_u32 s95, s95, s4\ns_lshl_b32 s95, s95, 1\ns_add_u32 s95, s95, s%d\ns_lshl_b32 s95, s95, 3\ns_add_u32 s95, s95, %d" % (sRGP, WS_FL)
    if fused in (3, 4, 5):
        T1.add(Wait(vm_tag='a2')); T1.extend(flat(p2d.flag_store(SWS, sNON, FLF if fused == 3 else FL1, 22)))
        T1("s_mov_b32 s98, s%d" % sNON)
    if fused == 5:
        if stamp == 3: T1("s_memrealtime s[26:27]\ns_memrealtime s[16:17]\ns_memrealtime s[30:31]")
        T1.extend(p2e.p2_role(1, "s3", "s4", "s6", "s5", PD, SWS, 98, SL5, a2ld=a2ld2, stamp=(stamp == 3)))
        SLOW.extend(SL5)
    T1.extend(ST(5)); T1.extend(ST(6))
    r1full = finalize(model_pre + Q.ins + [I("L_p1_role1:")] + body1 + T1.ins)
    idx = [k for k, o in enumerate(r1full) if o.text == "L_p1_role1:"][0]
    role1 = r1full[idx:]
    F = Stream()
    F("L_p1_fin:")
    if stamp == 1:
        F("s_waitcnt vmcnt(0)\ns_memtime s[22:23]\ns_memrealtime s[24:25]\ns_waitcnt lgkmcnt(0)")
        srd(F, 52, P_WS, 1 << 20, 0x2000000)
        F("v_mov_b32 v8, s0\nv_mov_b32 v9, s98")
        for k in range(8): F("v_mov_b32 v%d, s%d" % (10+k, 8+2*k))
        F("v_mov_b32 v18, s24\nv_mov_b32 v19, 0")
        F("s_lshl_b32 s26, s2, 3\ns_add_u32 s26, s26, s%d\ns_lshl_b32 s26, s26, 6\nv_mov_b32 v20, s26" % sW)
        F("v_cmp_eq_u32 vcc, 0, v1\ns_and_saveexec_b64 s[28:29], vcc")
        F("buffer_store_dwordx4 v[8:11], v20, s[52:55], 0 offen\nbuffer_store_dwordx4 v[12:15], v20, s[52:55], 0 offen offset:16\nbuffer_store_dwordx4 v[16:19], v20, s[52:55], 0 offen offset:32")
    fin = finalize(F.ins)
    ftxt = ""
    if fused == 5:
        ftxt += render(finalize(p2e.p2_final()))
    elif fused in (3, 4):
        if stamp == 3: ftxt += "s_memrealtime s[26:27]\ns_memrealtime s[16:17]\ns_memrealtime s[30:31]\n"
        SL2 = []
        body3 = (p2d.p2_main3 if fused == 3 else p2d.p2_main4)("s3", "s4", "s5", PD, SWS, 98, SL2, a2ld=a2ld2, stamp=(stamp == 3))
        ftxt += render(finalize(body3))
        SLOW.extend(SL2)
    elif fused:
        if stamp == 3: ftxt += "s_memrealtime s[26:27]\n"
        ftxt += "s_waitcnt vmcnt(0)\ns_barrier\n"
        if stamp == 3: ftxt += "s_memrealtime s[16:17]\n"
        ftxt += "s_mov_b32 s98, s%d\n" % sNON
        ftxt += "s_cmp_lg_u32 s5, 0\ns_cbranch_scc1 L_f_fskip\n"
        ftxt += "v_mov_b32 v36, s98\nv_mov_b32 v37, s98\ns_lshl_b32 s95, s3, 4\ns_add_u32 s95, s95, s4\ns_lshl_b32 s95, s95, 3\ns_add_u32 s95, s95, %d\ns_mov_b64 exec, 1\n" % WS_FL
        ftxt += "buffer_store_dwordx2 v[36:37], off, s[%d:%d], s95 sc1\ns_mov_b64 exec, -1\nL_f_fskip:\n" % (SWS, SWS+3)
        poll = "s_cmp_lg_u32 s5, 0\ns_cbranch_scc1 L_f_pskip\nv_lshlrev_b32 v46, 3, v1\ns_lshl_b32 s95, s3, 7\ns_add_u32 s95, s95, %d\ns_mov_b32 s94, 400000\ns_mov_b64 exec, 0xffff\n" % WS_FL
        poll += "L_f_poll:\nbuffer_load_dwordx2 v[48:49], v46, s[%d:%d], s95 offen sc1\ns_waitcnt vmcnt(0)\nv_xor_b32 v48, s98, v48\nv_xor_b32 v49, s98, v49\nv_or_b32 v48, v48, v49\nv_cmp_ne_u32 vcc, 0, v48\ns_nop 4\ns_cbranch_vccz L_f_pok\n" % (SWS, SWS+3)
        poll += "s_sleep 1\ns_sub_u32 s94, s94, 1\ns_cmp_lg_u32 s94, 0\ns_cbranch_scc1 L_f_poll\nL_f_pok:\ns_mov_b64 exec, -1\n" + ("buffer_inv sc1\ns_waitcnt vmcnt(0)\n" if acq else "") + "L_f_pskip:\ns_barrier\n"
        if stamp == 3: poll += "s_memrealtime s[22:23]\n"
        if fused == 6:
            d1, r1, d2, r2, d3 = p2d.rounds6()
            ftxt += render(finalize(flat(r1 + d2 + r2 + d3)))
            if stamp == 3: ftxt += "s_memrealtime s[30:31]\n"
            ftxt += p2d.p2_main6("s3", "s4", "s5", PD, poll, a2ld=a2ld2, stamp=(stamp == 3))
        elif fused == 2:
            d1, r1, d2, r2 = p2d.rounds()
            ftxt += render(finalize(flat(r1[1:] + d2 + r2 + [Wait(lgkm_all=True), I("s_barrier")])))
            if stamp == 3: ftxt += "s_memrealtime s[30:31]\n"
            ftxt += p2d.p2_main("s3", "s4", "s5", PD, poll, a2ld=a2ld2)
        else: ftxt += p2c.p2_phase("s3", "s4", "s5", PD, a2ld=("" if acq else " sc1"), poll=poll, lab="L_f", stamp=(stamp == 3), pre=dict(SWD=SW1, sWOF=sWOFF, sLB=sWSTR, vP0=5, vP1=6, done=True))
    if fused and stamp == 3:
        ftxt += "s_waitcnt vmcnt(0)\ns_memrealtime s[28:29]\ns_waitcnt lgkmcnt(0)\n"
        for k, r in enumerate((0, 10, 12, 14, 26, 16, 22, 30, 28)): ftxt += "v_mov_b32 v%d, s%d\n" % (64+k, r)
        ftxt += "s_lshl_b32 s94, s2, 2\ns_add_u32 s94, s94, s5\ns_lshl_b32 s94, s94, 6\ns_add_u32 s94, s94, 0x2000000\nv_mov_b32 v76, s94\n"
        ftxt += "global_store_dwordx4 v76, v[64:67], s[38:39]\nglobal_store_dwordx4 v76, v[68:71], s[38:39] offset:16\nglobal_store_dwordx4 v76, v[72:75], s[38:39] offset:32\n"
    ftxt += "L_p1_end:\ns_endpgm\n"
    slow = "\n".join(SLOW) + "\n"
    return kernel_text(name, render(pro) + render(role0) + render(role1) + render(fin) + ftxt + slow, 512, 102, accum=256)
```

```python
from common import *
WS_FL = 0x60000
def I(text, tag=None): return Ins(text, tag)
def IL(text, tag=None): return [Ins(l.strip(), tag) for l in text.strip().split("\n") if l.strip()]
ACC = 64; AB = 128; WB = 224
RED = 65536
vP0, vP1, vR0, vR1 = 5, 6, 9, 10
vC = [11, 12, 13, 14]; vD = [15, 16, 24, 25]
SWD, SC = 44, 48
sWOF, sLB, sCOF, sTa, sTb = 77, 78, 79, 76, 99
def AW(item, a):
    return 8*item + 4*a

def w2_setup(sJ, sW, P):
    L = []
    a, b, c = 26, 4, 7+0
    a, b = 26, 4
    L += IL("s_lshl_b32 s%d, %s, 15" % (sLB, sW))
    L += IL("v_lshrrev_b32 v%d, 3, v1\nv_bfe_u32 v%d, v1, 4, 1\nv_lshlrev_b32 v%d, 2, v%d\nv_and_b32 v%d, 7, v1\nv_xor_b32 v%d, v%d, v%d\nv_lshlrev_b32 v%d, 4, v%d\nv_lshl_add_u32 v%d, v%d, 10, v%d" % (a, b, b, b, vP1, b, b, vP1, b, b, vP0, a, b))
    L += IL("v_add_u32 v%d, %d, v%d" % (vP1, 8192 - 1024, vP0))
    L += IL("s_mov_b32 s%d, s%d\ns_mov_b32 s%d, s%d\ns_mov_b32 s%d, %d\ns_mov_b32 s%d, 0x20000" % (SWD, P['wd'], SWD+1, P['wd']+1, SWD+2, 1376*1024, SWD+3))
    L += IL("s_and_b32 s%d, %s, 7\ns_lshl_b32 s%d, s%d, 7\ns_lshl_b32 s%d, %s, 14\ns_add_u32 s%d, s%d, s%d" % (sTa, sJ, sWOF, sTa, sTb, sW, sWOF, sWOF, sTb))
    return L
def w2_setup2(sJ, sW, P):
    L = []
    a, b = 26, 4
    L += IL("v_bfe_u32 v%d, v1, 2, 2\nv_bfe_u32 v%d, v1, 5, 1\nv_lshl_add_u32 v%d, v%d, 2, v%d\nv_lshlrev_b32 v%d, 7, v%d" % (a, b, a, b, a, a, a))
    L += IL("v_bfe_u32 v%d, v1, 4, 1\nv_lshlrev_b32 v%d, 1, v%d\nv_bfe_u32 v%d, v1, 1, 1\nv_add_u32 v%d, v%d, v%d\nv_bfe_u32 v%d, v1, 3, 1\nv_lshlrev_b32 v%d, 2, v%d\nv_xor_b32 v%d, v%d, v%d" % (b, b, b, vR1, b, b, vR1, vR1, vR1, vR1, b, b, vR1))
    L += IL("v_lshl_add_u32 v%d, v%d, 4, v%d\nv_and_b32 v%d, 1, v1\nv_lshl_add_u32 v%d, v%d, 3, v%d\nv_add_u32 v%d, s%d, v%d\nv_xor_b32 v%d, 64, v%d" % (a, b, a, b, a, b, a, vR0, sLB, a, vR1, vR0))
    L.append(IL("s_bitcmp1_b32 %s, 0\ns_cselect_b32 s%d, s%d, s%d\ns_cselect_b32 s%d, s%d, s%d" % (sW, SC, P['cim'], P['cre'], SC+1, P['cim']+1, P['cre']+1)))
    L += IL("s_mov_b32 s%d, %d\ns_mov_b32 s%d, 0x20000" % (SC+2, 512*1024, SC+3))
    L += IL("v_and_b32 v%d, 7, v1\nv_lshrrev_b32 v%d, 4, v1\nv_xor_b32 v%d, v%d, v%d\nv_lshlrev_b32 v%d, 4, v%d\nv_lshrrev_b32 v%d, 3, v1\nv_lshl_add_u32 v%d, v%d, 10, v%d" % (b, a, b, b, a, b, b, a, vC[0], a, b))
    L += IL("v_xor_b32 v%d, 64, v%d\nv_add_u32 v%d, 14336, v%d\nv_add_u32 v%d, %d, v%d\nv_add_u32 v%d, 7168, v%d" % (vC[1], vC[0], vC[2], vC[0], vC[3], 14336+7168, vC[1], vC[1], vC[1]))
    L += IL("s_and_b32 s%d, %s, 7\ns_lshl_b32 s%d, s%d, 16\ns_lshr_b32 s%d, %s, 1\ns_lshl_b32 s%d, s%d, 7\ns_add_u32 s%d, s%d, s%d" % (sTa, sJ, sCOF, sTa, sTb, sW, sTb, sTb, sCOF, sCOF, sTb))
    L += IL("v_and_b32 v%d, 31, v1\nv_lshrrev_b32 v%d, 5, v1\nv_bfe_u32 v%d, v%d, 1, 3\nv_lshlrev_b32 v%d, 7, v%d" % (a, b, vD[3], a, a, a))
    for k in range(4):
        t = vD[k] if k < 3 else b
        if k < 3:
            L += IL("v_or_b32 v%d, %d, v%d\nv_xor_b32 v%d, v%d, v%d\nv_lshl_add_u32 v%d, v%d, 4, v%d" % (vD[k], 2*k, b, vD[k], vD[k], vD[3], vD[k], vD[k], a))
        else:
            L += IL("v_or_b32 v%d, 6, v%d\nv_xor_b32 v%d, v%d, v%d\nv_lshl_add_u32 v%d, v%d, 4, v%d" % (b, b, vD[3], b, vD[3], vD[3], vD[3], a))
    for k in range(4): L += IL("v_add_u32 v%d, s%d, v%d" % (vD[k], sLB, vD[k]))
    return L
def dma_ffn(slot_off, tag):
    g = IL("s_add_u32 m0, s%d, %d" % (sLB, slot_off)) + [I("buffer_load_dwordx4 v%d, s[%d:%d], s%d offen lds" % (vP0, SWD, SWD+3, sWOF), tag)]
    g2 = [I("buffer_load_dwordx4 v%d, s[%d:%d], s%d offen offset:1024 lds" % (vP1, SWD, SWD+3, sWOF), tag)] + IL("s_add_u32 s%d, s%d, 65536" % (sWOF, sWOF))
    return [g, g2]
def dma_ssm(off, tag, base=None):
    G = []
    base = sLB if base is None else base
    for h in range(2):
        pre = IL("s_add_u32 m0, s%d, %d" % (base, off + h*4096))
        if h == 1: pre += IL("s_add_u32 s%d, s%d, 32768" % (sTb, sCOF))
        so = sCOF if h == 0 else sTb
        for i in range(4):
            ins = I("buffer_load_dwordx4 v%d, s[%d:%d], s%d offen offset:%d lds" % (vC[i], SC, SC+3, so, 1024*i), tag)
            G.append((pre if i == 0 else []) + [ins] + (IL("s_add_u32 s%d, s%d, 256" % (sCOF, sCOF)) if (h == 1 and i == 3) else []))
    return G
def rd_ffn(item, off):
    L = []
    for a, v in ((0, vR0), (1, vR1)):
        r = AW(item, a)
        L.append(I("ds_read_b64_tr_b16 a[%d:%d], v%d offset:%d" % (r, r+1, v, off)))
        L.append(I("ds_read_b64_tr_b16 a[%d:%d], v%d offset:%d" % (r+2, r+3, v, off+1024)))
    return L
def rd_ssm(g, off):
    L = []
    for k in range(4):
        for a in range(2):
            r = AW(22 + 4*g + k, a)
            L.append(I("ds_read_b128 a[%d:%d], v%d offset:%d" % (r, r+3, vD[k], off + a*4096)))
    return L
def rounds():
    d1 = []
    for i in range(16): d1 += dma_ffn(i*2048, 'w1')
    r1 = [Wait(vm_tag='w1')]
    for i in range(16): r1 += rd_ffn(i, i*2048)
    d2 = [Wait(lgkm_all=True)]
    for i in range(16, 22): d2 += dma_ffn((i-16)*2048, 'w2')
    d2 += dma_ssm(12288, 'w2') + dma_ssm(20480, 'w2')
    r2 = [Wait(vm_tag='w2')]
    for i in range(16, 22): r2 += rd_ffn(i, (i-16)*2048)
    r2 += rd_ssm(0, 12288) + rd_ssm(1, 20480)
    return d1, r1, d2, r2

def p2_main(sM, sJ, sW, P, poll, a2ld=" sc1", stampfn=None, D=12):
    SA0, SA1, SXo, SDS, SO, SST = 52, 56, 64, 68, 72, 40
    sMT, sNT, sAOF, sT0, sT1, sL3 = 88, 89, 90, 92, 93, 91
    S = Stream()
    S("s_lshl_b32 s%d, %s, 14" % (sL3, sW))
    S.extend(flat(dma_ssm(0, 'w3', base=sL3) + dma_ssm(8192, 'w3', base=sL3)))
    for k in range(4): S("v_subrev_u32 v%d, s%d, v%d" % (vD[k], sL3, vD[k]))
    S("s_lshr_b32 s%d, %s, 3\ns_lshl_b32 s%d, %s, 1\ns_add_u32 s%d, s%d, s%d\ns_and_b32 s%d, %s, 7" % (sT0, sJ, sMT, sM, sMT, sMT, sT0, sNT, sJ))
    S("s_mul_i32 s%d, s%d, %d" % (sT0, sMT, 2*RG_BYTES))
    srd(S, SA0, P['ws'], 86*1024, "s%d" % sT0)
    S("s_add_u32 s%d, s%d, %d" % (sT0, sT0, RG_BYTES))
    srd(S, SA1, P['ws'], 86*1024, "s%d" % sT0)
    S("v_lshlrev_b32 v8, 4, v1\ns_lshl_b32 s%d, %s, 10" % (sAOF, sW))
    S("v_lshrrev_b32 v11, 4, v1\ns_lshl_b32 s%d, %s, 4\nv_add_u32 v11, s%d, v11" % (sT0, sW, sT0))
    S("v_and_b32 v12, 15, v1\ns_lshl_b32 s%d, s%d, 6\nv_add_u32 v13, s%d, v11" % (sT0, sMT, sT0))
    S("s_lshl_b32 s%d, s%d, 7\nv_lshlrev_b32 v14, 10, v13\nv_lshl_add_u32 v14, v12, 3, v14\nv_add_u32 v14, s%d, v14" % (sT0, sNT, sT0))
    S("v_lshlrev_b32 v17, 4, v13\nv_lshlrev_b32 v26, 3, v12\nv_add_u32 v26, s%d, v26" % sT0)
    srd(S, SXo, P['x'], 2048*1024); srd(S, SDS, P['dsk'], 1024); srd(S, SO, P['out'], 2048*2048); srd(S, SST, P['ws'], 2048*16, WS_ST)
    XR, SR, DR = 28, 36, 44
    S("s_mov_b32 s84, 0\ns_movk_i32 s85, 4096\ns_movk_i32 s86, 8192\ns_movk_i32 s87, 12288")
    for i in range(4): S("buffer_load_dwordx2 v[%d:%d], v14, s[%d:%d], s%d offen" % (XR+2*i, XR+2*i+1, SXo, SXo+3, 84+i))
    S("buffer_load_dwordx2 v[%d:%d], v26, s[%d:%d], 0 offen" % (DR, DR+1, SDS, SDS+3))
    for i in range(4):
        S("buffer_load_dword v%d, v17, s[%d:%d], 0 offen offset:%d sc1\nbuffer_load_dword v%d, v17, s[%d:%d], 0 offen offset:%d sc1" % (SR+2*i, SST, SST+3, 64*i, SR+2*i+1, SST, SST+3, 64*i+8))
    txt = render(finalize(S.ins))
    txt += poll
    M = Stream()
    items = []
    for i in range(22): items.append(('f', i))
    for g in range(4):
        for k in range(4): items.append(('s', g, k))
    def a_loads(n):
        it = items[n]; r = AB + 8*(n % D)
        L = []
        if it[0] == 'f':
            L += IL("buffer_load_dwordx4 v[%d:%d], v8, s[%d:%d], s%d offen%s\nbuffer_load_dwordx4 v[%d:%d], v8, s[%d:%d], s%d offen%s\ns_add_u32 s%d, s%d, 4096" % (r, r+3, SA0, SA0+3, sAOF, a2ld, r+4, r+7, SA1, SA1+3, sAOF, a2ld, sAOF, sAOF), ('A', n))
        else:
            g, k = it[1], it[2]
            if g == 0 and k == 0:
                L += IL("s_add_u32 s%d, s%d, %d\ns_addc_u32 s%d, s%d, 0\ns_mov_b32 s%d, %d" % (SA0, SA0, 86*1024, SA0+1, SA0+1, SA0+2, 64*1024))
                L += IL("s_add_u32 s%d, s%d, %d\ns_addc_u32 s%d, s%d, 0\ns_mov_b32 s%d, %d" % (SA1, SA1, 86*1024, SA1+1, SA1+1, SA1+2, 64*1024))
                L += IL("s_lshr_b32 s%d, %s, 1\ns_lshl_b32 s%d, s%d, 13\ns_and_b32 s%d, %s, 1\ns_lshl_b32 s%d, s%d, 11\ns_add_u32 s%d, s%d, s%d" % (sAOF, sW, sAOF, sAOF, sT0, sW, sT0, sT0, sAOF, sAOF, sT0))
            jj, s = k >> 1, k & 1
            if k == 2: L += IL("s_add_u32 s%d, s%d, 4096" % (sAOF, sAOF))
            L += IL("buffer_load_dwordx4 v[%d:%d], v8, s[%d:%d], s%d offen offset:%d%s\nbuffer_load_dwordx4 v[%d:%d], v8, s[%d:%d], s%d offen offset:%d%s" % (r, r+3, SA0, SA0+3, sAOF, s*1024, a2ld, r+4, r+7, SA1, SA1+3, sAOF, s*1024, a2ld), ('A', n))
            if k == 3: L += IL("s_add_u32 s%d, s%d, 12288" % (sAOF, sAOF))
        return L
    for n in range(D): M.extend(a_loads(n))
    N = len(items)
    def wsrc(n):
        it = items[n]
        if it[0] == 'f': return [("a[%d:%d]" % (AW(n, a), AW(n, a)+3)) for a in range(2)]
        g, k = it[1], it[2]
        if g < 2: return [("a[%d:%d]" % (AW(22+4*g+k, a), AW(22+4*g+k, a)+3)) for a in range(2)]
        w = WB + 8*(k & 1)
        return [("v[%d:%d]" % (w+4*a, w+4*a+3)) for a in range(2)]
    def lds_w(n):
        it = items[n]
        if it[0] == 's' and it[1] >= 2:
            g, k = it[1], it[2]; w = WB + 8*(k & 1)
            return [I("ds_read_b128 v[%d:%d], v%d offset:%d" % (w+4*a, w+4*a+3, vD[k], (g-2)*8192 + a*4096)) for a in range(2)]
        return []
    for n in range(N):
        if n == 28: M.add(Wait(vm_tag='w3x'))
        if n + 1 < N:
            nx = lds_w(n+1)
        r = AB + 8*(n % D)
        ws_ = wsrc(n)
        first = (n == 0)
        for a in range(2):
            for bb in range(2):
                acc = ACC + (a*2+bb)*16
                c = "0" if first else "v[%d:%d]" % (acc, acc+15)
                M("v_mfma_f32_32x32x16_bf16 v[%d:%d], %s, v[%d:%d], %s" % (acc, acc+15, ws_[a], r+4*bb, r+4*bb+3, c))
                if a == 0 and bb == 0 and n + 1 < N: M.extend(lds_w(n+1))
        if n + D < N: M.extend(a_loads(n + D))
    E = M
    BUF = AB
    E("v_and_b32 v46, 31, v1\nv_lshrrev_b32 v47, 5, v1\nv_and_b32 v48, 15, v1\nv_xor_b32 v48, v48, v47\nv_lshlrev_b32 v48, 4, v48\nv_lshlrev_b32 v49, 8, v46")
    E("s_lshl_b32 s%d, %s, 14\ns_add_u32 s%d, s%d, %d\nv_add_u32 v49, s%d, v49" % (sT0, sW, sT0, sT0, RED, sT0))
    for a in range(2):
        for g in range(4):
            E("v_xor_b32 v50, %d, v48\nv_add_u32 v%d, v49, v50" % ((8*a+2*g) << 4, 52 + a*4 + g))
    for a in range(2):
        for bb in range(2):
            acc = ACC + (a*2+bb)*16
            for g in range(4):
                E("ds_write_b128 v%d, v[%d:%d] offset:%d" % (52+a*4+g, acc+4*g, acc+4*g+3, bb*8192))
    E("s_mov_b32 s88, 0xffff0000")
    E("v_lshlrev_b32 v2, 16, v%d\nv_and_b32 v3, s88, v%d\nv_lshlrev_b32 v4, 16, v%d\nv_and_b32 v5, s88, v%d" % (DR, DR, DR+1, DR+1))
    blocks = []
    for i in range(4):
        B = []
        r = BUF + i*16
        x0 = XR+2*i; mean = SR+2*i; inv = SR+2*i+1
        T = 192 + i*12
        B += IL("v_lshlrev_b32 v%d, 16, v%d\nv_and_b32 v%d, s88, v%d\nv_lshlrev_b32 v%d, 16, v%d\nv_and_b32 v%d, s88, v%d" % (T, x0, T+1, x0, T+2, x0+1, T+3, x0+1))
        for e in range(4): B += IL("v_sub_f32 v%d, v%d, v%d" % (T+4+e, T+e, mean))
        def rnd(a, b, tmp):
            return IL("v_cvt_pk_bf16_f32 v%d, v%d, v%d\nv_lshlrev_b32 v%d, 16, v%d\nv_and_b32 v%d, s88, v%d" % (tmp, a, b, a, tmp, b, tmp))
        B += rnd(T+4, T+5, T+8) + rnd(T+6, T+7, T+9)
        for e in range(4): B += IL("v_mul_f32 v%d, v%d, v%d" % (T+4+e, T+4+e, inv))
        B += rnd(T+4, T+5, T+8) + rnd(T+6, T+7, T+9)
        for e in range(4): B += IL("v_mul_f32 v%d, v%d, v%d" % (T+4+e, T+4+e, 2+e))
        B += rnd(T+4, T+5, T+8) + rnd(T+6, T+7, T+9)
        B += IL("v_pk_add_f32 v[%d:%d], v[%d:%d], v[%d:%d]\nv_pk_add_f32 v[%d:%d], v[%d:%d], v[%d:%d]" % (T, T+1, T, T+1, T+4, T+5, T+2, T+3, T+2, T+3, T+6, T+7))
        B2 = []
        for h in range(2):
            B2 += IL("v_pk_add_f32 v[%d:%d], v[%d:%d], v[%d:%d]\nv_pk_add_f32 v[%d:%d], v[%d:%d], v[%d:%d]" % (r+2*h, r+2*h+1, r+2*h, r+2*h+1, r+4+2*h, r+5+2*h, r+8+2*h, r+9+2*h, r+8+2*h, r+9+2*h, r+12+2*h, r+13+2*h))
        for h in range(2):
            B2 += IL("v_pk_add_f32 v[%d:%d], v[%d:%d], v[%d:%d]\nv_pk_add_f32 v[%d:%d], v[%d:%d], v[%d:%d]" % (r+2*h, r+2*h+1, r+2*h, r+2*h+1, r+8+2*h, r+9+2*h, r+2*h, r+2*h+1, r+2*h, r+2*h+1, T+2*h, T+2*h+1))
        B2 += IL("buffer_store_dwordx4 v[%d:%d], v50, s[%d:%d], s%d offen" % (r, r+3, SO, SO+3, 84+i))
        blocks.append((B, B2))
    for k in range(len(blocks[0][0])):
        for i in range(4): E.add(blocks[i][0][k])
    E.add(Wait(lgkm_all=True))
    E("s_barrier")
    for i in range(4):
        E("v_add_u32 v46, %d, v11\nv_and_b32 v47, 15, v46\nv_xor_b32 v47, v47, v12\nv_lshlrev_b32 v47, 4, v47\nv_lshl_add_u32 v%d, v46, 8, v47\nv_add_u32 v%d, %d, v%d" % (4*i, 60+i, 60+i, RED, 60+i))
    for i in range(4):
        for pw in range(4):
            r = BUF + (i*4+pw)*4
            E("ds_read_b128 v[%d:%d], v%d offset:%d" % (r, r+3, 60+i, pw*16384))
    E("s_lshl_b32 s%d, s%d, 8\nv_lshlrev_b32 v50, 11, v13\nv_lshl_add_u32 v50, v12, 4, v50\nv_add_u32 v50, s%d, v50" % (sT0, sNT, sT0))
    E("s_mov_b32 s84, 0\ns_movk_i32 s85, 8192\ns_movk_i32 s86, 16384\ns_movk_i32 s87, 24576")
    for i in range(4): E.extend(blocks[i][1])
    txt += render(finalize(M.ins))
    return txt


def flag_store(SWS, sNONr, soff_code, vt):
    L = IL("v_mov_b32 v%d, s%d\nv_mov_b32 v%d, s%d" % (vt, sNONr, vt+1, sNONr))
    L += IL(soff_code)
    L.append(IL("s_mov_b64 exec, 1") + [I("buffer_store_dwordx2 v[%d:%d], off, s[%d:%d], s95 sc1" % (vt, vt+1, SWS, SWS+3), 'flg')] + IL("s_mov_b64 exec, -1"))
    return L

def p2_main3(sM, sJ, sW, P, SWS, sNON, SLOW, a2ld=" sc1", D=12, stamp=False):
    D1, R1, D2, R2 = rounds()
    SA0, SA1, SXo, SDS, SO, SST = 52, 56, 64, 68, 72, 40
    sMT, sNT, sAOF, sT0, sT1 = 88, 89, 90, 92, 93
    M = Stream()
    M("v_lshlrev_b32 v46, 3, v1\ns_lshl_b32 s95, %s, 9\ns_add_u32 s95, s95, %d" % (sM, WS_FL))
    M("buffer_load_dwordx2 v[48:49], v46, s[%d:%d], s95 offen sc1" % (SWS, SWS+3), 'ff')
    M.extend(flat(R1 + D2))
    M("s_lshr_b32 s%d, %s, 3\ns_lshl_b32 s%d, %s, 1\ns_add_u32 s%d, s%d, s%d\ns_and_b32 s%d, %s, 7" % (sT0, sJ, sMT, sM, sMT, sMT, sT0, sNT, sJ))
    M("s_mul_i32 s%d, s%d, %d" % (sT0, sMT, 2*RG_BYTES))
    srd(M, SA0, P['ws'], 86*1024, "s%d" % sT0)
    M("s_add_u32 s%d, s%d, %d" % (sT0, sT0, RG_BYTES))
    srd(M, SA1, P['ws'], 86*1024, "s%d" % sT0)
    M("v_lshlrev_b32 v8, 4, v1\ns_lshl_b32 s%d, %s, 10" % (sAOF, sW))
    def poll(lab, nl, vaddr, vd, soff):
        L = [Wait(vm_tag=lab)]
        chk = ["v_xor_b32 v%d, s%d, v%d" % (vd, sNON, vd), "v_xor_b32 v%d, s%d, v%d" % (vd+1, sNON, vd+1), "v_or_b32 v%d, v%d, v%d" % (vd, vd, vd+1)]
        if nl < 64: chk.append("v_and_b32 v%d, v%d, v47" % (vd, vd))
        chk.append("v_cmp_ne_u32 vcc, 0, v%d" % vd)
        L += [I(x) for x in chk] + IL("s_cbranch_vccnz L_f_%s_slow\nL_f_%s_ok:" % (lab, lab))
        SLOW.extend(["L_f_%s_slow:" % lab, "s_mov_b32 s94, 400000", "L_f_%s_spin:" % lab, "s_sleep 1",
                     "buffer_load_dwordx2 v[%d:%d], v%d, s[%d:%d], %s offen sc1" % (vd, vd+1, vaddr, SWS, SWS+3, soff), "s_waitcnt vmcnt(0)"] + chk +
                    ["s_nop 4", "s_sub_u32 s94, s94, 1", "s_cmp_eq_u32 s94, 0", "s_cbranch_scc1 L_f_%s_ok" % lab, "s_cbranch_vccnz L_f_%s_spin" % lab, "s_branch L_f_%s_ok" % lab])
        return L
    M.extend(poll('ff', 64, 46, 48, "s95"))
    items = [('f', i) for i in range(22)] + [('s', g, k) for g in range(4) for k in range(4)]
    N = len(items)
    def a_loads(n):
        it = items[n]; r = AB + 8*(n % D)
        L = []
        if it[0] == 'f':
            L += IL("buffer_load_dwordx4 v[%d:%d], v8, s[%d:%d], s%d offen%s\nbuffer_load_dwordx4 v[%d:%d], v8, s[%d:%d], s%d offen%s\ns_add_u32 s%d, s%d, 4096" % (r, r+3, SA0, SA0+3, sAOF, a2ld, r+4, r+7, SA1, SA1+3, sAOF, a2ld, sAOF, sAOF), ('A', n))
        else:
            g, k = it[1], it[2]
            if g == 0 and k == 0:
                L += poll('fs', 32, 46, 50, "s95")
                L += IL("s_add_u32 s%d, s%d, %d\ns_addc_u32 s%d, s%d, 0\ns_mov_b32 s%d, %d" % (SA0, SA0, 86*1024, SA0+1, SA0+1, SA0+2, 64*1024))
                L += IL("s_add_u32 s%d, s%d, %d\ns_addc_u32 s%d, s%d, 0\ns_mov_b32 s%d, %d" % (SA1, SA1, 86*1024, SA1+1, SA1+1, SA1+2, 64*1024))
                L += IL("s_lshr_b32 s%d, %s, 1\ns_lshl_b32 s%d, s%d, 13\ns_and_b32 s%d, %s, 1\ns_lshl_b32 s%d, s%d, 11\ns_add_u32 s%d, s%d, s%d" % (sAOF, sW, sAOF, sAOF, sT0, sW, sT0, sT0, sAOF, sAOF, sT0))
            jj, s = k >> 1, k & 1
            if k == 2: L += IL("s_add_u32 s%d, s%d, 4096" % (sAOF, sAOF))
            L += IL("buffer_load_dwordx4 v[%d:%d], v8, s[%d:%d], s%d offen offset:%d%s\nbuffer_load_dwordx4 v[%d:%d], v8, s[%d:%d], s%d offen offset:%d%s" % (r, r+3, SA0, SA0+3, sAOF, s*1024, a2ld, r+4, r+7, SA1, SA1+3, sAOF, s*1024, a2ld), ('A', n))
            if k == 3: L += IL("s_add_u32 s%d, s%d, 12288" % (sAOF, sAOF))
        return L
    for n in range(D): M.extend(a_loads(n))
    M.extend(flat(R2))
    M.add(Wait(lgkm_all=True))
    M.extend(flat(dma_ssm(0, 'w3') + dma_ssm(8192, 'w3')))
    M("v_lshrrev_b32 v11, 4, v1\ns_lshl_b32 s%d, %s, 4\nv_add_u32 v11, s%d, v11" % (sT0, sW, sT0))
    M("v_and_b32 v12, 15, v1\ns_lshl_b32 s%d, s%d, 6\nv_add_u32 v13, s%d, v11" % (sT0, sMT, sT0))
    M("s_lshl_b32 s%d, s%d, 7\nv_lshlrev_b32 v14, 10, v13\nv_lshl_add_u32 v14, v12, 3, v14\nv_add_u32 v14, s%d, v14" % (sT0, sNT, sT0))
    M("v_lshlrev_b32 v17, 4, v13\nv_lshlrev_b32 v26, 3, v12\nv_add_u32 v26, s%d, v26" % sT0)
    srd(M, SXo, P['x'], 2048*1024); srd(M, SDS, P['dsk'], 1024); srd(M, SO, P['out'], 2048*2048); srd(M, SST, P['ws'], 2048*16, WS_ST)
    XR, SR, DR = 28, 36, 44
    M("s_mov_b32 s84, 0\ns_movk_i32 s85, 4096\ns_movk_i32 s86, 8192\ns_movk_i32 s87, 12288")
    for i in range(4): M("buffer_load_dwordx2 v[%d:%d], v14, s[%d:%d], s%d offen" % (XR+2*i, XR+2*i+1, SXo, SXo+3, 84+i))
    M("buffer_load_dwordx2 v[%d:%d], v26, s[%d:%d], 0 offen" % (DR, DR+1, SDS, SDS+3))
    for i in range(4):
        M("buffer_load_dword v%d, v17, s[%d:%d], 0 offen offset:%d sc1\nbuffer_load_dword v%d, v17, s[%d:%d], 0 offen offset:%d sc1" % (SR+2*i, SST, SST+3, 64*i, SR+2*i+1, SST, SST+3, 64*i+8))
    M("v_cmp_gt_u32 vcc, 32, v1\nv_cndmask_b32 v47, 0, -1, vcc\nv_and_b32 v46, 31, v1\nv_lshlrev_b32 v46, 3, v46\ns_lshl_b32 s95, %s, 8\ns_add_u32 s95, s95, %d" % (sM, WS_FL + 0x2000))
    def wsrc(n):
        it = items[n]
        if it[0] == 'f': return [("a[%d:%d]" % (AW(n, a), AW(n, a)+3)) for a in range(2)]
        g, k = it[1], it[2]
        if g < 2: return [("a[%d:%d]" % (AW(22+4*g+k, a), AW(22+4*g+k, a)+3)) for a in range(2)]
        w = WB + 8*(k & 1)
        return [("v[%d:%d]" % (w+4*a, w+4*a+3)) for a in range(2)]
    def lds_w(n):
        it = items[n]
        if it[0] == 's' and it[1] >= 2:
            g, k = it[1], it[2]; w = WB + 8*(k & 1)
            return [I("ds_read_b128 v[%d:%d], v%d offset:%d" % (w+4*a, w+4*a+3, vD[k], (g-2)*8192 + a*4096)) for a in range(2)]
        return []
    fs_issue = 22 - D - 3
    for n in range(N):
        if n == max(fs_issue, 0): M("buffer_load_dwordx2 v[50:51], v46, s[%d:%d], s95 offen sc1" % (SWS, SWS+3), 'fs')
        if n == 29: M.add(Wait(vm_tag='w3'))
        r = AB + 8*(n % D)
        ws_ = wsrc(n)
        for a in range(2):
            for bb in range(2):
                acc = ACC + (a*2+bb)*16
                c = "0" if n == 0 else "v[%d:%d]" % (acc, acc+15)
                M("v_mfma_f32_32x32x16_bf16 v[%d:%d], %s, v[%d:%d], %s" % (acc, acc+15, ws_[a], r+4*bb, r+4*bb+3, c))
                if a == 0 and bb == 0 and n + 1 < N: M.extend(lds_w(n+1))
        if n + D < N: M.extend(a_loads(n + D))
    if stamp: M("s_memrealtime s[22:23]")
    E = M
    BUF = AB
    E("v_and_b32 v46, 31, v1\nv_lshrrev_b32 v47, 5, v1\nv_and_b32 v48, 15, v1\nv_xor_b32 v48, v48, v47\nv_lshlrev_b32 v48, 4, v48\nv_lshlrev_b32 v49, 8, v46")
    E("s_add_u32 s%d, s%d, 16384\nv_add_u32 v49, s%d, v49" % (sT0, sLB, sT0))
    for a in range(2):
        for g in range(4):
            E("v_xor_b32 v50, %d, v48\nv_add_u32 v%d, v49, v50" % ((8*a+2*g) << 4, 52 + a*4 + g))
    for a in range(2):
        for bb in range(2):
            acc = ACC + (a*2+bb)*16
            for g in range(4):
                E("ds_write_b128 v%d, v[%d:%d] offset:%d" % (52+a*4+g, acc+4*g, acc+4*g+3, bb*8192))
    E("s_mov_b32 s88, 0xffff0000")
    E("v_lshlrev_b32 v2, 16, v%d\nv_and_b32 v3, s88, v%d\nv_lshlrev_b32 v4, 16, v%d\nv_and_b32 v5, s88, v%d" % (DR, DR, DR+1, DR+1))
    blocks = []
    for i in range(4):
        B = []
        r = BUF + i*16
        x0 = XR+2*i; mean = SR+2*i; inv = SR+2*i+1
        T = 192 + i*12
        B += IL("v_lshlrev_b32 v%d, 16, v%d\nv_and_b32 v%d, s88, v%d\nv_lshlrev_b32 v%d, 16, v%d\nv_and_b32 v%d, s88, v%d" % (T, x0, T+1, x0, T+2, x0+1, T+3, x0+1))
        for e in range(4): B += IL("v_sub_f32 v%d, v%d, v%d" % (T+4+e, T+e, mean))
        def rnd(a, b, tmp):
            return IL("v_cvt_pk_bf16_f32 v%d, v%d, v%d\nv_lshlrev_b32 v%d, 16, v%d\nv_and_b32 v%d, s88, v%d" % (tmp, a, b, a, tmp, b, tmp))
        B += rnd(T+4, T+5, T+8) + rnd(T+6, T+7, T+9)
        for e in range(4): B += IL("v_mul_f32 v%d, v%d, v%d" % (T+4+e, T+4+e, inv))
        B += rnd(T+4, T+5, T+8) + rnd(T+6, T+7, T+9)
        for e in range(4): B += IL("v_mul_f32 v%d, v%d, v%d" % (T+4+e, T+4+e, 2+e))
        B += rnd(T+4, T+5, T+8) + rnd(T+6, T+7, T+9)
        B += IL("v_pk_add_f32 v[%d:%d], v[%d:%d], v[%d:%d]\nv_pk_add_f32 v[%d:%d], v[%d:%d], v[%d:%d]" % (T, T+1, T, T+1, T+4, T+5, T+2, T+3, T+2, T+3, T+6, T+7))
        B2 = []
        for h in range(2):
            B2 += IL("v_pk_add_f32 v[%d:%d], v[%d:%d], v[%d:%d]\nv_pk_add_f32 v[%d:%d], v[%d:%d], v[%d:%d]" % (r+2*h, r+2*h+1, r+2*h, r+2*h+1, r+4+2*h, r+5+2*h, r+8+2*h, r+9+2*h, r+8+2*h, r+9+2*h, r+12+2*h, r+13+2*h))
        for h in range(2):
            B2 += IL("v_pk_add_f32 v[%d:%d], v[%d:%d], v[%d:%d]\nv_pk_add_f32 v[%d:%d], v[%d:%d], v[%d:%d]" % (r+2*h, r+2*h+1, r+2*h, r+2*h+1, r+8+2*h, r+9+2*h, r+2*h, r+2*h+1, r+2*h, r+2*h+1, T+2*h, T+2*h+1))
        B2 += IL("buffer_store_dwordx4 v[%d:%d], v50, s[%d:%d], s%d offen" % (r, r+3, SO, SO+3, 84+i))
        blocks.append((B, B2))
    for k in range(len(blocks[0][0])):
        for i in range(4): E.add(blocks[i][0][k])
    E.add(Wait(lgkm_all=True))
    E("s_barrier")
    for i in range(4):
        E("v_add_u32 v46, %d, v11\nv_and_b32 v47, 15, v46\nv_xor_b32 v47, v47, v12\nv_lshlrev_b32 v47, 4, v47\nv_lshl_add_u32 v%d, v46, 8, v47\nv_add_u32 v%d, 16384, v%d\nv_add_u32 v%d, 65536, v%d" % (4*i, 56+i, 56+i, 56+i, 60+i, 56+i))
    for i in range(4):
        for pw in range(4):
            r = BUF + (i*4+pw)*4
            E("ds_read_b128 v[%d:%d], v%d offset:%d" % (r, r+3, (56 if pw < 2 else 60)+i, (pw & 1)*32768))
    E("s_lshl_b32 s%d, s%d, 8\nv_lshlrev_b32 v50, 11, v13\nv_lshl_add_u32 v50, v12, 4, v50\nv_add_u32 v50, s%d, v50" % (sT0, sNT, sT0))
    E("s_mov_b32 s84, 0\ns_movk_i32 s85, 8192\ns_movk_i32 s86, 16384\ns_movk_i32 s87, 24576")
    for i in range(4): E.extend(blocks[i][1])
    return M.ins


sWa, sWb, sWc = 100, 101, 97
def unit_base(i): return (3*i, 2) if i < 11 else (2*i + 11, 1)
def w2_setup4(sJ, sW, P):
    L = w2_setup(sJ, sW, P)
    L += IL("s_and_b32 s%d, %s, 7\ns_lshl_b32 s%d, s%d, 7" % (sTa, sJ, sWOF, sTa))
    L += IL("s_and_b32 s%d, %s, 1\ns_lshl_b32 s%d, s%d, 10\ns_lshr_b32 s%d, %s, 1" % (sTa, sW, sTa, sTa, sTb, sW))
    L += IL("s_lshl_b32 s%d, s%d, 12\ns_add_u32 s%d, s%d, s%d\ns_lshl_b32 s%d, s%d, 11\ns_add_u32 s%d, s%d, s%d" % (sWa, sTb, sWa, sWa, sTa, sWb, sTb, sWb, sWb, sTa))
    L += IL("s_mul_i32 s%d, s%d, 6144\ns_add_u32 s%d, s%d, %d\ns_add_u32 s%d, s%d, s%d" % (sWc, sTb, sWc, sWc, 2048, sWc, sWc, sTa))
    return L
def aoff(n, dst):
    if n < 16:
        b, d = unit_base(n)
        return "s_add_u32 s%d, s%d, %d" % (dst, sWa if d == 2 else sWb, b*2048)
    i = n - 16
    t = "s_add_u32 s%d, s%d, %d" % (dst, sWc, 6*i*2048)
    if i == 5: t += "\ns_cmp_ge_u32 s%d, %d\ns_cselect_b32 s%d, 0x8000000, s%d" % (dst, 33*2048, dst, dst)
    return t
def dma_ffn4(n, slot_off, tag):
    pre = IL(aoff(n, sTa)) + IL("s_lshl_b32 s%d, s%d, 4\ns_add_u32 s%d, s%d, s%d\ns_add_u32 m0, s%d, %d" % (sTa, sTa, sTa, sTa, sWOF, sLB, slot_off))
    g = pre + [I("buffer_load_dwordx4 v%d, s[%d:%d], s%d offen lds" % (vP0, SWD, SWD+3, sTa), tag), I("buffer_load_dwordx4 v%d, s[%d:%d], s%d offen offset:1024 lds" % (vP1, SWD, SWD+3, sTa), tag)]
    return [g]
def rounds4():
    d1 = []
    for i in range(16): d1 += dma_ffn4(i, i*2048, 'w1')
    r1 = [Wait(vm_tag='w1')]
    for i in range(16): r1 += rd_ffn(i, i*2048)
    d2 = [Wait(lgkm_all=True)]
    for i in range(16, 22): d2 += dma_ffn4(i, (i-16)*2048, 'w2')
    d2 += dma_ssm(12288, 'w2') + dma_ssm(20480, 'w2')
    r2 = [Wait(vm_tag='w2')]
    for i in range(16, 22): r2 += rd_ffn(i, (i-16)*2048)
    r2 += rd_ssm(0, 12288) + rd_ssm(1, 20480)
    return d1, r1, d2, r2

def p2_main4(sM, sJ, sW, P, SWS, sNON, SLOW, a2ld=" sc1", D=12, stamp=False):
    D1, R1, D2, R2 = rounds4()
    SA0, SA1, SXo, SDS, SO, SST = 52, 56, 64, 68, 72, 40
    sMT, sNT, sAOF, sT0, sT1 = 88, 89, 90, 92, 93
    M = Stream()
    M("v_cmp_gt_u32 vcc, 32, v1\nv_cndmask_b32 v47, 0, -1, vcc\nv_and_b32 v46, 31, v1\nv_lshlrev_b32 v46, 3, v46\ns_lshl_b32 s95, %s, 8\ns_add_u32 s95, s95, %d" % (sM, WS_FL))
    M("buffer_load_dwordx2 v[48:49], v46, s[%d:%d], s95 offen sc1" % (SWS, SWS+3), 'ff')
    M.extend(flat(R1 + D2))
    M("s_lshr_b32 s%d, %s, 3\ns_lshl_b32 s%d, %s, 1\ns_add_u32 s%d, s%d, s%d\ns_and_b32 s%d, %s, 7" % (sT0, sJ, sMT, sM, sMT, sMT, sT0, sNT, sJ))
    M("s_mul_i32 s%d, s%d, %d" % (sT0, sMT, 2*RG_BYTES))
    srd(M, SA0, P['ws'], 86*1024, "s%d" % sT0)
    M("s_add_u32 s%d, s%d, %d" % (sT0, sT0, RG_BYTES))
    srd(M, SA1, P['ws'], 86*1024, "s%d" % sT0)
    M("v_lshlrev_b32 v8, 4, v1\ns_lshl_b32 s%d, %s, 10" % (sAOF, sW))
    def poll(lab, nl, vaddr, vd, soff):
        L = [Wait(vm_tag=lab)]
        chk = ["v_xor_b32 v%d, s%d, v%d" % (vd, sNON, vd), "v_xor_b32 v%d, s%d, v%d" % (vd+1, sNON, vd+1), "v_or_b32 v%d, v%d, v%d" % (vd, vd, vd+1)]
        if nl < 64: chk.append("v_and_b32 v%d, v%d, v47" % (vd, vd))
        chk.append("v_cmp_ne_u32 vcc, 0, v%d" % vd)
        L += [I(x) for x in chk] + IL("s_cbranch_vccnz L_f_%s_slow\nL_f_%s_ok:" % (lab, lab))
        SLOW.extend(["L_f_%s_slow:" % lab, "s_mov_b32 s94, 400000", "L_f_%s_spin:" % lab, "s_sleep 1",
                     "buffer_load_dwordx2 v[%d:%d], v%d, s[%d:%d], %s offen sc1" % (vd, vd+1, vaddr, SWS, SWS+3, soff), "s_waitcnt vmcnt(0)"] + chk +
                    ["s_nop 4", "s_sub_u32 s94, s94, 1", "s_cmp_eq_u32 s94, 0", "s_cbranch_scc1 L_f_%s_ok" % lab, "s_cbranch_vccnz L_f_%s_spin" % lab, "s_branch L_f_%s_ok" % lab])
        return L
    M.extend(poll('ff', 32, 46, 48, "s95"))
    items = [('f', i) for i in range(22)] + [('s', g, k) for g in range(4) for k in range(4)]
    N = len(items)
    def a_loads(n):
        it = items[n]; r = AB + 8*(n % D)
        L = []
        if it[0] == 'f':
            if n == 16: L += poll('fs', 32, 46, 50, "s95")
            L += IL(aoff(n, sAOF))
            L += IL("buffer_load_dwordx4 v[%d:%d], v8, s[%d:%d], s%d offen%s\nbuffer_load_dwordx4 v[%d:%d], v8, s[%d:%d], s%d offen%s" % (r, r+3, SA0, SA0+3, sAOF, a2ld, r+4, r+7, SA1, SA1+3, sAOF, a2ld), ('A', n))
        else:
            g, k = it[1], it[2]
            if g == 0 and k == 0:
                L += IL("s_add_u32 s%d, s%d, %d\ns_addc_u32 s%d, s%d, 0\ns_mov_b32 s%d, %d" % (SA0, SA0, 86*1024, SA0+1, SA0+1, SA0+2, 64*1024))
                L += IL("s_add_u32 s%d, s%d, %d\ns_addc_u32 s%d, s%d, 0\ns_mov_b32 s%d, %d" % (SA1, SA1, 86*1024, SA1+1, SA1+1, SA1+2, 64*1024))
                L += IL("s_lshr_b32 s%d, %s, 1\ns_lshl_b32 s%d, s%d, 13\ns_and_b32 s%d, %s, 1\ns_lshl_b32 s%d, s%d, 11\ns_add_u32 s%d, s%d, s%d" % (sAOF, sW, sAOF, sAOF, sT0, sW, sT0, sT0, sAOF, sAOF, sT0))
            jj, s = k >> 1, k & 1
            if k == 2: L += IL("s_add_u32 s%d, s%d, 4096" % (sAOF, sAOF))
            L += IL("buffer_load_dwordx4 v[%d:%d], v8, s[%d:%d], s%d offen offset:%d%s\nbuffer_load_dwordx4 v[%d:%d], v8, s[%d:%d], s%d offen offset:%d%s" % (r, r+3, SA0, SA0+3, sAOF, s*1024, a2ld, r+4, r+7, SA1, SA1+3, sAOF, s*1024, a2ld), ('A', n))
            if k == 3: L += IL("s_add_u32 s%d, s%d, 12288" % (sAOF, sAOF))
        return L
    for n in range(D): M.extend(a_loads(n))
    M.extend(flat(R2))
    M.add(Wait(lgkm_all=True))
    M.extend(flat(dma_ssm(0, 'w3') + dma_ssm(8192, 'w3')))
    M("v_lshrrev_b32 v11, 4, v1\ns_lshl_b32 s%d, %s, 4\nv_add_u32 v11, s%d, v11" % (sT0, sW, sT0))
    M("v_and_b32 v12, 15, v1\ns_lshl_b32 s%d, s%d, 6\nv_add_u32 v13, s%d, v11" % (sT0, sMT, sT0))
    M("s_lshl_b32 s%d, s%d, 7\nv_lshlrev_b32 v14, 10, v13\nv_lshl_add_u32 v14, v12, 3, v14\nv_add_u32 v14, s%d, v14" % (sT0, sNT, sT0))
    M("v_lshlrev_b32 v17, 4, v13\nv_lshlrev_b32 v26, 3, v12\nv_add_u32 v26, s%d, v26" % sT0)
    srd(M, SXo, P['x'], 2048*1024); srd(M, SDS, P['dsk'], 1024); srd(M, SO, P['out'], 2048*2048); srd(M, SST, P['ws'], 2048*16, WS_ST)
    XR, SR, DR = 28, 36, 44
    M("s_mov_b32 s84, 0\ns_movk_i32 s85, 4096\ns_movk_i32 s86, 8192\ns_movk_i32 s87, 12288")
    for i in range(4): M("buffer_load_dwordx2 v[%d:%d], v14, s[%d:%d], s%d offen" % (XR+2*i, XR+2*i+1, SXo, SXo+3, 84+i))
    M("buffer_load_dwordx2 v[%d:%d], v26, s[%d:%d], 0 offen" % (DR, DR+1, SDS, SDS+3))
    for i in range(4):
        M("buffer_load_dword v%d, v17, s[%d:%d], 0 offen offset:%d sc1\nbuffer_load_dword v%d, v17, s[%d:%d], 0 offen offset:%d sc1" % (SR+2*i, SST, SST+3, 64*i, SR+2*i+1, SST, SST+3, 64*i+8))
    M("s_add_u32 s95, s95, 0x2000")
    def wsrc(n):
        it = items[n]
        if it[0] == 'f': return [("a[%d:%d]" % (AW(n, a), AW(n, a)+3)) for a in range(2)]
        g, k = it[1], it[2]
        if g < 2: return [("a[%d:%d]" % (AW(22+4*g+k, a), AW(22+4*g+k, a)+3)) for a in range(2)]
        w = WB + 8*(k & 1)
        return [("v[%d:%d]" % (w+4*a, w+4*a+3)) for a in range(2)]
    def lds_w(n):
        it = items[n]
        if it[0] == 's' and it[1] >= 2:
            g, k = it[1], it[2]; w = WB + 8*(k & 1)
            return [I("ds_read_b128 v[%d:%d], v%d offset:%d" % (w+4*a, w+4*a+3, vD[k], (g-2)*8192 + a*4096)) for a in range(2)]
        return []
    fs_issue = 16 - D - 2
    for n in range(N):
        if n == max(fs_issue, 0): M("buffer_load_dwordx2 v[50:51], v46, s[%d:%d], s95 offen sc1" % (SWS, SWS+3), 'fs')
        if n == 29: M.add(Wait(vm_tag='w3'))
        r = AB + 8*(n % D)
        ws_ = wsrc(n)
        for a in range(2):
            for bb in range(2):
                acc = ACC + (a*2+bb)*16
                c = "0" if n == 0 else "v[%d:%d]" % (acc, acc+15)
                M("v_mfma_f32_32x32x16_bf16 v[%d:%d], %s, v[%d:%d], %s" % (acc, acc+15, ws_[a], r+4*bb, r+4*bb+3, c))
                if a == 0 and bb == 0 and n + 1 < N: M.extend(lds_w(n+1))
        if n + D < N: M.extend(a_loads(n + D))
    if stamp: M("s_memrealtime s[22:23]")
    E = M
    BUF = AB
    E("v_and_b32 v46, 31, v1\nv_lshrrev_b32 v47, 5, v1\nv_and_b32 v48, 15, v1\nv_xor_b32 v48, v48, v47\nv_lshlrev_b32 v48, 4, v48\nv_lshlrev_b32 v49, 8, v46")
    E("s_add_u32 s%d, s%d, 16384\nv_add_u32 v49, s%d, v49" % (sT0, sLB, sT0))
    for a in range(2):
        for g in range(4):
            E("v_xor_b32 v50, %d, v48\nv_add_u32 v%d, v49, v50" % ((8*a+2*g) << 4, 52 + a*4 + g))
    for a in range(2):
        for bb in range(2):
            acc = ACC + (a*2+bb)*16
            for g in range(4):
                E("ds_write_b128 v%d, v[%d:%d] offset:%d" % (52+a*4+g, acc+4*g, acc+4*g+3, bb*8192))
    E("s_mov_b32 s88, 0xffff0000")
    E("v_lshlrev_b32 v2, 16, v%d\nv_and_b32 v3, s88, v%d\nv_lshlrev_b32 v4, 16, v%d\nv_and_b32 v5, s88, v%d" % (DR, DR, DR+1, DR+1))
    blocks = []
    for i in range(4):
        B = []
        r = BUF + i*16
        x0 = XR+2*i; mean = SR+2*i; inv = SR+2*i+1
        T = 192 + i*12
        B += IL("v_lshlrev_b32 v%d, 16, v%d\nv_and_b32 v%d, s88, v%d\nv_lshlrev_b32 v%d, 16, v%d\nv_and_b32 v%d, s88, v%d" % (T, x0, T+1, x0, T+2, x0+1, T+3, x0+1))
        for e in range(4): B += IL("v_sub_f32 v%d, v%d, v%d" % (T+4+e, T+e, mean))
        def rnd(a, b, tmp):
            return IL("v_cvt_pk_bf16_f32 v%d, v%d, v%d\nv_lshlrev_b32 v%d, 16, v%d\nv_and_b32 v%d, s88, v%d" % (tmp, a, b, a, tmp, b, tmp))
        B += rnd(T+4, T+5, T+8) + rnd(T+6, T+7, T+9)
        for e in range(4): B += IL("v_mul_f32 v%d, v%d, v%d" % (T+4+e, T+4+e, inv))
        B += rnd(T+4, T+5, T+8) + rnd(T+6, T+7, T+9)
        for e in range(4): B += IL("v_mul_f32 v%d, v%d, v%d" % (T+4+e, T+4+e, 2+e))
        B += rnd(T+4, T+5, T+8) + rnd(T+6, T+7, T+9)
        B += IL("v_pk_add_f32 v[%d:%d], v[%d:%d], v[%d:%d]\nv_pk_add_f32 v[%d:%d], v[%d:%d], v[%d:%d]" % (T, T+1, T, T+1, T+4, T+5, T+2, T+3, T+2, T+3, T+6, T+7))
        B2 = []
        for h in range(2):
            B2 += IL("v_pk_add_f32 v[%d:%d], v[%d:%d], v[%d:%d]\nv_pk_add_f32 v[%d:%d], v[%d:%d], v[%d:%d]" % (r+2*h, r+2*h+1, r+2*h, r+2*h+1, r+4+2*h, r+5+2*h, r+8+2*h, r+9+2*h, r+8+2*h, r+9+2*h, r+12+2*h, r+13+2*h))
        for h in range(2):
            B2 += IL("v_pk_add_f32 v[%d:%d], v[%d:%d], v[%d:%d]\nv_pk_add_f32 v[%d:%d], v[%d:%d], v[%d:%d]" % (r+2*h, r+2*h+1, r+2*h, r+2*h+1, r+8+2*h, r+9+2*h, r+2*h, r+2*h+1, r+2*h, r+2*h+1, T+2*h, T+2*h+1))
        B2 += IL("buffer_store_dwordx4 v[%d:%d], v50, s[%d:%d], s%d offen" % (r, r+3, SO, SO+3, 84+i))
        blocks.append((B, B2))
    for k in range(len(blocks[0][0])):
        for i in range(4): E.add(blocks[i][0][k])
    E.add(Wait(lgkm_all=True))
    E("s_barrier")
    for i in range(4):
        E("v_add_u32 v46, %d, v11\nv_and_b32 v47, 15, v46\nv_xor_b32 v47, v47, v12\nv_lshlrev_b32 v47, 4, v47\nv_lshl_add_u32 v%d, v46, 8, v47\nv_add_u32 v%d, 16384, v%d\nv_add_u32 v%d, 65536, v%d" % (4*i, 56+i, 56+i, 56+i, 60+i, 56+i))
    for i in range(4):
        for pw in range(4):
            r = BUF + (i*4+pw)*4
            E("ds_read_b128 v[%d:%d], v%d offset:%d" % (r, r+3, (56 if pw < 2 else 60)+i, (pw & 1)*32768))
    E("s_lshl_b32 s%d, s%d, 8\nv_lshlrev_b32 v50, 11, v13\nv_lshl_add_u32 v50, v12, 4, v50\nv_add_u32 v50, s%d, v50" % (sT0, sNT, sT0))
    E("s_mov_b32 s84, 0\ns_movk_i32 s85, 8192\ns_movk_i32 s86, 16384\ns_movk_i32 s87, 24576")
    for i in range(4): E.extend(blocks[i][1])
    return M.ins


def rounds6():
    d1 = []
    for i in range(16): d1 += dma_ffn(i*2048, 'w1')
    r1 = []
    for i in range(16): r1 += rd_ffn(i, i*2048)
    d2 = [Wait(lgkm_all=True)]
    for i in range(16, 22): d2 += dma_ffn((i-16)*2048, 'w2')
    d2 += dma_ssm(16384, 'w2') + dma_ssm(24576, 'w2')
    r2 = [Wait(vm_tag='w2')]
    for i in range(16, 22): r2 += rd_ffn(i, (i-16)*2048)
    d3 = [Wait(lgkm_all=True)] + dma_ssm(0, 'w3') + dma_ssm(8192, 'w3')
    return d1, r1, d2, r2, d3
GOFF = [16384, 24576, 0, 8192]
def p2_main6(sM, sJ, sW, P, poll, a2ld=" sc1", D=24, stamp=False, D0=8, DMAX=18, late=None):
    SA0, SA1, SXo, SDS, SO, SST = 52, 56, 64, 68, 72, 40
    sMT, sNT, sAOF, sT0, sT1 = 88, 89, 90, 92, 93
    WB6 = 240
    def abuf(n):
        b = n % D
        if b < 14: return ('v', 128 + 8*b)
        return ('a', 176 + 8*(b-14))
    S = Stream()
    S("s_lshr_b32 s%d, %s, 3\ns_lshl_b32 s%d, %s, 1\ns_add_u32 s%d, s%d, s%d\ns_and_b32 s%d, %s, 7" % (sT0, sJ, sMT, sM, sMT, sMT, sT0, sNT, sJ))
    S("s_mul_i32 s%d, s%d, %d" % (sT0, sMT, 2*RG_BYTES))
    srd(S, SA0, P['ws'], 86*1024, "s%d" % sT0)
    S("s_add_u32 s%d, s%d, %d" % (sT0, sT0, RG_BYTES))
    srd(S, SA1, P['ws'], 86*1024, "s%d" % sT0)
    S("v_lshlrev_b32 v8, 4, v1\ns_lshl_b32 s%d, %s, 10" % (sAOF, sW))
    S("v_lshrrev_b32 v11, 4, v1\ns_lshl_b32 s%d, %s, 4\nv_add_u32 v11, s%d, v11" % (sT0, sW, sT0))
    S("v_and_b32 v12, 15, v1\ns_lshl_b32 s%d, s%d, 6\nv_add_u32 v13, s%d, v11" % (sT0, sMT, sT0))
    S("s_lshl_b32 s%d, s%d, 7\nv_lshlrev_b32 v14, 10, v13\nv_lshl_add_u32 v14, v12, 3, v14\nv_add_u32 v14, s%d, v14" % (sT0, sNT, sT0))
    S("v_lshlrev_b32 v17, 4, v13\nv_lshlrev_b32 v26, 3, v12\nv_add_u32 v26, s%d, v26" % sT0)
    srd(S, SXo, P['x'], 2048*1024); srd(S, SDS, P['dsk'], 1024); srd(S, SO, P['out'], 2048*2048); srd(S, SST, P['ws'], 2048*16, WS_ST)
    XR, SR, DR = 28, 36, 44
    S("s_mov_b32 s84, 0\ns_movk_i32 s85, 4096\ns_movk_i32 s86, 8192\ns_movk_i32 s87, 12288")
    for i in range(4): S("buffer_load_dwordx2 v[%d:%d], v14, s[%d:%d], s%d offen" % (XR+2*i, XR+2*i+1, SXo, SXo+3, 84+i))
    S("buffer_load_dwordx2 v[%d:%d], v26, s[%d:%d], 0 offen" % (DR, DR+1, SDS, SDS+3))
    for i in range(4):
        S("buffer_load_dword v%d, v17, s[%d:%d], 0 offen offset:%d sc1\nbuffer_load_dword v%d, v17, s[%d:%d], 0 offen offset:%d sc1" % (SR+2*i, SST, SST+3, 64*i, SR+2*i+1, SST, SST+3, 64*i+8))
    txt = render(finalize(S.ins))
    txt += poll
    M = Stream()
    items = [('f', i) for i in range(22)] + [('s', g, k) for g in range(4) for k in range(4)]
    N = len(items)
    def a_loads(n):
        it = items[n]; t, r = abuf(n)
        L = []
        if it[0] == 'f':
            L += IL("buffer_load_dwordx4 %s[%d:%d], v8, s[%d:%d], s%d offen%s\nbuffer_load_dwordx4 %s[%d:%d], v8, s[%d:%d], s%d offen%s\ns_add_u32 s%d, s%d, 4096" % (t, r, r+3, SA0, SA0+3, sAOF, a2ld, t, r+4, r+7, SA1, SA1+3, sAOF, a2ld, sAOF, sAOF), ('A', n))
        else:
            g, k = it[1], it[2]
            if g == 0 and k == 0:
                L += IL("s_add_u32 s%d, s%d, %d\ns_addc_u32 s%d, s%d, 0\ns_mov_b32 s%d, %d" % (SA0, SA0, 86*1024, SA0+1, SA0+1, SA0+2, 64*1024))
                L += IL("s_add_u32 s%d, s%d, %d\ns_addc_u32 s%d, s%d, 0\ns_mov_b32 s%d, %d" % (SA1, SA1, 86*1024, SA1+1, SA1+1, SA1+2, 64*1024))
                L += IL("s_lshr_b32 s%d, %s, 1\ns_lshl_b32 s%d, s%d, 13\ns_and_b32 s%d, %s, 1\ns_lshl_b32 s%d, s%d, 11\ns_add_u32 s%d, s%d, s%d" % (sAOF, sW, sAOF, sAOF, sT0, sW, sT0, sT0, sAOF, sAOF, sT0))
            jj, s = k >> 1, k & 1
            if k == 2: L += IL("s_add_u32 s%d, s%d, 4096" % (sAOF, sAOF))
            L += IL("buffer_load_dwordx4 %s[%d:%d], v8, s[%d:%d], s%d offen offset:%d%s\nbuffer_load_dwordx4 %s[%d:%d], v8, s[%d:%d], s%d offen offset:%d%s" % (t, r, r+3, SA0, SA0+3, sAOF, s*1024, a2ld, t, r+4, r+7, SA1, SA1+3, sAOF, s*1024, a2ld), ('A', n))
            if k == 3: L += IL("s_add_u32 s%d, s%d, 12288" % (sAOF, sAOF))
        return L
    issued = [min(D0, N)]
    for n in range(issued[0]): M.extend(a_loads(n))
    if stamp: M("s_memrealtime s[14:15]")
    def wsrc(n):
        it = items[n]
        if it[0] == 'f': return [("a[%d:%d]" % (AW(n, a), AW(n, a)+3)) for a in range(2)]
        w = WB6 + 8*(n & 1)
        return [("v[%d:%d]" % (w+4*a, w+4*a+3)) for a in range(2)]
    def lds_w(n):
        it = items[n]
        if it[0] == 's':
            g, k = it[1], it[2]; w = WB6 + 8*(n & 1)
            return [I("ds_read_b128 v[%d:%d], v%d offset:%d" % (w+4*a, w+4*a+3, vD[k], GOFF[g] + a*4096)) for a in range(2)]
        return []
    for n in range(N):
        t, r = abuf(n)
        ws_ = wsrc(n)
        if late and n in late: M.extend(flat(late[n]))
        want = min(N, n + 1 + D - 1 + 0, issued[0] + (2 if issued[0] - n < DMAX else 1))
        want = min(want, n + D)
        pend = []
        while issued[0] < min(want, n + D - 0) and issued[0] < n + D:
            pend.append(a_loads(issued[0])); issued[0] += 1
        k = 0
        for a in range(2):
            for bb in range(2):
                acc = ACC + (a*2+bb)*16
                c = "0" if n == 0 else "v[%d:%d]" % (acc, acc+15)
                M("v_mfma_f32_32x32x16_bf16 v[%d:%d], %s, %s[%d:%d], %s" % (acc, acc+15, ws_[a], t, r+4*bb, r+4*bb+3, c))
                if a == 0 and bb == 0 and n + 1 < N: M.extend(lds_w(n+1))
                if k < len(pend) and (a, bb) != (1, 1) or (k < len(pend) and (a, bb) == (1, 1)):
                    M.extend(pend[k]); k += 1
        while k < len(pend): M.extend(pend[k]); k += 1
        if stamp and n == 0: M("s_memrealtime s[26:27]")
    if stamp: M("s_memrealtime s[16:17]")
    E = M
    BUF = 128
    E("v_and_b32 v46, 31, v1\nv_lshrrev_b32 v47, 5, v1\nv_and_b32 v48, 15, v1\nv_xor_b32 v48, v48, v47\nv_lshlrev_b32 v48, 4, v48\nv_lshlrev_b32 v49, 8, v46\nv_add_u32 v49, s%d, v49" % sLB)
    for a in range(2):
        for g in range(4):
            E("v_xor_b32 v50, %d, v48\nv_add_u32 v%d, v49, v50" % ((8*a+2*g) << 4, 52 + a*4 + g))
    E.add(Wait(lgkm_all=True))
    for a in range(2):
        for bb in range(2):
            acc = ACC + (a*2+bb)*16
            for g in range(4):
                E("ds_write_b128 v%d, v[%d:%d] offset:%d" % (52+a*4+g, acc+4*g, acc+4*g+3, bb*8192))
    E("s_mov_b32 s88, 0xffff0000")
    E("v_lshlrev_b32 v2, 16, v%d\nv_and_b32 v3, s88, v%d\nv_lshlrev_b32 v4, 16, v%d\nv_and_b32 v5, s88, v%d" % (DR, DR, DR+1, DR+1))
    blocks = []
    for i in range(4):
        B = []
        r = BUF + i*16
        x0 = XR+2*i; mean = SR+2*i; inv = SR+2*i+1
        T = 192 + i*12
        B += IL("v_lshlrev_b32 v%d, 16, v%d\nv_and_b32 v%d, s88, v%d\nv_lshlrev_b32 v%d, 16, v%d\nv_and_b32 v%d, s88, v%d" % (T, x0, T+1, x0, T+2, x0+1, T+3, x0+1))
        for e in range(4): B += IL("v_sub_f32 v%d, v%d, v%d" % (T+4+e, T+e, mean))
        def rnd(a, b, tmp):
            return IL("v_cvt_pk_bf16_f32 v%d, v%d, v%d\nv_lshlrev_b32 v%d, 16, v%d\nv_and_b32 v%d, s88, v%d" % (tmp, a, b, a, tmp, b, tmp))
        B += rnd(T+4, T+5, T+8) + rnd(T+6, T+7, T+9)
        for e in range(4): B += IL("v_mul_f32 v%d, v%d, v%d" % (T+4+e, T+4+e, inv))
        B += rnd(T+4, T+5, T+8) + rnd(T+6, T+7, T+9)
        for e in range(4): B += IL("v_mul_f32 v%d, v%d, v%d" % (T+4+e, T+4+e, 2+e))
        B += rnd(T+4, T+5, T+8) + rnd(T+6, T+7, T+9)
        B += IL("v_pk_add_f32 v[%d:%d], v[%d:%d], v[%d:%d]\nv_pk_add_f32 v[%d:%d], v[%d:%d], v[%d:%d]" % (T, T+1, T, T+1, T+4, T+5, T+2, T+3, T+2, T+3, T+6, T+7))
        B2 = []
        for h in range(2):
            B2 += IL("v_pk_add_f32 v[%d:%d], v[%d:%d], v[%d:%d]\nv_pk_add_f32 v[%d:%d], v[%d:%d], v[%d:%d]" % (r+2*h, r+2*h+1, r+2*h, r+2*h+1, r+4+2*h, r+5+2*h, r+8+2*h, r+9+2*h, r+8+2*h, r+9+2*h, r+12+2*h, r+13+2*h))
        for h in range(2):
            B2 += IL("v_pk_add_f32 v[%d:%d], v[%d:%d], v[%d:%d]\nv_pk_add_f32 v[%d:%d], v[%d:%d], v[%d:%d]" % (r+2*h, r+2*h+1, r+2*h, r+2*h+1, r+8+2*h, r+9+2*h, r+2*h, r+2*h+1, r+2*h, r+2*h+1, T+2*h, T+2*h+1))
        B2 += IL("buffer_store_dwordx4 v[%d:%d], v50, s[%d:%d], s%d offen" % (r, r+3, SO, SO+3, 84+i))
        blocks.append((B, B2))
    for k in range(len(blocks[0][0])):
        for i in range(4): E.add(blocks[i][0][k])
    E.add(Wait(lgkm_all=True))
    E("s_barrier")
    if stamp: E("s_memrealtime s[30:31]")
    for i in range(4):
        E("v_add_u32 v46, %d, v11\nv_and_b32 v47, 15, v46\nv_xor_b32 v47, v47, v12\nv_lshlrev_b32 v47, 4, v47\nv_lshl_add_u32 v%d, v46, 8, v47\nv_add_u32 v%d, 65536, v%d" % (4*i, 56+i, 60+i, 56+i))
    for i in range(4):
        for pw in range(4):
            r = BUF + (i*4+pw)*4
            E("ds_read_b128 v[%d:%d], v%d offset:%d" % (r, r+3, (56 if pw < 2 else 60)+i, (pw & 1)*32768))
    E("s_lshl_b32 s%d, s%d, 8\nv_lshlrev_b32 v50, 11, v13\nv_lshl_add_u32 v50, v12, 4, v50\nv_add_u32 v50, s%d, v50" % (sT0, sNT, sT0))
    E("s_mov_b32 s84, 0\ns_movk_i32 s85, 8192\ns_movk_i32 s86, 16384\ns_movk_i32 s87, 24576")
    for i in range(4): E.extend(blocks[i][1])
    txt += render(finalize(M.ins))
    return txt
```

```python
from common import *
from p2d import I, IL, vP0, vP1, vR0, vR1, vC, vD, SWD, SC, sWOF, sLB, sCOF, sTa, sTb, flag_store, WS_FL
ACC = 64; AB = 128; WB = 224
RB = [0, 24576, 49152, 90112]
sS, sPq = 100, 101
def AW(slot, a): return 8*slot + 4*a
def U1(i):
    j, c = i >> 1, i & 1
    if j < 11: return 3*j + 2*c
    return 2*j + 11 + c
def setup(role, sJ, sRGP, P):
    L = []
    a, b = 26, 4
    base0, base1 = RB[2*role], RB[2*role+1]
    L += IL("s_mul_i32 s%d, %s, %d\ns_add_u32 s%d, s%d, %d" % (sLB, sRGP, base1 - base0, sLB, sLB, base0))
    L += IL("v_lshrrev_b32 v%d, 3, v1\nv_bfe_u32 v%d, v1, 4, 1\nv_lshlrev_b32 v%d, 2, v%d\nv_and_b32 v%d, 7, v1\nv_xor_b32 v%d, v%d, v%d\nv_lshlrev_b32 v%d, 4, v%d\nv_lshl_add_u32 v%d, v%d, 10, v%d" % (a, b, b, b, vP1, b, b, vP1, b, b, vP0, a, b))
    L += IL("v_add_u32 v%d, %d, v%d" % (vP1, 8192 - 1024, vP0))
    L += IL("s_mov_b32 s%d, s%d\ns_mov_b32 s%d, s%d\ns_mov_b32 s%d, %d\ns_mov_b32 s%d, 0x20000" % (SWD, P['wd'], SWD+1, P['wd']+1, SWD+2, 1376*1024, SWD+3))
    L += IL("s_lshl_b32 s%d, %s, 10\ns_lshl_b32 s%d, %s, 11" % (sS, sRGP, sPq, sRGP))
    L += IL("s_and_b32 s%d, %s, 7\ns_lshl_b32 s%d, s%d, 7\ns_lshl_b32 s%d, %s, 14\ns_add_u32 s%d, s%d, s%d" % (sTa, sJ, sWOF, sTa, sTb, sRGP, sWOF, sWOF, sTb))
    return L
def setup2(role, sJ, sRGP, P):
    L = []
    a, b = 26, 4
    L += IL("v_bfe_u32 v%d, v1, 2, 2\nv_bfe_u32 v%d, v1, 5, 1\nv_lshl_add_u32 v%d, v%d, 2, v%d\nv_lshlrev_b32 v%d, 7, v%d" % (a, b, a, b, a, a, a))
    L += IL("v_bfe_u32 v%d, v1, 4, 1\nv_lshlrev_b32 v%d, 1, v%d\nv_bfe_u32 v%d, v1, 1, 1\nv_add_u32 v%d, v%d, v%d\nv_bfe_u32 v%d, v1, 3, 1\nv_lshlrev_b32 v%d, 2, v%d\nv_xor_b32 v%d, v%d, v%d" % (b, b, b, vR1, b, b, vR1, vR1, vR1, vR1, b, b, vR1))
    L += IL("v_lshl_add_u32 v%d, v%d, 4, v%d\nv_and_b32 v%d, 1, v1\nv_lshl_add_u32 v%d, v%d, 3, v%d\nv_add_u32 v%d, s%d, v%d\nv_xor_b32 v%d, 64, v%d" % (a, b, a, b, a, b, a, vR0, sLB, a, vR1, vR0))
    L.append(IL("s_cmp_eq_u32 %s, 1\ns_cselect_b32 s%d, s%d, s%d\ns_cselect_b32 s%d, s%d, s%d" % (sRGP, SC, P['cim'], P['cre'], SC+1, P['cim']+1, P['cre']+1)))
    L += IL("s_mov_b32 s%d, %d\ns_mov_b32 s%d, 0x20000" % (SC+2, 512*1024, SC+3))
    L += IL("v_and_b32 v%d, 7, v1\nv_lshrrev_b32 v%d, 4, v1\nv_xor_b32 v%d, v%d, v%d\nv_lshlrev_b32 v%d, 4, v%d\nv_lshrrev_b32 v%d, 3, v1\nv_lshl_add_u32 v%d, v%d, 10, v%d" % (b, a, b, b, a, b, b, a, vC[0], a, b))
    L += IL("v_xor_b32 v%d, 64, v%d\nv_add_u32 v%d, 14336, v%d\nv_add_u32 v%d, %d, v%d\nv_add_u32 v%d, 7168, v%d" % (vC[1], vC[0], vC[2], vC[0], vC[3], 14336+7168, vC[1], vC[1], vC[1]))
    L += IL("s_and_b32 s%d, %s, 7\ns_lshl_b32 s%d, s%d, 16\ns_add_u32 s%d, s%d, %d" % (sTa, sJ, sCOF, sTa, sCOF, sCOF, 0 if role == 1 else 5*128))
    L += IL("v_and_b32 v%d, 31, v1\nv_lshrrev_b32 v%d, 5, v1\nv_bfe_u32 v%d, v%d, 1, 3\nv_lshlrev_b32 v%d, 7, v%d" % (a, b, vD[3], a, a, a))
    for k in range(3):
        L += IL("v_or_b32 v%d, %d, v%d\nv_xor_b32 v%d, v%d, v%d\nv_lshl_add_u32 v%d, v%d, 4, v%d" % (vD[k], 2*k, b, vD[k], vD[k], vD[3], vD[k], vD[k], a))
    L += IL("v_or_b32 v%d, 6, v%d\nv_xor_b32 v%d, v%d, v%d\nv_lshl_add_u32 v%d, v%d, 4, v%d" % (b, b, vD[3], b, vD[3], vD[3], vD[3], a))
    for k in range(4): L += IL("v_add_u32 v%d, s%d, v%d" % (vD[k], sLB, vD[k]))
    return L
def dma_f(unit, off, tag):
    g = IL("s_add_u32 s%d, s%d, %d\ns_add_u32 m0, s%d, %d" % (sTa, sWOF, unit*32768, sLB, off))
    g += [I("buffer_load_dwordx4 v%d, s[%d:%d], s%d offen lds" % (vP0, SWD, SWD+3, sTa), tag)]
    return [g, [I("buffer_load_dwordx4 v%d, s[%d:%d], s%d offen offset:1024 lds" % (vP1, SWD, SWD+3, sTa), tag)]]
def dma_s(off, tag):
    G = []
    for h in range(2):
        pre = IL("s_add_u32 m0, s%d, %d" % (sLB, off + h*4096))
        if h == 1: pre += IL("s_add_u32 s%d, s%d, 32768" % (sTb, sCOF))
        so = sCOF if h == 0 else sTb
        for i in range(4):
            ins = I("buffer_load_dwordx4 v%d, s[%d:%d], s%d offen offset:%d lds" % (vC[i], SC, SC+3, so, 1024*i), tag)
            G.append((pre if i == 0 else []) + [ins] + (IL("s_add_u32 s%d, s%d, 128" % (sCOF, sCOF)) if (h == 1 and i == 3) else []))
    return G
def rd_f(slot, off):
    L = []
    for a, v in ((0, vR0), (1, vR1)):
        r = AW(slot, a)
        L.append(I("ds_read_b64_tr_b16 a[%d:%d], v%d offset:%d" % (r, r+1, v, off)))
        L.append(I("ds_read_b64_tr_b16 a[%d:%d], v%d offset:%d" % (r+2, r+3, v, off+1024)))
    return L
def rd_s(slot0, off):
    L = []
    for k in range(4):
        for a in range(2):
            r = AW(slot0 + k, a)
            L.append(I("ds_read_b128 a[%d:%d], v%d offset:%d" % (r, r+3, vD[k], off + a*4096)))
    return L
def first_dma(role):
    d = []
    if role == 1:
        for i in range(16): d += dma_f(U1(i), i*2048, 'w1')
    else:
        for j in range(11): d += dma_f(3*j+1, j*2048, 'w1')
    return d

def p2_role(role, sM, sJ, sRGP, sW, P, SWS, sNON, SLOW, a2ld=" sc1", D=12, stamp=False):
    SA0, SA1, SXo, SDS, SO, SST = 52, 56, 64, 68, 72, 40
    sMT, sNT, sAOF, sT0, sT1 = 88, 89, 90, 92, 93
    lab = "L_f%d" % role
    M = Stream()
    M("v_cmp_gt_u32 vcc, 32, v1\nv_cndmask_b32 v47, 0, -1, vcc\nv_and_b32 v46, 31, v1\nv_lshlrev_b32 v46, 3, v46\ns_lshl_b32 s95, %s, 8\ns_add_u32 s95, s95, %d" % (sM, WS_FL + (0 if role == 1 else 0x2000)))
    def poll(tag, vd):
        L = [Wait(vm_tag=tag)]
        chk = ["v_xor_b32 v%d, s%d, v%d" % (vd, sNON, vd), "v_xor_b32 v%d, s%d, v%d" % (vd+1, sNON, vd+1), "v_or_b32 v%d, v%d, v%d" % (vd, vd, vd+1), "v_cmp_ne_u32 vcc, 0, v%d" % vd]
        L += [I(x) for x in chk] + IL("s_nop 1\ns_cbranch_vccnz %s_%s_slow\n%s_%s_ok:" % (lab, tag, lab, tag))
        SLOW.extend(["%s_%s_slow:" % (lab, tag), "s_mov_b32 s94, 400000", "%s_%s_spin:" % (lab, tag), "s_sleep 1",
                     "buffer_load_dwordx2 v[%d:%d], v46, s[%d:%d], s95 offen sc1" % (vd, vd+1, SWS, SWS+3), "s_waitcnt vmcnt(0)"] + chk +
                    ["s_nop 4", "s_sub_u32 s94, s94, 1", "s_cmp_eq_u32 s94, 0", "s_cbranch_scc1 %s_%s_ok" % (lab, tag), "s_cbranch_vccnz %s_%s_spin" % (lab, tag), "s_branch %s_%s_ok" % (lab, tag)])
        return L
    M("buffer_load_dwordx2 v[48:49], v46, s[%d:%d], s95 offen sc1" % (SWS, SWS+3), 'fa')
    if role == 1:
        for i in range(16): M.extend(rd_f(i, i*2048))
        M.add(Wait(lgkm_all=True))
        for i in range(16, 32): M.extend(flat(dma_f(U1(i), (i-16)*2048, 'w1b')))
        items = [('f', U1(i), ('a', i)) for i in range(32)] + [('s', g, k, ('l', g*8192)) for g in range(5) for k in range(4)]
        ncls1 = 32
    else:
        for j in range(11): M.extend(rd_f(j, j*2048))
        M.add(Wait(lgkm_all=True))
        for g in range(3): M.extend(flat(dma_s(g*8192, 'w2')))
        items = [('f', 3*j+1, ('a', j)) for j in range(11)] + [('s', 5+g, k, ('l', g*8192)) for g in range(3) for k in range(4)]
        ncls1 = 0
    N = len(items)
    M("s_lshr_b32 s%d, %s, 3\ns_lshl_b32 s%d, %s, 1\ns_add_u32 s%d, s%d, s%d\ns_and_b32 s%d, %s, 7" % (sT0, sJ, sMT, sM, sMT, sMT, sT0, sNT, sJ))
    M("s_mul_i32 s%d, s%d, %d" % (sT0, sMT, 2*RG_BYTES))
    srd(M, SA0, P['ws'], RG_BYTES, "s%d" % sT0)
    M("s_add_u32 s%d, s%d, %d" % (sT0, sT0, RG_BYTES))
    srd(M, SA1, P['ws'], RG_BYTES, "s%d" % sT0)
    M("v_lshlrev_b32 v8, 4, v1")
    M.extend(poll('fa', 48))
    def a_loads(n):
        it = items[n]; r = AB + 8*(n % D)
        L = []
        if role == 1 and n == ncls1: L += poll('fb', 50)
        if it[0] == 'f': L += IL("s_add_u32 s%d, s%d, %d" % (sAOF, sS, it[1]*2048))
        else: L += IL("s_add_u32 s%d, s%d, %d" % (sAOF, sPq, 86*1024 + it[1]*8192 + (it[2] >> 1)*4096 + (it[2] & 1)*1024))
        L += IL("buffer_load_dwordx4 v[%d:%d], v8, s[%d:%d], s%d offen%s\nbuffer_load_dwordx4 v[%d:%d], v8, s[%d:%d], s%d offen%s" % (r, r+3, SA0, SA0+3, sAOF, a2ld, r+4, r+7, SA1, SA1+3, sAOF, a2ld), ('A', n))
        return L
    for n in range(min(D, N)): M.extend(a_loads(n))
    if role == 1:
        M.add(Wait(vm_tag='w1b'))
        for i in range(16, 32): M.extend(rd_f(i, (i-16)*2048))
        M.add(Wait(lgkm_all=True))
        for g in range(5): M.extend(flat(dma_s(g*8192, 'w2')))
        M("s_add_u32 s95, s95, 0x2000")
    M("v_lshrrev_b32 v11, 4, v1\ns_lshl_b32 s%d, %s, 4\nv_add_u32 v11, s%d, v11" % (sT0, sW, sT0))
    M("v_and_b32 v12, 15, v1\ns_lshl_b32 s%d, s%d, 6\nv_add_u32 v13, s%d, v11" % (sT0, sMT, sT0))
    M("s_lshl_b32 s%d, s%d, 7\nv_lshlrev_b32 v14, 10, v13\nv_lshl_add_u32 v14, v12, 3, v14\nv_add_u32 v14, s%d, v14" % (sT0, sNT, sT0))
    M("v_lshlrev_b32 v17, 4, v13\nv_lshlrev_b32 v26, 3, v12\nv_add_u32 v26, s%d, v26" % sT0)
    srd(M, SXo, P['x'], 2048*1024); srd(M, SDS, P['dsk'], 1024); srd(M, SO, P['out'], 2048*2048); srd(M, SST, P['ws'], 2048*16, WS_ST)
    XR, SR, DR = 28, 36, 44
    M("s_mov_b32 s84, 0\ns_movk_i32 s85, 4096\ns_movk_i32 s86, 8192\ns_movk_i32 s87, 12288")
    for i in range(4): M("buffer_load_dwordx2 v[%d:%d], v14, s[%d:%d], s%d offen" % (XR+2*i, XR+2*i+1, SXo, SXo+3, 84+i))
    M("buffer_load_dwordx2 v[%d:%d], v26, s[%d:%d], 0 offen" % (DR, DR+1, SDS, SDS+3))
    for i in range(4):
        M("buffer_load_dword v%d, v17, s[%d:%d], 0 offen offset:%d sc1\nbuffer_load_dword v%d, v17, s[%d:%d], 0 offen offset:%d sc1" % (SR+2*i, SST, SST+3, 64*i, SR+2*i+1, SST, SST+3, 64*i+8))
    def wsrc(n):
        w = items[n][-1]
        if w[0] == 'a': return [("a[%d:%d]" % (AW(w[1], a), AW(w[1], a)+3)) for a in range(2)]
        b = WB + 8*(n & 1)
        return [("v[%d:%d]" % (b+4*a, b+4*a+3)) for a in range(2)]
    def lds_w(n):
        it = items[n]; w = it[-1]
        if w[0] == 'l':
            b = WB + 8*(n & 1)
            return [I("ds_read_b128 v[%d:%d], v%d offset:%d" % (b+4*a, b+4*a+3, vD[it[2]], w[1] + a*4096)) for a in range(2)]
        return []
    firstl = [n for n in range(N) if items[n][-1][0] == 'l'][0]
    fb_issue = max(0, ncls1 - D - 4)
    for n in range(N):
        if role == 1 and n == fb_issue: M("buffer_load_dwordx2 v[50:51], v46, s[%d:%d], s95 offen sc1" % (SWS, SWS+3), 'fb')
        if n + 1 == firstl: M.add(Wait(vm_tag='w2'))
        r = AB + 8*(n % D)
        ws_ = wsrc(n)
        for a in range(2):
            for bb in range(2):
                acc = ACC + (a*2+bb)*16
                c = "0" if n == 0 else "v[%d:%d]" % (acc, acc+15)
                M("v_mfma_f32_32x32x16_bf16 v[%d:%d], %s, v[%d:%d], %s" % (acc, acc+15, ws_[a], r+4*bb, r+4*bb+3, c))
                if a == 0 and bb == 0 and n + 1 < N: M.extend(lds_w(n+1))
        if n + D < N: M.extend(a_loads(n + D))
    if stamp: M("s_memrealtime s[22:23]")
    M("v_and_b32 v46, 31, v1\nv_lshrrev_b32 v47, 5, v1\nv_and_b32 v48, 15, v1\nv_xor_b32 v48, v48, v47\nv_lshlrev_b32 v48, 4, v48\nv_lshlrev_b32 v49, 8, v46\nv_add_u32 v49, s%d, v49" % sLB)
    for a in range(2):
        for g in range(4):
            M("v_xor_b32 v50, %d, v48\nv_add_u32 v%d, v49, v50" % ((8*a+2*g) << 4, 52 + a*4 + g))
    M.add(Wait(lgkm_all=True))
    for a in range(2):
        for bb in range(2):
            acc = ACC + (a*2+bb)*16
            for g in range(4):
                M("ds_write_b128 v%d, v[%d:%d] offset:%d" % (52+a*4+g, acc+4*g, acc+4*g+3, bb*8192))
    return M.ins

def p2_final(sNT_expr=None):
    SO = 72; sNT = 89; sT0 = 92
    XR, SR, DR = 28, 36, 44
    BUF = AB
    E = Stream()
    E("s_mov_b32 s88, 0xffff0000")
    E("v_lshlrev_b32 v2, 16, v%d\nv_and_b32 v3, s88, v%d\nv_lshlrev_b32 v4, 16, v%d\nv_and_b32 v5, s88, v%d" % (DR, DR, DR+1, DR+1))
    blocks = []
    for i in range(4):
        B = []
        r = BUF + i*16
        x0 = XR+2*i; mean = SR+2*i; inv = SR+2*i+1
        T = 192 + i*12
        B += IL("v_lshlrev_b32 v%d, 16, v%d\nv_and_b32 v%d, s88, v%d\nv_lshlrev_b32 v%d, 16, v%d\nv_and_b32 v%d, s88, v%d" % (T, x0, T+1, x0, T+2, x0+1, T+3, x0+1))
        for e in range(4): B += IL("v_sub_f32 v%d, v%d, v%d" % (T+4+e, T+e, mean))
        def rnd(a, b, tmp):
            return IL("v_cvt_pk_bf16_f32 v%d, v%d, v%d\nv_lshlrev_b32 v%d, 16, v%d\nv_and_b32 v%d, s88, v%d" % (tmp, a, b, a, tmp, b, tmp))
        B += rnd(T+4, T+5, T+8) + rnd(T+6, T+7, T+9)
        for e in range(4): B += IL("v_mul_f32 v%d, v%d, v%d" % (T+4+e, T+4+e, inv))
        B += rnd(T+4, T+5, T+8) + rnd(T+6, T+7, T+9)
        for e in range(4): B += IL("v_mul_f32 v%d, v%d, v%d" % (T+4+e, T+4+e, 2+e))
        B += rnd(T+4, T+5, T+8) + rnd(T+6, T+7, T+9)
        B += IL("v_pk_add_f32 v[%d:%d], v[%d:%d], v[%d:%d]\nv_pk_add_f32 v[%d:%d], v[%d:%d], v[%d:%d]" % (T, T+1, T, T+1, T+4, T+5, T+2, T+3, T+2, T+3, T+6, T+7))
        B2 = []
        for h in range(2):
            B2 += IL("v_pk_add_f32 v[%d:%d], v[%d:%d], v[%d:%d]\nv_pk_add_f32 v[%d:%d], v[%d:%d], v[%d:%d]" % (r+2*h, r+2*h+1, r+2*h, r+2*h+1, r+4+2*h, r+5+2*h, r+8+2*h, r+9+2*h, r+8+2*h, r+9+2*h, r+12+2*h, r+13+2*h))
        for h in range(2):
            B2 += IL("v_pk_add_f32 v[%d:%d], v[%d:%d], v[%d:%d]\nv_pk_add_f32 v[%d:%d], v[%d:%d], v[%d:%d]" % (r+2*h, r+2*h+1, r+2*h, r+2*h+1, r+8+2*h, r+9+2*h, r+2*h, r+2*h+1, r+2*h, r+2*h+1, T+2*h, T+2*h+1))
        B2 += IL("buffer_store_dwordx4 v[%d:%d], v50, s[%d:%d], s%d offen" % (r, r+3, SO, SO+3, 84+i))
        blocks.append((B, B2))
    for k in range(len(blocks[0][0])):
        for i in range(4): E.add(blocks[i][0][k])
    E("s_waitcnt lgkmcnt(0)")
    E("s_barrier")
    for i in range(4):
        E("v_add_u32 v46, %d, v11\nv_and_b32 v47, 15, v46\nv_xor_b32 v47, v47, v12\nv_lshlrev_b32 v47, 4, v47\nv_lshl_add_u32 v%d, v46, 8, v47\nv_add_u32 v%d, %d, v%d" % (4*i, 56+i, 60+i, RB[3], 56+i))
    for i in range(4):
        for pw in range(4):
            r = BUF + (i*4+pw)*4
            if pw < 3: E("ds_read_b128 v[%d:%d], v%d offset:%d" % (r, r+3, 56+i, RB[pw]))
            else: E("ds_read_b128 v[%d:%d], v%d" % (r, r+3, 60+i))
    E("s_lshl_b32 s%d, s%d, 8\nv_lshlrev_b32 v50, 11, v13\nv_lshl_add_u32 v50, v12, 4, v50\nv_add_u32 v50, s%d, v50" % (sT0, sNT, sT0))
    E("s_mov_b32 s84, 0\ns_movk_i32 s85, 8192\ns_movk_i32 s86, 16384\ns_movk_i32 s87, 24576")
    for i in range(4): E.extend(blocks[i][1])
    return E.ins
```

```python
from common import *
from p1e import gen_p1
import sys
acq = False
a2 = '' if len(sys.argv) > 3 else ' sc1'
cpf = int(sys.argv[2]) if len(sys.argv) > 2 else 0
st = int(sys.argv[1]) if len(sys.argv) > 1 else 0
o = header_comments()
o.append("; @launch grid=(256,1,1) block=(256,1,1) lds=163840")
o += ['.amdgcn_target "amdgcn-amd-amdhsa--gfx950"', ".text"]
t = "\n".join(o) + "\n" + gen_p1(KBASE + "_kernel", fused=6, a2mod=" sc1", stamp=st, acq=acq, codepf=cpf, a2ld2=a2)
open("f6k%s.s" % ((("s%d" % st) if st else "") + ("c" if cpf else "") + ("p" if a2 == "" else "")), "w").write(t)
```

```python
from common import *
import p2c, p2d, p2e
import struct
def f2u(x): return struct.unpack('<I', struct.pack('<f', x))[0]
LOG2E = 1.4426950408889634
GC0 = -2.0 * LOG2E * 0.7978845608028654
GC1 = GC0 * 0.044715

M0 = 131072
CSL = M0; INVL = M0 + 16384; SEG = M0 + 16896; CSR = M0 + 18944; NONL = M0 + 19456
LDS_BYTES = 163840
WS_AGR = 0x10000; WS_CS = 0x30000; WS_ZR = 0x40000; WS_FL = 0x60000; WSM_BYTES = 0x70000
vNK = [5, 6, 7, 8]; vKN = [9, 10, 11, 12]; vK2 = vKN; vW = [13, 14, 15, 16]
vT0, vT1 = 17, 18
vXA = [19, 20, 21, 22]; vBA = [23, 24, 25, 26]
vAO = 27
vK0 = [28, 29]; vK1 = [30, 31]; vS2 = [32, 33]
vT2a, vT2b = 34, 35
XAUG = [36, 40]; WAUG = [44, 48]
vLr, vLi, vL16r, vL16i, vL128r, vL128i, vcr, vci = range(52, 60)
vF = [(60, 61), (62, 63)]
vnLi, vnL16i, vnci = 13, 14, 15
U0 = 64
WF = 96
ACCA = 128; ACCB = 192
def acca(r, acc): return ACCA + 32*r + 16*acc
def accb(r, acc): return ACCB + 32*r + 16*acc
def XF(r, ks): return 128*r + 4*ks
sM, sJ, sW, sRGP, sCG = 3, 4, 5, 6, 7
P_X, P_LRE, P_LIM, P_BRE, P_BIM, P_CRE, P_CIM, P_LDT = 8, 10, 12, 14, 16, 18, 20, 22
P_DSK, P_BX, P_WG, P_WU, P_WD, P_OUT, P_DBG, P_WS = 24, 26, 28, 30, 32, 34, 36, 38
SX, SW1, SW2, SA0, SA1, SWS, SDBG, SC0, SP = 40, 44, 48, 52, 56, 60, 64, 68, 72
sXOFF, sWOFF, sWSTR, sW2OFF, sLDSW, sUOFF1, sUOFF2, sT0, sT1, sNON, sHIM, sRGPF = range(76, 88)
sHH = 88; sAGM = 90; sM0, sM1, sSPIN = 92, 93, 94
sUA, sUB, sUC = 95, 96, 97
sXK, sXK2, sDO = 101, 100, 99

def I(text, tag=None): return Ins(text, tag)
def IL(text, tag=None): return [Ins(l.strip(), tag) for l in text.strip().split("\n") if l.strip()]
def bf16r(lst, x, t):
    lst.append(I("v_cvt_pk_bf16_f32 v%d, v%d, v%d" % (t, x, x)))
    lst.append(I("v_lshlrev_b32 v%d, 16, v%d" % (x, t)))
def cmul_into(lst, dr, di, ar, ai, br, bi):
    lst.append(I("v_mul_f32 v%d, v%d, v%d" % (dr, ar, br)))
    lst.append(I("v_mul_f32 v%d, v%d, v%d" % (di, ar, bi)))
    lst.append(I("v_fma_f32 v%d, -v%d, v%d, v%d" % (dr, ai, bi, dr)))
    lst.append(I("v_fmac_f32 v%d, v%d, v%d" % (di, ai, br)))
def csq(lst, r, i, t):
    lst.append(I("v_mul_f32 v%d, v%d, v%d" % (t, i, i)))
    lst.append(I("v_mul_f32 v%d, v%d, v%d" % (i, r, i)))
    lst.append(I("v_fma_f32 v%d, v%d, v%d, -v%d" % (r, r, r, t)))
    lst.append(I("v_add_f32 v%d, v%d, v%d" % (i, i, i)))
def cacc(lst, sr, si, lr, li, nli, pr, pi):
    lst.append(I("v_fmac_f32 v%d, v%d, v%d" % (sr, lr, pr)))
    lst.append(I("v_fmac_f32 v%d, v%d, v%d" % (si, lr, pi)))
    lst.append(I("v_fmac_f32 v%d, v%d, v%d" % (sr, nli, pi)))
    lst.append(I("v_fmac_f32 v%d, v%d, v%d" % (si, li, pr)))

A2MOD = ""
def ffn_epilogue(r, G, U, suoff, tt, SA):
    L = []
    for g in range(4):
        R = [4*g + jj for jj in range(4)]
        for jj, x in enumerate(R): L.append(I("v_mul_f32 v%d, v%d, v%d" % (tt[jj], G+x, G+x)))
        for jj, x in enumerate(R): L.append(I("v_fma_f32 v%d, v%d, v%d, v%d" % (tt[jj], tt[jj], vK1[r], vK0[r])))
        for jj, x in enumerate(R): L.append(I("v_mul_f32 v%d, v%d, v%d" % (tt[jj], tt[jj], G+x)))
        for jj, x in enumerate(R): L.append(I("v_exp_f32 v%d, v%d" % (tt[jj], tt[jj])))
        for jj, x in enumerate(R): L.append(I("v_mul_f32 v%d, v%d, v%d" % (U+x, U+x, G+x)))
        for jj, x in enumerate(R): L.append(I("v_fma_f32 v%d, v%d, v%d, v%d" % (tt[jj], tt[jj], vS2[r], vS2[r])))
        for jj, x in enumerate(R): L.append(I("v_rcp_f32 v%d, v%d" % (tt[jj], tt[jj])))
        for jj, x in enumerate(R): L.append(I("v_mul_f32 v%d, v%d, v%d" % (U+x, U+x, tt[jj])))
        base = G + 8*(g >> 1) + 2*(g & 1)
        L.append(I("v_cvt_pk_bf16_f32 v%d, v%d, v%d" % (base, U+4*g, U+4*g+1)))
        L.append(I("v_cvt_pk_bf16_f32 v%d, v%d, v%d" % (base+1, U+4*g+2, U+4*g+3)))
        if g & 1:
            q = G + 8*(g >> 1)
            L.append(I("buffer_store_dwordx4 v[%d:%d], v%d, s[%d:%d], s%d offen offset:%d%s" % (q, q+3, vAO, SA, SA+3, suoff, 1024*(g >> 1), A2MOD), 'a2'))
    return L
def ffn_epilogue_pk(r, G, U, suoff, tt, SA, KP):
    L = []
    k01, s2 = KP
    for g in range(4):
        P2 = [(4*g, tt[0]), (4*g+2, tt[2])]
        for x, t in P2: L.append(I("v_pk_mul_f32 v[%d:%d], v[%d:%d], v[%d:%d]" % (t, t+1, G+x, G+x+1, G+x, G+x+1)))
        for x, t in P2: L.append(I("v_pk_fma_f32 v[%d:%d], v[%d:%d], v[%d:%d], v[%d:%d] op_sel:[0,1,0] op_sel_hi:[1,1,0]" % (t, t+1, t, t+1, k01, k01+1, k01, k01+1)))
        for x, t in P2: L.append(I("v_pk_mul_f32 v[%d:%d], v[%d:%d], v[%d:%d]" % (t, t+1, t, t+1, G+x, G+x+1)))
        for x, t in P2:
            L.append(I("v_exp_f32 v%d, v%d" % (t, t))); L.append(I("v_exp_f32 v%d, v%d" % (t+1, t+1)))
        for x, t in P2: L.append(I("v_pk_mul_f32 v[%d:%d], v[%d:%d], v[%d:%d]" % (U+x, U+x+1, U+x, U+x+1, G+x, G+x+1)))
        for x, t in P2: L.append(I("v_pk_fma_f32 v[%d:%d], v[%d:%d], v[%d:%d], v[%d:%d] op_sel_hi:[1,0,0]" % (t, t+1, t, t+1, s2, s2+1, s2, s2+1)))
        for x, t in P2:
            L.append(I("v_rcp_f32 v%d, v%d" % (t, t))); L.append(I("v_rcp_f32 v%d, v%d" % (t+1, t+1)))
        for x, t in P2: L.append(I("v_pk_mul_f32 v[%d:%d], v[%d:%d], v[%d:%d]" % (U+x, U+x+1, U+x, U+x+1, t, t+1)))
        base = G + 8*(g >> 1) + 2*(g & 1)
        L.append(I("v_cvt_pk_bf16_f32 v%d, v%d, v%d" % (base, U+4*g, U+4*g+1)))
        L.append(I("v_cvt_pk_bf16_f32 v%d, v%d, v%d" % (base+1, U+4*g+2, U+4*g+3)))
        if g & 1:
            q = G + 8*(g >> 1)
            L.append(I("buffer_store_dwordx4 v[%d:%d], v%d, s[%d:%d], s%d offen offset:%d%s" % (q, q+3, vAO, SA, SA+3, suoff, 1024*(g >> 1), A2MOD), 'a2'))
    return L
def tail_ffn(suoff, SA0, SA1):
    L = []
    for r in range(2):
        b = XAUG[r]
        L.append(I("v_mov_b32 v%d, v%d" % (b, vK0[r]))); L.append(I("v_mov_b32 v%d, v%d" % (b+1, vK1[r])))
        L.append(I("v_mov_b32 v%d, v%d" % (b+2, vS2[r])))
    A = ffn_epilogue_pk(0, accb(0, 0), accb(0, 1), suoff, [44, 45, 46, 47], SA0, (XAUG[0], XAUG[0]+2))
    B = ffn_epilogue_pk(1, accb(1, 0), accb(1, 1), suoff, [48, 49, 50, 51], SA1, (XAUG[1], XAUG[1]+2))
    for a_, b_ in zip(A, B): L.append(a_); L.append(b_)
    return L

def gen_p1(name, stamp=0, dens0=(5, 6), dens1=(5, 4), a2mod="", rotmask=7, w2sched=(5, 6, 7, 8, 9, 10, 11, 12), fused=None, acq=False, codepf=0, a2ld2=" sc1", latec=False):
    global A2MOD
    A2MOD = a2mod
    SLOW = []
    RT = {0: 10, 2: 12, 4: 14}
    def ST(k):
        if stamp == 1: return [I("s_memtime s[%d:%d]" % (8+2*k, 9+2*k))]
        if stamp == 3 and k in RT: return [I("s_memrealtime s[%d:%d]" % (RT[k], RT[k]+1))]
        return []
    P = Stream()
    P("s_cmp_ge_u32 s2, 256\ns_cbranch_scc1 L_p1_end")
    P("s_load_dwordx16 s[8:23], s[0:1], 0\ns_load_dwordx16 s[24:39], s[0:1], 64")
    if stamp == 1: P("s_memrealtime s[0:1]\ns_memtime s[98:99]")
    if stamp == 3: P("s_memrealtime s[0:1]")
    P("v_lshrrev_b32 v1, 6, v0\nv_and_b32 v2, 31, v0\nv_readfirstlane_b32 s%d, v1\nv_and_b32 v1, 63, v0\nv_bfe_u32 v3, v0, 5, 1" % sW)
    if codepf:
        P("s_getpc_b64 s[%d:%d]" % (SC0, SC0+1))
        P("L_p1_pc:")
        P("s_bfe_u32 s%d, s2, 0x10003\ns_lshl_b32 s%d, s%d, 2\ns_add_u32 s%d, s%d, s%d\ns_lshl_b32 s%d, s%d, 13" % (sT0, sT0, sT0, sT0, sT0, sW, sT0, sT0))
        P("v_lshlrev_b32 v44, 7, v1\nv_add_u32 v44, s%d, v44\nv_min_u32 v44, %d, v44" % (sT0, codepf))
        P("v_mov_b32 v47, s%d\nv_add_co_u32 v46, vcc, s%d, v44\nv_addc_co_u32 v47, vcc, 0, v47, vcc" % (SC0+1, SC0))
        P("global_load_dword v255, v[46:47], off", 'cpf')
    P("s_and_b32 s3, s2, 1\ns_lshl_b32 s3, s3, 3\ns_bfe_u32 s%d, s2, 0x30003\ns_add_u32 s3, s3, s%d" % (sT0, sT0))
    P("s_bfe_u32 s4, s2, 0x20001\ns_lshl_b32 s4, s4, 2\ns_lshr_b32 s%d, s2, 6\ns_add_u32 s4, s4, s%d" % (sT0, sT0))
    P("v_and_b32 v46, 7, v1\nv_lshrrev_b32 v45, 4, v1\nv_xor_b32 v46, v46, v45\nv_lshlrev_b32 v46, 4, v46")
    P("v_lshrrev_b32 v45, 3, v1\nv_lshl_add_u32 v%d, v45, 10, v46" % vNK[0])
    P("v_xor_b32 v%d, 64, v%d" % (vNK[1], vNK[0]))
    P("v_add_u32 v%d, %d, v%d\nv_add_u32 v%d, %d, v%d" % (vNK[2], 14336, vNK[0], vNK[3], 14336+7168, vNK[1]))
    P("v_add_u32 v%d, 7168, v%d" % (vNK[1], vNK[1]))
    P("s_lshl_b32 s%d, s%d, 12" % (sLDSW, sW))
    P("s_lshl_b32 s%d, s3, 17\ns_lshl_b32 s%d, s%d, 15\ns_add_u32 s%d, s%d, s%d" % (sXOFF, sT0, sW, sXOFF, sXOFF, sT0))
    P("s_mov_b32 s%d, %d\ns_mov_b32 s%d, 0x20000" % (SX+2, 2048*1024, SX+3))
    P("v_lshrrev_b32 v45, 2, v1\ns_movk_i32 s%d, 2752\nv_mul_lo_u32 v45, v45, s%d\nv_and_b32 v46, 3, v1\nv_lshl_add_u32 v%d, v46, 4, v45" % (sT0, sT0, vKN[0]))
    for i in range(1, 4): P("v_add_u32 v%d, %d, v%d" % (vKN[i], 43008*i, vKN[0]))
    P("s_and_b32 s%d, s%d, 1\ns_lshr_b32 s%d, s%d, 1" % (sRGP, sW, sCG, sW))
    P("s_mul_i32 s%d, s4, 3\ns_add_u32 s%d, s%d, 1\ns_add_u32 s%d, s%d, 2" % (sUA, sUB, sUA, sUC, sUA))
    P("s_lshl_b32 s%d, s%d, 11" % (sUOFF2, sUB))
    P("s_cmp_lt_u32 s4, 11\ns_cbranch_scc1 L_p1_u")
    P("s_lshl_b32 s%d, s4, 1\ns_add_u32 s%d, s%d, 11\ns_add_u32 s%d, s%d, 1\ns_mov_b32 s%d, s%d\ns_mov_b32 s%d, 0x10000000" % (sUA, sUA, sUA, sUC, sUA, sUB, sUA, sUOFF2))
    P("L_p1_u:")
    P("s_and_b32 s%d, s3, %d\ns_lshl_b32 s%d, s%d, 7\ns_mov_b32 s%d, s%d" % (sXK, rotmask, sXK, sXK, sXK2, sXK))
    P("s_mov_b32 s%d, 0x20000" % (SW1+3))
    def dma(vo, S_, slot, tag, pre, post=[]):
        G = []
        g0 = [I(x) for x in pre] + [I("s_add_u32 m0, s%d, %d" % (sLDSW, slot*16384))]
        for i in range(4):
            ins = I("buffer_load_dwordx4 v%d, s[%d:%d], s%d offen offset:%d lds" % (vo[i], S_, S_+3, sDO, 1024*i), tag)
            if i == 0: G.append(g0 + [ins])
            elif i == 3: G.append([ins] + [I(x) for x in post])
            else: G.append([ins])
        return G
    def dma_x(slot, tag): return dma(vNK, SX, slot, tag, ["s_add_u32 s%d, s%d, s%d" % (sDO, sXOFF, sXK)])
    def dma_w(slot, tag): return dma(vW, SW1, slot, tag, ["s_mul_i32 s%d, s%d, s%d" % (sDO, sXK, sWSTR), "s_add_u32 s%d, s%d, s%d" % (sDO, sDO, sWOFF)],
                                     ["s_add_u32 s%d, s%d, 128" % (sXK, sXK), "s_and_b32 s%d, s%d, 1023" % (sXK, sXK)])
    def dma_w2(slot, tag): return dma(vK2, SW2, slot, tag, ["s_mul_i32 s%d, s%d, 1376" % (sDO, sXK2), "s_add_u32 s%d, s%d, s%d" % (sDO, sDO, sW2OFF)],
                                      ["s_add_u32 s%d, s%d, 128" % (sXK2, sXK2), "s_and_b32 s%d, s%d, 1023" % (sXK2, sXK2)])
    def w2slot(q): return q//2 if q % 2 == 0 else 4 + (q-1)//2
    P("s_waitcnt lgkmcnt(0)")
    P("s_mov_b32 s%d, s%d\ns_mov_b32 s%d, s%d" % (SX, P_X, SX+1, P_X+1))
    P.extend(flat(dma_x(0, ('C', 0))))
    P("s_cmp_lt_u32 s%d, 2\ns_cbranch_scc0 L_p1_wffn" % sW)
    P("s_cmp_eq_u32 s%d, 0\ns_cselect_b32 s%d, s%d, s%d\ns_cselect_b32 s%d, s%d, s%d" % (sW, SW1, P_BRE, P_BIM, SW1+1, P_BRE+1, P_BIM+1))
    P("s_mov_b32 s%d, %d\ns_movk_i32 s%d, 1\ns_lshl_b32 s%d, s4, 15" % (SW1+2, 512*1024, sWSTR, sWOFF))
    for i in range(4): P("v_mov_b32 v%d, v%d" % (vW[i], vNK[i]))
    P("s_branch L_p1_wdone\nL_p1_wffn:")
    P("s_cmp_eq_u32 s%d, 2\ns_cselect_b32 s%d, s%d, s%d\ns_cselect_b32 s%d, s%d, s%d" % (sW, SW1, P_WG, P_WU, SW1+1, P_WG+1, P_WU+1))
    P("s_mov_b32 s%d, %d\ns_movk_i32 s%d, %d\ns_lshl_b32 s%d, s%d, 6" % (SW1+2, 512*2752, sWSTR, 1376, sWOFF, sUA))
    for i in range(4): P("v_mov_b32 v%d, v%d" % (vW[i], vKN[i]))
    P("L_p1_wdone:")
    P.extend(flat(dma_w(4, ('C', 0))))
    srd(P, SDBG, P_DBG, 256)
    P("s_or_b32 s%d, s2, s%d\ns_cmp_lg_u32 s%d, 0\ns_cbranch_scc1 L_p1_nn" % (sT0, sW, sT0))
    P("s_memrealtime s[90:91]\ns_waitcnt lgkmcnt(0)\ns_or_b32 s90, s90, 1\nv_mov_b32 v44, s90")
    P("buffer_store_dword v44, off, s[%d:%d], 0 sc1\nL_p1_nn:" % (SDBG, SDBG+3))
    P.extend(flat(dma_x(1, ('C', 1)) + dma_w(5, ('C', 1))))
    P("v_lshlrev_b32 v47, 4, v1")
    P("s_lshl_b32 s%d, s3, 17\ns_lshl_b32 s%d, s4, 13\ns_add_u32 s%d, s%d, s%d\ns_lshl_b32 s%d, s%d, 11\ns_add_u32 s%d, s%d, s%d" % (sM0, sT0, sM0, sM0, sT0, sT0, sW, sM0, sM0, sT0))
    P("buffer_load_dwordx4 v[64:67], v47, s[%d:%d], s%d offen" % (SX, SX+3, sM0), 'p0s')
    P("buffer_load_dwordx4 v[68:71], v47, s[%d:%d], s%d offen offset:1024" % (SX, SX+3, sM0), 'p0s')
    P("s_lshr_b32 s%d, s3, 1" % sM0)
    P("s_and_b32 s%d, s3, 1\ns_lshl_b32 s%d, s%d, 2\ns_add_u32 s%d, s%d, s%d" % (sSPIN, sSPIN, sSPIN, sSPIN, sSPIN, sW))
    P("s_add_u32 m0, s%d, %d" % (sLDSW, CSL))
    P("s_cmp_lt_u32 s%d, 2\ns_cbranch_scc0 L_p1_c0ffn" % sM0)
    P("s_cmp_eq_u32 s%d, 0\ns_cselect_b32 s%d, s%d, s%d\ns_cselect_b32 s%d, s%d, s%d" % (sM0, SC0, P_BRE, P_BIM, SC0+1, P_BRE+1, P_BIM+1))
    P("s_mov_b32 s%d, %d\ns_mov_b32 s%d, 0x20000" % (SC0+2, 512*1024, SC0+3))
    P("s_lshl_b32 s%d, s4, 15\ns_lshl_b32 s%d, s%d, 7\ns_add_u32 s%d, s%d, s%d" % (sT0, sT1, sSPIN, sT0, sT0, sT1))
    for i in range(4): P("buffer_load_dwordx4 v%d, s[%d:%d], s%d offen offset:%d lds" % (vNK[i], SC0, SC0+3, sT0, 1024*i), 'p0c')
    P("s_branch L_p1_c0done\nL_p1_c0ffn:")
    P("s_bitcmp1_b32 s%d, 0\ns_cselect_b32 s%d, s%d, s%d\ns_cselect_b32 s%d, s%d, s%d" % (sM0, SC0, P_WU, P_WG, SC0+1, P_WU+1, P_WG+1))
    P("s_mov_b32 s%d, %d\ns_mov_b32 s%d, 0x20000" % (SC0+2, 512*2752, SC0+3))
    P("s_lshr_b32 s%d, s%d, 1" % (sT1, sM0))
    P("s_cmp_eq_u32 s%d, 1\ns_cselect_b32 s%d, s%d, s%d\ns_cmp_eq_u32 s%d, 2\ns_cselect_b32 s%d, s%d, s%d" % (sT1, sT0, sUA, sUC, sT1, sT0, sUB, sT0))
    P("s_lshl_b32 s%d, s%d, 6\ns_mul_i32 s%d, s%d, %d\ns_add_u32 s%d, s%d, s%d" % (sT0, sT0, sT1, sSPIN, 64*2752, sT0, sT0, sT1))
    for i in range(4): P("buffer_load_dwordx4 v%d, s[%d:%d], s%d offen offset:%d lds" % (vKN[i], SC0, SC0+3, sT0, 1024*i), 'p0c2')
    P("L_p1_c0done:")
    model_pre = [x for x in P.ins if getattr(x, 'tag', None) != 'p0c2' and not (x.op == 'buffer_store_dword')]

    Q = Stream()
    Q("s_lshl_b32 s%d, s4, 6\nv_lshl_add_u32 v44, v2, 1, s%d" % (sT0, sT0))
    Q("s_movk_i32 s%d, 1024\ns_mov_b32 s%d, 0x20000" % (SP+2, SP+3))
    for k, p in enumerate((P_LRE, P_LIM, P_LDT)):
        Q("s_mov_b32 s%d, s%d\ns_mov_b32 s%d, s%d\nbuffer_load_ushort v%d, v44, s[%d:%d], 0 offen" % (SP, p, SP+1, p+1, 88+k, SP, SP+3))
    Q("buffer_load_dword v91, off, s[%d:%d], 0 sc1" % (SDBG, SDBG+3), 'non')
    Q("v_bfe_u32 v4, v2, 2, 1\nv_lshlrev_b32 v4, 4, v4\nv_lshrrev_b32 v46, 3, v2\nv_lshl_add_u32 v4, v46, 2, v4\nv_and_b32 v46, 3, v2\nv_add_u32 v4, v4, v46")
    Q("v_bfe_u32 v46, v4, 1, 3\ns_lshl_b32 s%d, s%d, 13\nv_lshlrev_b32 v45, 7, v4\nv_add_u32 v45, s%d, v45" % (sT0, sRGP, sT0))
    for s in range(4):
        Q("v_or_b32 v44, %d, v3\nv_xor_b32 v44, v44, v46\nv_lshl_add_u32 v%d, v44, 4, v45" % (2*s, vXA[s]))
    Q("v_bfe_u32 v46, v2, 1, 3\nv_lshlrev_b32 v45, 7, v2")
    for s in range(4):
        Q("v_or_b32 v44, %d, v3\nv_xor_b32 v44, v44, v46\nv_lshl_add_u32 v%d, v44, 4, v45" % (2*s, 84+s))
        Q("v_add_u32 v%d, 65536, v%d" % (vBA[s], 84+s))
    Q("v_bfe_u32 v44, v1, 2, 2\nv_lshl_add_u32 v44, v3, 3, v44\nv_lshlrev_b32 v44, 6, v44")
    Q("v_bfe_u32 v45, v1, 4, 1\nv_lshl_add_u32 v44, v45, 5, v44\nv_and_b32 v45, 3, v1\nv_lshl_add_u32 v%d, v45, 3, v44" % vT0)
    Q("s_lshl_b32 s%d, s%d, 13\ns_add_u32 s%d, s%d, 65536\nv_add_u32 v%d, s%d, v%d" % (sT0, sCG, sT0, sT0, vT1, sT0, vT0))
    Q("s_mov_b32 s%d, 0\ns_mov_b32 s%d, -1\ns_mov_b32 s%d, 0xffff0000" % (sHH, sHH+1, sHIM))
    Q("s_cmp_eq_u32 s%d, 1\ns_cbranch_scc1 L_p1_role1" % sCG)

    def setup2():
        L = []
        L += IL("s_bitcmp1_b32 s%d, 1" % sW)
        g = IL("s_bitcmp1_b32 s%d, 1\ns_cselect_b32 s%d, s%d, s%d\ns_cselect_b32 s%d, s%d, s%d" % (sW, SW2, P_WU, P_WG, SW2+1, P_WU+1, P_WG+1))
        L = [g]
        L += IL("s_mov_b32 s%d, %d\ns_mov_b32 s%d, 0x20000" % (SW2+2, 512*2752, SW2+3))
        L += IL("s_lshl_b32 s%d, s%d, 6\ns_mul_i32 s%d, s%d, %d\ns_add_u32 s%d, s%d, s%d" % (sW2OFF, sUB, sT0, sRGP, 32*2752, sW2OFF, sW2OFF, sT0))
        L += IL("v_lshrrev_b32 v45, 3, v1\ns_movk_i32 s%d, 2752\nv_mul_lo_u32 v45, v45, s%d\nv_bfe_u32 v46, v1, 4, 1\nv_lshlrev_b32 v46, 2, v46\nv_and_b32 v44, 7, v1\nv_xor_b32 v46, v46, v44\nv_lshl_add_u32 v%d, v46, 4, v45" % (sT0, sT0, vK2[0]))
        for i in range(1, 4): L += IL("v_add_u32 v%d, %d, v%d" % (vK2[i], (8*2752-1024)*i, vK2[0]))
        L.append(IL("s_add_u32 s%d, s%d, %d\ns_addc_u32 s%d, s%d, 0" % (SWS, P_WS, WS_ST, SWS+1, P_WS+1)))
        L += IL("s_mov_b32 s%d, %d\ns_mov_b32 s%d, 0x20000" % (SWS+2, WSM_BYTES, SWS+3))
        L += IL("s_lshl_b32 s%d, s%d, 11" % (sUOFF1, sUA))
        L.append(IL("s_lshl_b32 s%d, s%d, 11\ns_cmp_eq_u32 s%d, 0\ns_cselect_b32 s%d, s%d, s%d" % (sT0, sUC, sCG, sUOFF2, sUOFF2, sT0)))
        L += IL("v_lshlrev_b32 v%d, 4, v4\nv_lshl_add_u32 v%d, v3, 9, v%d" % (vAO, vAO, vAO))
        L += IL("v_bfe_u32 v44, v1, 2, 2\nv_lshl_add_u32 v44, v3, 3, v44\nv_lshlrev_b32 v44, 7, v44")
        L += IL("v_bfe_u32 v45, v1, 4, 1\nv_lshlrev_b32 v45, 1, v45\nv_bfe_u32 v46, v1, 1, 1\nv_add_u32 v45, v45, v46\ns_lshl_b32 s%d, s%d, 2\nv_add_u32 v45, s%d, v45" % (sT0, sCG, sT0))
        L += IL("v_bfe_u32 v46, v1, 3, 1\nv_lshlrev_b32 v46, 2, v46\nv_xor_b32 v45, v45, v46\nv_lshl_add_u32 v44, v45, 4, v44\nv_and_b32 v45, 1, v1\nv_lshl_add_u32 v%d, v45, 3, v44\nv_add_u32 v%d, 65536, v%d" % (vT2a, vT2b, vT2a))
        L += IL("s_lshl_b32 s%d, s3, 2\ns_lshl_b32 s%d, s%d, 1\ns_add_u32 s%d, s%d, s%d\ns_mul_i32 s%d, s%d, %d" % (sT0, sT1, sRGP, sT0, sT0, sT1, sT0, sT0, RG_BYTES))
        L.append(IL("s_add_u32 s%d, s%d, s%d\ns_addc_u32 s%d, s%d, 0" % (SA0, P_WS, sT0, SA0+1, P_WS+1)))
        L.append(IL("s_add_u32 s%d, s%d, %d\ns_addc_u32 s%d, s%d, 0" % (SA1, SA0, RG_BYTES, SA1+1, SA0+1)))
        L += IL("s_mov_b32 s%d, %d\ns_mov_b32 s%d, 0x20000\ns_mov_b32 s%d, %d\ns_mov_b32 s%d, 0x20000" % (SA0+2, RG_BYTES, SA0+3, SA1+2, RG_BYTES, SA1+3))
        for b in XAUG + WAUG: L += IL("v_mov_b32 v%d, 0\nv_mov_b32 v%d, 0" % (b+2, b+3))
        return L
    def phase0_stats():
        L = []
        for r in range(4): L.append(I("v_mov_b32 v%d, 0" % (72+r)))
        for e in range(4):
            for row in range(2):
                x = 64 + 4*row + e; lo = 76 + 2*row; hi = 77 + 2*row
                L += IL("v_lshlrev_b32 v%d, 16, v%d\nv_and_b32 v%d, s%d, v%d" % (lo, x, hi, sHIM, x))
                L += IL("v_add_f32 v%d, v%d, v%d\nv_fmac_f32 v%d, v%d, v%d\nv_add_f32 v%d, v%d, v%d\nv_fmac_f32 v%d, v%d, v%d" % (72+2*row, 72+2*row, lo, 73+2*row, lo, lo, 72+2*row, 72+2*row, hi, 73+2*row, hi, hi))
        for mod in ("row_shr:1", "row_shr:2", "row_shr:4", "row_shr:8", "row_bcast:15 row_mask:0xa", "row_bcast:31 row_mask:0xc"):
            for r in range(4):
                if mod.startswith("row_shr"): L.append(I("v_add_f32_dpp v%d, v%d, v%d %s bound_ctrl:0" % (72+r, 72+r, 72+r, mod)))
                else: L.append(I("v_add_f32_dpp v%d, v%d, v%d %s" % (72+r, 72+r, 72+r, mod)))
        LL = [[], []]
        for row in range(2):
            mean, ex2, t = 72+2*row, 73+2*row, 76+row
            K = LL[row]
            K.append(I("v_mul_f32 v%d, 0x%x, v%d" % (mean, f2u(1/512.), mean)))
            K.append(I("v_mul_f32 v%d, 0x%x, v%d" % (ex2, f2u(1/512.), ex2)))
            K.append(I("v_fma_f32 v%d, -v%d, v%d, v%d" % (ex2, mean, mean, ex2)))
            K.append(I("v_max_f32 v%d, 0, v%d" % (ex2, ex2)))
            bf16r(K, mean, t); bf16r(K, ex2, t)
            K.append(I("v_add_f32 v%d, 0x%x, v%d" % (ex2, f2u(1e-5), ex2)))
            bf16r(K, ex2, t)
            K.append(I("v_sqrt_f32 v%d, v%d" % (ex2, ex2)))
            bf16r(K, ex2, t)
            K.append(I("v_rcp_f32 v%d, v%d" % (ex2, ex2)))
        for a_, b_ in zip(*LL): L.append(a_); L.append(b_)
        L += IL("v_mov_b32 v78, v75\nv_mov_b32 v76, v74\nv_mov_b32 v74, v73")
        return L
    def phase0_colsum(role):
        L = []
        L.append(Wait(vm_tag='p0c'))
        L += IL("v_mov_b32 v80, 0x3f803f80\nv_mov_b32 v81, v80\nv_mov_b32 v82, v80\nv_mov_b32 v83, v80")
        L += IL("s_add_u32 s%d, s%d, %d" % (sM0, sLDSW, CSL))
        L += IL("s_cmp_lt_u32 s3, 4\ns_cbranch_scc0 L_p1_c1ffn%d" % role)
        for s in range(4):
            L += IL("v_add_u32 v%d, s%d, v%d\nds_read_b128 v[%d:%d], v%d" % (84+s, sM0, 84+s, 192+4*s, 195+4*s, 84+s))
        L += IL("s_branch L_p1_c1done%d\nL_p1_c1ffn%d:" % (role, role))
        L += IL("v_add_u32 v84, s%d, v%d" % (sM0, vT0))
        for s in range(4):
            L += IL("ds_read_b64_tr_b16 v[%d:%d], v84 offset:%d\nds_read_b64_tr_b16 v[%d:%d], v84 offset:%d" % (192+4*s, 193+4*s, 1024*s, 194+4*s, 195+4*s, 1024*s+256))
        L += IL("L_p1_c1done%d:" % role)
        L += IL("s_waitcnt lgkmcnt(0)")
        for s in range(4):
            L += IL("v_mfma_f32_32x32x16_bf16 v[224:239], v[80:83], v[%d:%d], %s" % (192+4*s, 195+4*s, "0" if s == 0 else "v[224:239]"))
        return L
    def phase0_colsum_write():
        return IL("s_lshl_b32 s%d, s%d, 7\nv_lshlrev_b32 v84, 2, v2\nv_add_u32 v84, s%d, v84\nv_add_u32 v84, %d, v84\nds_write_b32 v84, v224" % (sM0, sW, sM0, CSR))

    def reads(lst, cg, g):
        p, ks = g // 32, g % 32
        t = g // 4; s = g % 4
        b = WF + 8*(g & 3)
        if p == 0:
            xs = t % 4; wsl = 4 + t % 4
            for r in range(2):
                lst.append(I("ds_read_b128 a[%d:%d], v%d offset:%d" % (XF(r, ks), XF(r, ks)+3, vXA[s], xs*16384 + r*4096)))
        else:
            wsl = w2slot(t-8)
        if p == 0 and cg == 0:
            for acc in range(2):
                lst.append(I("ds_read_b128 v[%d:%d], v%d offset:%d" % (b+4*acc, b+4*acc+3, vBA[s], (wsl-4)*16384 + acc*4096)))
        elif p == 0:
            for acc in range(2):
                o = (wsl & 3)*16384 + acc*4096 + s*1024
                lst.append(I("ds_read_b64_tr_b16 v[%d:%d], v%d offset:%d" % (b+4*acc, b+4*acc+1, vT1, o)))
                lst.append(I("ds_read_b64_tr_b16 v[%d:%d], v%d offset:%d" % (b+4*acc+2, b+4*acc+3, vT1, o+256)))
        else:
            vt = vT2b if wsl >= 4 else vT2a
            for acc in range(2):
                o = (wsl & 3)*16384 + acc*8192 + s*2048
                lst.append(I("ds_read_b64_tr_b16 v[%d:%d], v%d offset:%d" % (b+4*acc, b+4*acc+1, vt, o)))
                lst.append(I("ds_read_b64_tr_b16 v[%d:%d], v%d offset:%d" % (b+4*acc+2, b+4*acc+3, vt, o+512)))
    def mfma(cg, p, x, w, r, acc, first):
        A = (acca if p == 0 else accb)(r, acc)
        c = "0" if first else "v[%d:%d]" % (A, A+15)
        if p == 0 and cg == 0: return I("v_mfma_f32_32x32x16_bf16 v[%d:%d], %s, %s, %s" % (A, A+15, x, w, c))
        return I("v_mfma_f32_32x32x16_bf16 v[%d:%d], %s, %s, %s" % (A, A+15, w, x, c))

    def nonce_pre(role):
        L = []
        if role == 0:
            L += IL("s_cmp_lg_u32 s%d, 0\ns_cbranch_scc1 L_p1_n0skip\nv_readfirstlane_b32 s%d, v91\ns_cmp_eq_u32 s%d, 0\ns_cbranch_scc1 L_p1_nslow\nL_p1_nok:\nv_mov_b32 v92, %d\nds_write_b32 v92, v91\nL_p1_n0skip:" % (sW, sM0, sM0, NONL))
            SLOW.extend(["L_p1_nslow:", "s_mov_b32 s%d, 400000" % sSPIN, "L_p1_nspin:", "s_sleep 1",
                         "buffer_load_dword v91, off, s[%d:%d], 0 sc1" % (SDBG, SDBG+3), "s_waitcnt vmcnt(0)",
                         "v_readfirstlane_b32 s%d, v91" % sM0, "s_sub_u32 s%d, s%d, 1" % (sSPIN, sSPIN), "s_cmp_eq_u32 s%d, 0" % sSPIN, "s_cbranch_scc1 L_p1_nok",
                         "s_cmp_eq_u32 s%d, 0" % sM0, "s_cbranch_scc1 L_p1_nspin", "s_branch L_p1_nok"])
        return L
    def nonce_post(role):
        L = []
        L += IL("v_mov_b32 v92, %d\nds_read_b32 v91, v92" % NONL)
        L += IL("v_lshlrev_b32 v93, 2, v2\nv_add_u32 v93, %d, v93" % CSR)
        L += IL("ds_read2_b32 v[84:85], v93 offset0:0 offset1:32\nds_read2_b32 v[86:87], v93 offset0:64 offset1:96")
        L += IL("v_readfirstlane_b32 s%d, v91" % sNON)
        L += IL("v_mov_b32 v73, v91\nv_mov_b32 v75, v91\nv_mov_b32 v77, v91\nv_mov_b32 v79, v91")
        L += IL("s_lshl_b32 s%d, s3, 11\ns_lshl_b32 s%d, s4, 7\ns_add_u32 s%d, s%d, s%d\ns_lshl_b32 s%d, s%d, 5\ns_add_u32 s%d, s%d, s%d" % (sM0, sM1, sM0, sM0, sM1, sM1, sW, sM0, sM0, sM1))
        L.append(IL("s_mov_b32 exec_lo, 0\ns_mov_b32 exec_hi, 0x80000000") +
                 [I("buffer_store_dwordx4 v[72:75], off, s[%d:%d], s%d sc1" % (SWS, SWS+3, sM0), 'pub'), I("buffer_store_dwordx4 v[76:79], off, s[%d:%d], s%d offset:16 sc1" % (SWS, SWS+3, sM0), 'pub')] +
                 IL("s_mov_b64 exec, -1"))
        L += IL("v_add_f32 v84, v84, v85\nv_add_f32 v86, v86, v87\nv_add_f32 v84, v84, v86\nv_mov_b32 v85, v91")
        L += IL("s_lshl_b32 s%d, s4, 3\ns_lshr_b32 s%d, s3, 1\ns_add_u32 s%d, s%d, s%d\ns_lshl_b32 s%d, s%d, 9" % (sM0, sM1, sM0, sM0, sM1, sM0, sM0))
        L += IL("s_and_b32 s%d, s3, 1\ns_lshl_b32 s%d, s%d, 3\ns_add_u32 s%d, s%d, s%d\ns_add_u32 s%d, s%d, %d" % (sM1, sM1, sM1, sM0, sM0, sM1, sM0, sM0, WS_CS))
        L += IL("v_lshlrev_b32 v93, 4, v2")
        L.append(IL("s_cmp_eq_u32 s%d, 0\ns_cselect_b32 exec_lo, -1, 0\ns_mov_b32 exec_hi, 0" % sW) +
                 [I("buffer_store_dwordx2 v[84:85], v93, s[%d:%d], s%d offen sc1" % (SWS, SWS+3, sM0), 'pub')] + IL("s_mov_b64 exec, -1"))
        if role == 0:
            L += IL("v_mov_b32 v84, 0\nv_mov_b32 v85, v91\nv_mov_b32 v86, 0\nv_mov_b32 v87, v91")
            L += IL("s_lshl_b32 s%d, s2, 9\ns_add_u32 s%d, s%d, %d" % (sM0, sM0, sM0, WS_ZR))
            L.append(I("buffer_store_dwordx4 v[84:87], v93, s[%d:%d], s%d offen sc1" % (SWS, SWS+3, sM0), 'zr'))
        return L

    LNQ = ACCB
    sLA, sLB = sUOFF1, None
    def ln_addr(cg):
        B = []
        B += IL("s_lshl_b32 s%d, s3, 11\ns_lshl_b32 s%d, s%d, 10\ns_add_u32 s%d, s%d, s%d" % (SC0, SC0+1, sRGP, SC0, SC0, SC0+1))
        B += IL("v_lshlrev_b32 v64, 4, v4")
        B += IL("s_lshl_b32 s%d, s4, 12\ns_add_u32 s%d, s%d, %d" % (SC0+1, SC0+1, SC0+1, WS_CS + cg*1024))
        B += IL("v_lshlrev_b32 v65, 4, v2")
        return B
    def ln_issue(cg, tag='ln'):
        B = []
        B.append(I("buffer_load_dwordx4 v[%d:%d], v64, s[%d:%d], s%d offen sc1" % (LNQ+16, LNQ+19, SWS, SWS+3, SC0), tag))
        B.append(I("buffer_load_dwordx4 v[%d:%d], v64, s[%d:%d], s%d offen offset:512 sc1" % (LNQ+20, LNQ+23, SWS, SWS+3, SC0), tag))
        for k in range(2):
            for acc in range(2):
                q = LNQ + 8*k + 4*acc
                B.append(I("buffer_load_dwordx4 v[%d:%d], v65, s[%d:%d], s%d offen offset:%d sc1" % (q, q+3, SWS, SWS+3, SC0+1, k*2048 + acc*512), tag))
        return B
    def ln_check(cg):
        L = []
        lab = "L_p1_ln%d" % cg
        seq = ["v_mov_b32 v66, 0"]
        for q in range(LNQ, LNQ+24, 4):
            seq.append("v_bitop3_b32 v66, v66, v%d, s%d bitop3:0xf6" % (q+1, sNON))
            seq.append("v_bitop3_b32 v66, v66, v%d, s%d bitop3:0xf6" % (q+3, sNON))
        seq.append("v_cmp_ne_u32 vcc, 0, v66")
        L.append(Wait(vm_tag='ln'))
        for x in seq: L.append(I(x))
        L += IL("s_cbranch_vccnz %s_slow\n%s_ok:" % (lab, lab))
        S = ["%s_slow:" % lab, "s_mov_b32 s%d, 400000" % sSPIN, "%s_spin:" % lab, "s_sleep 1"]
        S += [x.text for x in ln_issue(cg)]
        S += ["s_waitcnt vmcnt(0)"] + seq + ["s_nop 4", "s_sub_u32 s%d, s%d, 1" % (sSPIN, sSPIN), "s_cmp_eq_u32 s%d, 0" % sSPIN, "s_cbranch_scc1 %s_ok" % lab,
              "s_cbranch_vccnz %s_spin" % lab, "s_branch %s_ok" % lab]
        SLOW.extend(S)
        return L
    def ln_build(cg, WA2):
        C = []
        for r in range(2):
            mean, inv = LNQ+16+4*r, LNQ+18+4*r
            C += IL("v_mul_f32 v70, v%d, v%d\nv_mul_f32 v%d, 0x%x, v%d\nv_mul_f32 v71, v70, v%d\nv_rcp_f32 v%d, v70\nv_mul_f32 v%d, 0x%x, v71" % (inv, inv, vK0[r], f2u(GC0), inv, inv, vS2[r], vK1[r], f2u(GC1)))
            C += IL("v_xor_b32 v70, 0x80000000, v%d\nv_cndmask_b32 v70, v70, 0, s[%d:%d]\nv_lshrrev_b32 v%d, 16, v70\nv_and_or_b32 v%d, v70, s%d, v%d" % (mean, sHH, sHH+1, XAUG[r]+1, XAUG[r], sHIM, XAUG[r]+1))
            if cg == 0:
                C += IL("s_lshl_b32 s%d, s%d, 8\nv_lshlrev_b32 v70, 2, v4\nv_add_u32 v70, s%d, v70\nv_add_u32 v70, %d, v70\nds_write_b32 v70, v%d" % (sT1, sRGP, sT1, INVL + 128*r, inv))
        for k in range(2):
            for acc in range(2):
                q = LNQ + 8*k + 4*acc
                d0, d1 = (WAUG[acc], WAUG[acc]+1) if k == 0 else (WA2[2*acc], WA2[2*acc+1])
                C += IL("v_add_f32 v%d, v%d, v%d\nv_and_b32 v%d, s%d, v%d\nv_sub_f32 v%d, v%d, v%d\nv_and_b32 v%d, s%d, v%d\nv_sub_f32 v%d, v%d, v%d" % (q, q, q+2, q+1, sHIM, q, q+2, q, q+1, q+3, sHIM, q+2, q+2, q+2, q+3))
                C += IL("v_lshrrev_b32 v%d, 16, v%d\nv_or_b32 v%d, v%d, v%d\nv_lshrrev_b32 v%d, 16, v%d" % (q+1, q+1, d0, q+1, q+3, d1, q+2))
        return C

    def role_main(cg, dens, go_steps, pre_bar, extra, WA2):
        M = []
        dq = []
        M.append(Wait(vm_tag=('C', 0)))
        M.append(I("s_barrier"))
        M += ST(0)
        reads(M, cg, 0); reads(M, cg, 1)
        dq += dma_x(2, ('C', 2)) + dma_w(6, ('C', 2)) + dma_x(3, ('C', 3)) + dma_w(7, ('C', 3))
        order = [(0, 0), (1, 0), (0, 1), (1, 1)]
        pace = [1, 0]
        for g in range(64):
            p, ks, t, s = g // 32, g % 32, g // 4, g % 4
            b = WF + 8*(g & 3)
            bar = (s == 2 and t < 15)
            if not bar and g + 2 < 64: reads(M, cg, g+2)
            for n, (r, acc) in enumerate(order):
                x = "a[%d:%d]" % (XF(r, ks), XF(r, ks)+3); w = "v[%d:%d]" % (b+4*acc, b+4*acc+3)
                if bar and n == 0: M.append(Wait(lgkm_all=True))
                M.append(mfma(cg, p, x, w, r, acc, ks == 0))
                if bar and n == 0:
                    if (t+1) in go_steps: M.append(('GO',))
                    M += flat(pre_bar.get(t+1, []))
                    need = ('C', t+1)
                    while any(getattr(x_, 'tag', None) == need for gq in dq for x_ in gq):
                        M += dq.pop(0)
                    M.append(Wait(lgkm_all=True))
                    M.append(Wait(vm_tag=need))
                    M.append(I("s_barrier"))
                    if t+1 in (4, 8, 12): M += ST((t+1)//4)
                    if t < 4:
                        dq += dma_x(t, ('C', t+4)) + dma_w(4+t, ('C', t+4))
                    if (t+1) in w2sched:
                        for q, tq in enumerate(w2sched):
                            if tq == t+1: dq += dma_w2(w2slot(q), ('C', 8+q))
                    reads(M, cg, g+2)
                    M += flat(extra.get(t+1, []))
                    pace[0] = max(1, 15 // max(1, len(dq))); pace[1] = 0
                if dq and pace[1] % pace[0] == 0: M += dq.pop(0)
                pace[1] += 1
                M.append(('SLOT', dens(t)))
            if ks == 31:
                if p == 1:
                    for acc in range(2):
                        M += IL("v_mov_b32 v%d, v%d\nv_mov_b32 v%d, v%d" % (WAUG[acc], WA2[2*acc], WAUG[acc]+1, WA2[2*acc+1]))
                M.append(('GO',) if ('aug%d' % p) in go_steps else ('SLOT', 0))
                for n, (r, acc) in enumerate(order):
                    x = "v[%d:%d]" % (XAUG[r], XAUG[r]+3); w = "v[%d:%d]" % (WAUG[acc], WAUG[acc]+3)
                    M.append(mfma(cg, p, x, w, r, acc, False))
        assert not dq
        return M
    for q, tq in enumerate(w2sched):
        assert tq >= 5 + q//2, (q, tq)
        assert tq <= 8 + q - 1, (q, tq)

    R0 = []
    R0 += IL("v_lshlrev_b32 v88, 16, v88\nv_lshlrev_b32 v89, 16, v89\nv_lshlrev_b32 v90, 16, v90")
    R0 += IL("v_mul_f32 v92, 0x%x, v90\nv_exp_f32 v92, v92" % f2u(LOG2E))
    bf16r(R0, 92, 93)
    R0 += IL("v_mul_f32 v93, v92, v88\nv_mul_f32 v94, v92, v89")
    R0 += IL("v_mul_f32 v93, 0x%x, v93\nv_exp_f32 v93, v93" % f2u(LOG2E))
    R0 += IL("v_mul_f32 v94, 0.15915494, v94\nv_fract_f32 v94, v94\nv_cos_f32 v95, v94\nv_sin_f32 v94, v94")
    R0 += IL("v_mul_f32 v%d, v93, v95\nv_mul_f32 v%d, v93, v94" % (vLr, vLi))
    R0 += IL("v_add_f32 v92, -1.0, v%d" % vLr)
    R0 += IL("v_mul_f32 v93, v88, v88\nv_fmac_f32 v93, v89, v89\nv_rcp_f32 v93, v93\nv_add_f32 v93, v93, v93")
    R0 += IL("v_mul_f32 v94, v92, v88\nv_fmac_f32 v94, v%d, v89\nv_mul_f32 v%d, v94, v93" % (vLi, vcr))
    R0 += IL("v_mul_f32 v94, v%d, v88\nv_fma_f32 v94, -v92, v89, v94\nv_mul_f32 v%d, v94, v93" % (vLi, vci))
    R0 += IL("v_mov_b32 v%d, v%d\nv_mov_b32 v%d, v%d" % (vL16r, vLr, vL16i, vLi))
    for _ in range(4): csq(R0, vL16r, vL16i, 92)
    R0 += IL("v_mov_b32 v88, v%d\nv_mov_b32 v89, v%d" % (vL16r, vL16i)); csq(R0, 88, 89, 92)
    R0 += IL("v_mov_b32 v94, v88\nv_mov_b32 v95, v89"); csq(R0, 94, 95, 92)
    R0 += IL("v_mov_b32 v%d, v94\nv_mov_b32 v%d, v95" % (vL128r, vL128i)); csq(R0, vL128r, vL128i, 92)
    R0.append(IL("s_cmp_eq_u32 s%d, 1\ns_cselect_b32 s%d, 1.0, 0\ns_cselect_b32 s%d, -1, 0\ns_cselect_b32 s%d, 0, 1.0" % (sRGP, sRGPF, sAGM, sT1)))
    R0 += IL("s_mov_b32 s%d, 0" % (sAGM+1))
    R0 += IL("v_mul_f32 v94, s%d, v94\nv_mul_f32 v95, s%d, v95\nv_add_f32 v94, s%d, v94" % (sRGPF, sRGPF, sT1))
    cmul_into(R0, 92, 93, 94, 95, vL16r, vL16i)
    R0 += IL("v_cndmask_b32 v%d, v94, v92, s[%d:%d]\nv_cndmask_b32 v%d, v95, v93, s[%d:%d]" % (vF[0][0], sHH, sHH+1, vF[0][1], sHH, sHH+1))
    cmul_into(R0, vF[1][0], vF[1][1], vF[0][0], vF[0][1], 88, 89)
    WA2_0 = [0, 16, 18, 5]
    F0 = []
    F0 += setup2()
    F0 += phase0_stats()
    F0.append('STOP')
    F0 += phase0_colsum_write()
    F0 += R0
    F0.append('STOP')
    F0 += nonce_post(0)
    F0 += ln_addr(0)
    F0.append('STOP')
    F0 += ln_issue(0)
    F0.append('STOP')
    F0 += ln_build(0, WA2_0)
    F0 += IL("v_sub_f32 v%d, 0, v%d\nv_sub_f32 v%d, 0, v%d\nv_sub_f32 v%d, 0, v%d" % (vnLi, vLi, vnL16i, vL16i, vnci, vci))
    F0.append('STOP')
    T = [7, 8, 19, 20, 21]
    Ublk = [U0, acca(0, 0)]
    F0 += IL("s_lshl_b32 s%d, s%d, 8\nv_lshlrev_b32 v%d, 6, v3\nv_add_u32 v%d, s%d, v%d\nv_add_u32 v%d, %d, v%d" % (sT0, sRGP, T[0], T[0], sT0, T[0], T[0], INVL, T[0]))
    SO = [(22, 23), (24, 25)]
    for r in range(2):
        ar0, ai0 = acca(r, 0), acca(r, 1)
        D = Ublk[r]
        for q4 in range(4):
            qd = WAUG[q4 & 1]
            if r == 0 and q4 == 0: F0.append(I("ds_read_b128 v[%d:%d], v%d offset:%d" % (qd, qd+3, T[0], 0)))
            nq = r*4 + q4 + 1
            if nq < 8: F0.append(I("ds_read_b128 v[%d:%d], v%d offset:%d" % (WAUG[nq & 1], WAUG[nq & 1]+3, T[0], nq*16 if nq < 4 else 128 + (nq-4)*16)))
            for jj in range(4):
                q = 4*q4 + jj
                ar, ai = ar0+q, ai0+q; d0, d1 = D+2*q, D+2*q+1
                if latec:
                    F0 += IL("v_mul_f32 v%d, v%d, v%d\nv_mul_f32 v%d, v%d, v%d" % (d0, qd+jj, ar, d1, qd+jj, ai))
                else:
                    F0 += IL("v_mul_f32 v%d, v%d, v%d\nv_mul_f32 v%d, v%d, v%d\nv_mul_f32 v%d, v%d, v%d\nv_mul_f32 v%d, v%d, v%d\nv_fmac_f32 v%d, v%d, v%d\nv_fmac_f32 v%d, v%d, v%d" % (ar, qd+jj, ar, ai, qd+jj, ai, d0, vcr, ar, d1, vcr, ai, d0, vnci, ai, d1, vci, ar))
                if q == 0: pr, pi = d0, d1
                else:
                    nr, ni = ((T[1], T[2]), (T[3], T[4]))[q & 1]
                    if q == 15: nr, ni = SO[r]
                    F0 += IL("v_fma_f32 v%d, v%d, v%d, v%d\nv_fma_f32 v%d, v%d, v%d, v%d\nv_fmac_f32 v%d, v%d, v%d\nv_fmac_f32 v%d, v%d, v%d" % (nr, vLr, pr, d0, ni, vLr, pi, d1, nr, vnLi, pi, ni, vLi, pr))
                    pr, pi = nr, ni
        F0 += IL("s_lshl_b32 s%d, s%d, 10\nv_lshlrev_b32 v%d, 3, v2\nv_lshl_add_u32 v%d, v3, 8, v%d\nv_add_u32 v%d, s%d, v%d\nv_add_u32 v%d, %d, v%d\nds_write_b64 v%d, v[%d:%d]" % (sT0, sRGP, T[1], T[1], T[1], T[1], sT0, T[1], T[1], SEG + 512*r, T[1], T[1], SO[r][0], SO[r][1]))
    F0.append('STOP')
    X = acca(1, 0)
    vPP = [(X+24, X+25), (X+26, X+27)]
    F0 += IL("v_lshlrev_b32 v%d, 3, v2\nv_add_u32 v%d, %d, v%d" % (T[0], T[0], SEG, T[0]))
    F0 += IL("ds_read2_b64 v[%d:%d], v%d offset0:0 offset1:32\nds_read2_b64 v[%d:%d], v%d offset0:64 offset1:96" % (X, X+3, T[0], X+4, X+7, T[0]))
    F0 += IL("s_lshl_b32 s%d, s%d, 10\nv_add_u32 v%d, s%d, v%d" % (sT0, sRGP, T[0], sT0, T[0]))
    F0 += IL("ds_read2_b64 v[%d:%d], v%d offset0:0 offset1:32\nds_read2_b64 v[%d:%d], v%d offset0:64 offset1:96" % (X+8, X+11, T[0], X+12, X+15, T[0]))
    cacc(F0, X+2, X+3, vL16r, vL16i, vnL16i, X, X+1)
    cacc(F0, X+4, X+5, vL16r, vL16i, vnL16i, X+2, X+3)
    cacc(F0, X+6, X+7, vL16r, vL16i, vnL16i, X+4, X+5)
    F0 += IL("v_mul_f32 v%d, s%d, v%d\nv_mul_f32 v%d, s%d, v%d" % (X+6, sRGPF, X+6, X+7, sRGPF, X+7))
    cacc(F0, X+8, X+9, vL16r, vL16i, vnL16i, X+6, X+7)
    cacc(F0, X+10, X+11, vL16r, vL16i, vnL16i, X+8, X+9)
    cacc(F0, X+12, X+13, vL16r, vL16i, vnL16i, X+10, X+11)
    cacc(F0, X+14, X+15, vL16r, vL16i, vnL16i, X+12, X+13)
    F0 += IL("v_mov_b32 v%d, v%d\nv_mov_b32 v%d, s%d\nv_mov_b32 v%d, v%d\nv_mov_b32 v%d, s%d" % (X+16, X+14, X+17, sNON, X+18, X+15, X+19, sNON))
    F0 += IL("s_lshl_b32 s%d, s4, 13\ns_lshl_b32 s%d, s3, 9\ns_add_u32 s%d, s%d, s%d\ns_add_u32 s%d, s%d, %d\nv_lshlrev_b32 v%d, 4, v2" % (sT0, sT1, sT0, sT0, sT1, sT0, sT0, WS_AGR, T[0]))
    F0.append([I("s_mov_b64 exec, s[%d:%d]" % (sAGM, sAGM+1)),
               I("buffer_store_dwordx4 v[%d:%d], v%d, s[%d:%d], s%d offen sc1" % (X+16, X+19, T[0], SWS, SWS+3, sT0), 'agg'),
               I("s_mov_b64 exec, -1")])
    for c in range(2):
        F0.append(I("v_cndmask_b32 v%d, v%d, v%d, s[%d:%d]" % (vPP[0][c], X+6+c, X+8+c, sHH, sHH+1)))
        F0.append(I("v_cndmask_b32 v%d, v%d, v%d, s[%d:%d]" % (vPP[1][c], X+10+c, X+12+c, sHH, sHH+1)))
    GOB = 12
    main0 = role_main(0, lambda t: dens0[0] if t < 8 else dens0[1], {2, 3, 5, 8, 'aug0', GOB},
                      {2: phase0_colsum(0), 3: nonce_pre(0), 8: ln_check(0)}, {}, WA2_0)
    body0, left0 = interleave2(main0, F0)
    assert not left0, len(left0)
    PD = dict(x=P_X, cre=P_CRE, cim=P_CIM, dsk=P_DSK, wd=P_WD, out=P_OUT, ws=P_WS)
    def fpre():
        if not fused: return []
        if fused in (2, 3, 4, 5, 6, 7, 8, 9): return [Wait(lgkm_all=True), I("s_barrier")]
        return [Wait(lgkm_all=True), I("s_barrier")] + p2c.p2_pre("s4", "s5", PD, SW1, sWOFF, sWSTR, 5, 6, (24, 25, 26))
    def merge(tail, side, start=0):
        if not side: return tail
        out = []; n = len(tail) - start; k = 0
        step = max(1.0, n / float(len(side)))
        nxt = start
        for idx, x in enumerate(tail):
            out.append(x)
            while k < len(side) and idx >= nxt and x.cls not in ('label',) and not (x.op.startswith('s_cmp') or x.op.startswith('s_cbranch') or 'exec' in x.wr or x.op == 's_add_u32' or x.op.startswith('v_cmp')):
                out.extend(flat([side[k]])); k += 1; nxt += step
                if step >= 1: break
        while k < len(side): out.extend(flat([side[k]])); k += 1
        return out
    def w2side(role=0):
        if fused == 5:
            return p2e.setup(role, "s4", "s6", PD), p2e.first_dma(role), p2e.setup2(role, "s4", "s6", PD), None, None, None
        if fused == 4:
            d1, r1, d2, r2 = p2d.rounds4()
            return p2d.w2_setup4("s4", "s5", PD), d1, p2d.w2_setup2("s4", "s5", PD), r1, d2, r2
        d1, r1, d2, r2 = p2d.rounds()
        return p2d.w2_setup("s4", "s5", PD), d1, p2d.w2_setup2("s4", "s5", PD), r1, d2, r2
    TL = Stream()
    TL.extend(ST(4))
    TL.extend(fpre())
    AGR = [WF + 4*k for k in range(8)] + [X + 4*k for k in range(6)] + [20]
    TL("v_lshlrev_b32 v7, 4, v2")
    TL("s_lshl_b32 s%d, s4, 13\ns_add_u32 s%d, s%d, %d" % (sT0, sT0, sT0, WS_AGR))
    TL("s_lshl_b32 s%d, s2, 9\ns_add_u32 s%d, s%d, %d" % (sT1, sT1, sT1, WS_ZR))
    TL("s_sub_u32 s%d, s3, 15\ns_lshl_b32 s%d, s%d, 9\ns_add_u32 s%d, s%d, s%d" % (sM0, sM0, sM0, sM0, sM0, sT0))
    def agg_loads():
        L = []
        for k in range(15):
            L.append("s_add_u32 s%d, s%d, %d" % (sM1, sM0, 512*k))
            L.append("s_cmp_ge_u32 s3, %d" % (15-k))
            L.append("s_cselect_b32 s%d, s%d, s%d" % (sM1, sM1, sT1))
            L.append("buffer_load_dwordx4 v[%d:%d], v7, s[%d:%d], s%d offen sc1" % (AGR[k], AGR[k]+3, SWS, SWS+3, sM1))
        return L
    def agg_chk():
        seq = ["v_mov_b32 v8, 0"]
        for k in range(15):
            seq.append("v_bitop3_b32 v8, v8, v%d, s%d bitop3:0xf6" % (AGR[k]+1, sNON))
            seq.append("v_bitop3_b32 v8, v8, v%d, s%d bitop3:0xf6" % (AGR[k]+3, sNON))
        seq.append("v_cmp_ne_u32 vcc, 0, v8")
        return seq
    for x in agg_loads(): TL(x)
    if fused in (2, 3, 4, 5, 6, 7, 8, 9):
        su, d1, su2, r1, d2, r2 = w2side()
        TL.extend(flat(su))
        TL.extend(merge(tail_ffn(sUOFF2, SA0, SA1), d1 + su2))
    else:
        TL.extend(tail_ffn(sUOFF2, SA0, SA1))
    TL.extend(ST(5))
    markB = len(TL.ins)
    for x in agg_chk(): TL(x)
    TL("s_cbranch_vccnz L_p1_agslow\nL_p1_agok:")
    SLOW.extend(["L_p1_agslow:", "s_mov_b32 s%d, 400000" % sSPIN, "L_p1_agspin:", "s_sleep 1"] + agg_loads() + ["s_waitcnt vmcnt(0)"] + agg_chk() +
                ["s_nop 4", "s_sub_u32 s%d, s%d, 1" % (sSPIN, sSPIN), "s_cmp_eq_u32 s%d, 0" % sSPIN, "s_cbranch_scc1 L_p1_agok", "s_cbranch_vccnz L_p1_agspin", "s_branch L_p1_agok"])
    TL.extend(ST(6))
    def pkstep(S, d, l, p, s):
        S("v_pk_fma_f32 v[%d:%d], v[%d:%d], v[%d:%d], v[%d:%d] op_sel_hi:[0,1,1]" % (d, d+1, l, l+1, p, p+1, s, s+1))
        S("v_pk_fma_f32 v[%d:%d], v[%d:%d], v[%d:%d], v[%d:%d] op_sel:[1,1,0] op_sel_hi:[1,0,1] neg_lo:[1,0,0]" % (d, d+1, l, l+1, p, p+1, d, d+1))
    for k in range(15): TL("v_mov_b32 v%d, v%d" % (AGR[k]+1, AGR[k]+2))
    for k in range(1, 15): pkstep(TL, AGR[k], vL128r, AGR[k-1], AGR[k])
    H = AGR[14]
    for r in range(2): pkstep(TL, vPP[r][0], vF[r][0], H, vPP[r][0])
    FLF = "s_lshl_b32 s95, s3, 4\ns_add_u32 s95, s95, s4\ns_lshl_b32 s95, s95, 2\ns_add_u32 s95, s95, s5\ns_lshl_b32 s95, s95, 3\ns_add_u32 s95, s95, %d" % WS_FL
    FLS = "s_lshl_b32 s95, s3, 4\ns_add_u32 s95, s95, s4\ns_lshl_b32 s95, s95, 1\ns_add_u32 s95, s95, s%d\ns_lshl_b32 s95, s95, 3\ns_add_u32 s95, s95, %d" % (sRGP, WS_FL + 0x2000)
    if fused == 3:
        TL.add(Wait(vm_tag='a2')); TL.extend(flat(p2d.flag_store(SWS, sNON, FLF, 22)))
    prev = [vPP[0][0], vPP[1][0]]
    for q in range(16):
        for r in range(2):
            d = Ublk[r] + 2*q
            pkstep(TL, d, vLr, prev[r], d)
            prev[r] = d
    if latec:
        for q in range(16):
            for r in range(2):
                d = Ublk[r] + 2*q; t = 20 + 2*r
                TL("v_pk_mul_f32 v[%d:%d], v[%d:%d], v[%d:%d] op_sel_hi:[0,1]" % (t, t+1, vcr, vcr+1, d, d+1))
                TL("v_pk_fma_f32 v[%d:%d], v[%d:%d], v[%d:%d], v[%d:%d] op_sel:[1,1,0] op_sel_hi:[1,0,1] neg_lo:[1,0,0]" % (d, d+1, vcr, vcr+1, d, d+1, t, t+1))
    TL("s_lshl_b32 s%d, s%d, 13\ns_add_u32 s%d, s%d, %d" % (sT0, sRGP, sT0, sT0, CSL))
    TL("v_lshlrev_b32 v7, 6, v2\nv_lshl_add_u32 v7, v3, 5, v7\nv_add_u32 v7, s%d, v7" % sT0)
    TL("v_add_u32 v8, s%d, v%d" % (sT0, vT0))
    TL("v_lshlrev_b32 v19, 4, v2\nv_lshl_add_u32 v19, v3, 9, v19")
    TL("s_lshl_b32 s%d, s4, 12\ns_add_u32 s%d, s%d, %d" % (sT1, sT1, sT1, 86*1024))
    for r in range(2):
        Z = accb(r, 1); D = Ublk[r]
        for q2 in range(8):
            TL("v_cvt_pk_bf16_f32 v%d, v%d, v%d" % (Z+q2, D+4*q2, D+4*q2+2))
            TL("v_cvt_pk_bf16_f32 v%d, -v%d, -v%d" % (Z+8+q2, D+4*q2+1, D+4*q2+3))
        o = r*4096
        TL("ds_write_b128 v7, v[%d:%d] offset:%d\nds_write_b128 v7, v[%d:%d] offset:%d\nds_write_b128 v7, v[%d:%d] offset:%d\nds_write_b128 v7, v[%d:%d] offset:%d" % (Z, Z+3, o, Z+4, Z+7, o+16, Z+8, Z+11, o+2048, Z+12, Z+15, o+2064))
    for r in range(2):
        Z = WF + 16*r; o = r*4096
        for part in range(2):
            for s in range(2):
                q = Z + 4*(2*part+s); oo = o + part*2048 + s*1024
                TL("ds_read_b64_tr_b16 v[%d:%d], v8 offset:%d\nds_read_b64_tr_b16 v[%d:%d], v8 offset:%d" % (q, q+1, oo, q+2, q+3, oo+256))
        for part in range(2):
            for s in range(2):
                q = Z + 4*(2*part+s)
                TL("buffer_store_dwordx4 v[%d:%d], v19, s[%d:%d], s%d offen offset:%d%s" % (q, q+3, (SA0, SA1)[r], (SA0, SA1)[r]+3, sT1, (2*part+s)*1024, A2MOD), 'a2')
    if fused == 2:
        segB = TL.ins[markB:]
        pass
    if fused == 7:
        segB = TL.ins[markB:]
        ia = [k for k, x in enumerate(segB) if x.text == "L_p1_agok:"][0]
        d1_, r1_, d2_, r2_, d3_ = p2d.rounds6()
        TL.ins = TL.ins[:markB] + segB[:ia+1] + merge(segB[ia+1:], [Wait(vm_tag='w1')] + r1_ + d2_)
    if fused in (3, 4, 5):
        TL.add(Wait(vm_tag='a2')); TL.extend(flat(p2d.flag_store(SWS, sNON, FLS, 22)))
        TL("s_mov_b32 s98, s%d" % sNON)
    SL5 = []
    if fused == 5:
        if stamp == 3: TL("s_memrealtime s[26:27]\ns_memrealtime s[16:17]\ns_memrealtime s[30:31]")
        TL.extend(p2e.p2_role(0, "s3", "s4", "s6", "s5", PD, SWS, 98, SL5, a2ld=a2ld2, stamp=(stamp == 3)))
    TL("s_branch L_p1_fin")
    full0 = finalize(model_pre + [I("L_MARK_Q:")] + Q.ins + body0 + TL.ins)
    idx = [k for k, o in enumerate(full0) if o.text == "L_MARK_Q:"][0]
    role0 = full0[idx+1:]
    pro = finalize(P.ins)

    WA2_1 = [52, 53, 54, 55]
    F1 = []
    F1 += setup2()
    F1 += phase0_stats()
    F1.append('STOP')
    F1 += phase0_colsum_write()
    F1.append('STOP')
    F1 += nonce_post(1)
    F1 += ln_addr(1)
    F1.append('STOP')
    F1 += ln_issue(1)
    F1.append('STOP')
    F1 += ln_build(1, WA2_1)
    F1.append('STOP')
    tt = [19, 20, 21, 22]
    for r in range(2):
        F1 += ffn_epilogue(r, acca(r, 0), acca(r, 1), sUOFF1, tt, (SA0, SA1)[r])
    if fused in (2, 3, 4, 5, 6, 7, 8, 9):
        F1 += IL("s_and_b32 s%d, s3, 7\ns_lshl_b32 s%d, s%d, 2\ns_and_b32 s%d, s4, 3\ns_add_u32 s%d, s%d, s%d" % (sT0, sT0, sT0, sT1, sT0, sT0, sT1))
        F1 += IL("s_mov_b32 s%d, s%d\ns_mov_b32 s%d, s%d\ns_mov_b32 s%d, %d\ns_mov_b32 s%d, 0x20000" % (SC0, P_WD, SC0+1, P_WD+1, SC0+2, 1376*1024, SC0+3))
        F1 += IL("v_lshrrev_b32 v56, 2, v1\nv_lshlrev_b32 v56, 10, v56\nv_and_b32 v57, 3, v1\nv_lshl_add_u32 v56, v57, 7, v56")
        F1 += IL("s_mul_i32 s%d, s%d, %d\ns_bfe_u32 s%d, s4, 0x10002\ns_lshl_b32 s%d, s%d, 9\ns_add_u32 s%d, s%d, s%d\ns_lshl_b32 s%d, s%d, 15\ns_add_u32 s%d, s%d, s%d" % (sT1, sT0, 43*1024, sM0, sM0, sM0, sT1, sT1, sM0, sM0, sRGP, sT1, sT1, sM0))
        F1.append(I("buffer_load_dword v58, v56, s[%d:%d], s%d offen" % (SC0, SC0+3, sT1), 'touch'))
        F1 += IL("s_add_u32 s%d, s%d, 16384" % (sT1, sT1))
        F1.append(I("buffer_load_dword v59, v56, s[%d:%d], s%d offen" % (SC0, SC0+3, sT1), 'touch'))
        F1.append(IL("s_cmp_eq_u32 s%d, 0\ns_cselect_b32 s%d, s%d, s%d\ns_cselect_b32 s%d, s%d, s%d" % (sRGP, SC0, P_CRE, P_CIM, SC0+1, P_CRE+1, P_CIM+1)))
        F1 += IL("s_mov_b32 s%d, %d" % (SC0+2, 512*1024))
        F1 += IL("v_lshlrev_b32 v56, 7, v1")
        F1 += IL("s_bfe_u32 s%d, s4, 0x10002\ns_lshl_b32 s%d, s%d, 18\ns_lshl_b32 s%d, s%d, 13\ns_add_u32 s%d, s%d, s%d" % (sM0, sM0, sM0, sT1, sT0, sT1, sT1, sM0))
        F1.append(I("buffer_load_dword v60, v56, s[%d:%d], s%d offen" % (SC0, SC0+3, sT1), 'touch'))
    main1 = role_main(1, lambda t: dens1[0] if t < 8 else dens1[1], {2, 3, 5, 8, 'aug0'}, {2: phase0_colsum(1), 8: ln_check(1)}, {}, WA2_1)
    body1, left1 = interleave2(main1, F1)
    assert not left1, len(left1)
    T1 = Stream()
    T1.extend(ST(4))
    T1.extend(fpre())
    if fused in (2, 3, 4, 5, 6, 7, 8, 9):
        su, d1, su2, r1, d2, r2 = w2side(1)
        T1.extend(flat(su))
        T1.extend(merge(tail_ffn(sUOFF2, SA0, SA1), d1 + su2))
        pass
    else:
        T1.extend(tail_ffn(sUOFF2, SA0, SA1))
    FL1 = "s_lshl_b32 s95, s3, 4\ns_add_u32 s95, s95, s4\ns_lshl_b32 s95, s95, 1\ns_add_u32 s95, s95, s%d\ns_lshl_b32 s95, s95, 3\ns_add_u32 s95, s95, %d" % (sRGP, WS_FL)
    if fused in (3, 4, 5):
        T1.add(Wait(vm_tag='a2')); T1.extend(flat(p2d.flag_store(SWS, sNON, FLF if fused == 3 else FL1, 22)))
        T1("s_mov_b32 s98, s%d" % sNON)
    if fused == 5:
        if stamp == 3: T1("s_memrealtime s[26:27]\ns_memrealtime s[16:17]\ns_memrealtime s[30:31]")
        T1.extend(p2e.p2_role(1, "s3", "s4", "s6", "s5", PD, SWS, 98, SL5, a2ld=a2ld2, stamp=(stamp == 3)))
        SLOW.extend(SL5)
    if fused == 7:
        d1_, r1_, d2_, r2_, d3_ = p2d.rounds6()
        T1.extend(flat([Wait(vm_tag='w1')] + r1_ + d2_))
    if fused == 9:
        d1_, r1_, d2_, r2_, d3_ = p2d.rounds6()
        T1.extend(flat([Wait(vm_tag='w1')] + r1_ + d2_ + r2_ + d3_))
    T1.extend(ST(5)); T1.extend(ST(6))
    r1full = finalize(model_pre + Q.ins + [I("L_p1_role1:")] + body1 + T1.ins)
    idx = [k for k, o in enumerate(r1full) if o.text == "L_p1_role1:"][0]
    role1 = r1full[idx:]
    F = Stream()
    F("L_p1_fin:")
    if stamp == 1:
        F("s_waitcnt vmcnt(0)\ns_memtime s[22:23]\ns_memrealtime s[24:25]\ns_waitcnt lgkmcnt(0)")
        srd(F, 52, P_WS, 1 << 20, 0x2000000)
        F("v_mov_b32 v8, s0\nv_mov_b32 v9, s98")
        for k in range(8): F("v_mov_b32 v%d, s%d" % (10+k, 8+2*k))
        F("v_mov_b32 v18, s24\nv_mov_b32 v19, 0")
        F("s_lshl_b32 s26, s2, 3\ns_add_u32 s26, s26, s%d\ns_lshl_b32 s26, s26, 6\nv_mov_b32 v20, s26" % sW)
        F("v_cmp_eq_u32 vcc, 0, v1\ns_and_saveexec_b64 s[28:29], vcc")
        F("buffer_store_dwordx4 v[8:11], v20, s[52:55], 0 offen\nbuffer_store_dwordx4 v[12:15], v20, s[52:55], 0 offen offset:16\nbuffer_store_dwordx4 v[16:19], v20, s[52:55], 0 offen offset:32")
    fin = finalize(F.ins)
    ftxt = ""
    if fused == 5:
        ftxt += render(finalize(p2e.p2_final()))
    elif fused in (3, 4):
        if stamp == 3: ftxt += "s_memrealtime s[26:27]\ns_memrealtime s[16:17]\ns_memrealtime s[30:31]\n"
        SL2 = []
        body3 = (p2d.p2_main3 if fused == 3 else p2d.p2_main4)("s3", "s4", "s5", PD, SWS, 98, SL2, a2ld=a2ld2, stamp=(stamp == 3))
        ftxt += render(finalize(body3))
        SLOW.extend(SL2)
    elif fused:
        if stamp == 3: ftxt += "s_memrealtime s[26:27]\n"
        ftxt += "s_waitcnt vmcnt(0)\ns_barrier\n"
        if stamp == 3: ftxt += "s_memrealtime s[16:17]\n"
        ftxt += "s_mov_b32 s98, s%d\n" % sNON
        ftxt += "s_cmp_lg_u32 s5, 0\ns_cbranch_scc1 L_f_fskip\n"
        ftxt += "v_mov_b32 v36, s98\nv_mov_b32 v37, s98\ns_lshl_b32 s95, s3, 4\ns_add_u32 s95, s95, s4\ns_lshl_b32 s95, s95, 3\ns_add_u32 s95, s95, %d\ns_mov_b64 exec, 1\n" % WS_FL
        ftxt += "buffer_store_dwordx2 v[36:37], off, s[%d:%d], s95 sc1\ns_mov_b64 exec, -1\nL_f_fskip:\n" % (SWS, SWS+3)
        poll = "s_cmp_lg_u32 s5, 0\ns_cbranch_scc1 L_f_pskip\nv_lshlrev_b32 v46, 3, v1\ns_lshl_b32 s95, s3, 7\ns_add_u32 s95, s95, %d\ns_mov_b32 s94, 400000\ns_mov_b64 exec, 0xffff\n" % WS_FL
        poll += "L_f_poll:\nbuffer_load_dwordx2 v[48:49], v46, s[%d:%d], s95 offen sc1\ns_waitcnt vmcnt(0)\nv_xor_b32 v48, s98, v48\nv_xor_b32 v49, s98, v49\nv_or_b32 v48, v48, v49\nv_cmp_ne_u32 vcc, 0, v48\ns_nop 4\ns_cbranch_vccz L_f_pok\n" % (SWS, SWS+3)
        poll += "s_sleep 1\ns_sub_u32 s94, s94, 1\ns_cmp_lg_u32 s94, 0\ns_cbranch_scc1 L_f_poll\nL_f_pok:\ns_mov_b64 exec, -1\n" + ("buffer_inv sc1\ns_waitcnt vmcnt(0)\n" if acq else "") + "L_f_pskip:\ns_barrier\n"
        if stamp == 3: poll += "s_memrealtime s[22:23]\n"
        if fused == 9:
            d1, r1, d2, r2, d3 = p2d.rounds6()
            ftxt += "s_cmp_eq_u32 s7, 1\ns_cbranch_scc1 L_f_r9\n"
            ftxt += render(finalize(flat(r1 + d2 + r2 + d3)))
            ftxt += "L_f_r9:\n"
            if stamp == 3: ftxt += "s_memrealtime s[30:31]\n"
            ftxt += p2d.p2_main6("s3", "s4", "s5", PD, poll, a2ld=a2ld2, stamp=(stamp == 3))
        elif fused == 8:
            d1, r1, d2, r2, d3 = p2d.rounds6()
            ftxt += render(finalize(flat(r1 + d2)))
            if stamp == 3: ftxt += "s_memrealtime s[30:31]\n"
            ftxt += p2d.p2_main6("s3", "s4", "s5", PD, poll, a2ld=a2ld2, stamp=(stamp == 3), late={10: r2[1:], 13: d3})
        elif fused == 7:
            d1, r1, d2, r2, d3 = p2d.rounds6()
            ftxt += render(finalize(flat(r2[1:] + d3)))
            if stamp == 3: ftxt += "s_memrealtime s[30:31]\n"
            ftxt += p2d.p2_main6("s3", "s4", "s5", PD, poll, a2ld=a2ld2, stamp=(stamp == 3))
        elif fused == 6:
            d1, r1, d2, r2, d3 = p2d.rounds6()
            ftxt += render(finalize(flat(r1 + d2 + r2 + d3)))
            if stamp == 3: ftxt += "s_memrealtime s[30:31]\n"
            ftxt += p2d.p2_main6("s3", "s4", "s5", PD, poll, a2ld=a2ld2, stamp=(stamp == 3))
        elif fused == 2:
            d1, r1, d2, r2 = p2d.rounds()
            ftxt += render(finalize(flat(r1[1:] + d2 + r2 + [Wait(lgkm_all=True), I("s_barrier")])))
            if stamp == 3: ftxt += "s_memrealtime s[30:31]\n"
            ftxt += p2d.p2_main("s3", "s4", "s5", PD, poll, a2ld=a2ld2)
        else: ftxt += p2c.p2_phase("s3", "s4", "s5", PD, a2ld=("" if acq else " sc1"), poll=poll, lab="L_f", stamp=(stamp == 3), pre=dict(SWD=SW1, sWOF=sWOFF, sLB=sWSTR, vP0=5, vP1=6, done=True))
    if fused and stamp == 3:
        ftxt += "s_waitcnt vmcnt(0)\ns_memrealtime s[28:29]\ns_waitcnt lgkmcnt(0)\n"
        for k, r in enumerate((0, 10, 12, 14, 26, 16, 22, 30, 28)): ftxt += "v_mov_b32 v%d, s%d\n" % (64+k, r)
        ftxt += "s_lshl_b32 s94, s2, 2\ns_add_u32 s94, s94, s5\ns_lshl_b32 s94, s94, 6\ns_add_u32 s94, s94, 0x2000000\nv_mov_b32 v76, s94\n"
        ftxt += "global_store_dwordx4 v76, v[64:67], s[38:39]\nglobal_store_dwordx4 v76, v[68:71], s[38:39] offset:16\nglobal_store_dwordx4 v76, v[72:75], s[38:39] offset:32\n"
    ftxt += "L_p1_end:\ns_endpgm\n"
    slow = "\n".join(SLOW) + "\n"
    return kernel_text(name, render(pro) + render(role0) + render(role1) + render(fin) + ftxt + slow, 512, 102, accum=256)
```
